```python
import torch

def _softmax(x, axis=-1):
    return torch.softmax(x, dim=axis)

def _gelu(x):
    return torch.nn.functional.gelu(x, approximate='tanh')

def _silu(x):
    return torch.nn.functional.silu(x)

def _sigmoid(x):
    return torch.sigmoid(x)

def _layernorm(x, axis=-1, eps=1e-05):
    m = x.mean(dim=axis, keepdim=True)
    v = x.var(dim=axis, keepdim=True, unbiased=False)
    return (x - m) / torch.sqrt(v + eps)

def _scatter_add(tgt, idx, src, axis=0):
    return tgt.clone().index_add_(axis, idx, src)

def _segment_sum(src, seg, n):
    out = torch.zeros((n,) + src.shape[1:], dtype=src.dtype)
    return out.index_add_(0, seg, src)

def _pad(x, pw):
    flat = tuple((v for pair in reversed(pw) for v in pair))
    return torch.nn.functional.pad(x, flat)
kernel_name = 'adaLN_cond__sliding_block__dense_activation_silu__prompt'

def setup_inputs():

    _w = lambda a: (lambda t: t.to(torch.bfloat16) if t.is_floating_point() else t)(torch.as_tensor(a))

    def _A_setup():
        B, S, D = (1, 2048, 512)
        return {'x': _w((lambda *s: torch.randn(*s, dtype=torch.bfloat16) * 0.05)(B, S, D)), 'wqkv': _w((lambda *s: torch.randn(*s, dtype=torch.bfloat16) * 0.05)(D, 3 * D)), 'wo': _w((lambda *s: torch.randn(*s, dtype=torch.bfloat16) * 0.05)(D, D))}
    _A_in = _A_setup()

    def _B_setup():
        B, S, D, F = (1, 2048, 512, 1376)
        return {'x': _w((lambda *s: torch.randn(*s, dtype=torch.bfloat16) * 0.05)(B, S, D)), 'w1': _w((lambda *s: torch.randn(*s, dtype=torch.bfloat16) * 3.2)(D, F) * D ** (-0.5)), 'w2': _w((lambda *s: torch.randn(*s, dtype=torch.bfloat16) * 0.4)(F, D) * F ** (-0.5))}
    _B_in = _B_setup()
    return {'A_x': _A_in['x'], 'A_wqkv': _A_in['wqkv'], 'A_wo': _A_in['wo'], 'B_x': _B_in['x'], 'B_w1': _B_in['w1'], 'B_w2': _B_in['w2'], 'c': _w((lambda *s: torch.randn(*s, dtype=torch.bfloat16) * 0.1)(1, 512) * 8.0), 'w_mod': _w((lambda *s: torch.randn(*s, dtype=torch.bfloat16) * 0.1)(512, 6 * 512) * 512 ** (-0.5) * 8.0)}

def reference(A_x, A_wqkv, A_wo, B_x, B_w1, B_w2, c, w_mod):

    def _A_ref(x, wqkv, wo):
        B, S, D = x.shape
        H = 32
        Dh = D // H
        W = 256
        qkv = (lambda x, *d: x.permute(*d))((x @ wqkv).reshape(B, S, 3, H, Dh), 2, 0, 3, 1, 4)
        q, k, v = (qkv[0], qkv[1], qkv[2])
        scores = torch.einsum('bhqd,bhkd->bhqk', q, k) * Dh ** (-0.5)
        idx = torch.arange(S)
        mask = (idx[:, None] - idx[None, :] >= 0) & (idx[:, None] - idx[None, :] < W)
        scores = torch.where(mask[None, None], scores, -1000000000.0)
        p = _softmax(scores, axis=-1)
        o = torch.einsum('bhqk,bhkd->bhqd', p, v)
        return (lambda x, *d: x.permute(*d))(o, 0, 2, 1, 3).reshape(B, S, D) @ wo

    def _B_ref(x, w1, w2):
        h = torch.einsum('bsd,df->bsf', x, w1)
        h = _silu(h)
        out = torch.einsum('bsf,fd->bsd', h, w2)
        return out
    x = A_x
    mod = (_silu(c) @ w_mod).reshape(c.shape[0], 6, 1, -1)
    sa, ca, ga, sb, cb, gb = (mod[:, 0].clone(), mod[:, 1].clone(), mod[:, 2].clone(), mod[:, 3].clone(), mod[:, 4].clone(), mod[:, 5].clone())
    h = _layernorm(x, axis=-1) * (1 + ca) + sa
    x = x + ga * _A_ref(h, A_wqkv, A_wo)
    h = _layernorm(x, axis=-1) * (1 + cb) + sb
    x = x + gb * _B_ref(h, B_w1, B_w2)
    return x
```

```python
import re

TRANS = ("v_exp_f32", "v_log_f32", "v_rcp_f32", "v_rsq_f32", "v_sqrt_f32", "v_sin_f32", "v_cos_f32")
RMW = ("v_fmac_f32", "v_dot2c_f32_bf16", "v_pk_fmac_f16")


def regs_of(op):
    op = op.strip()
    op = op.lstrip("-")
    if op.startswith("abs(") and op.endswith(")"):
        op = op[4:-1]
    if op.startswith("|") and op.endswith("|"):
        op = op[1:-1]
    m = re.fullmatch(r"([vas])\[(\d+):(\d+)\]", op)
    if m:
        return [f"{m.group(1)}{i}" for i in range(int(m.group(2)), int(m.group(3)) + 1)]
    m = re.fullmatch(r"([vas])(\d+)", op)
    if m:
        return [op]
    if op == "vcc":
        return ["vcc_lo", "vcc_hi"]
    if op == "exec":
        return ["exec_lo", "exec_hi"]
    if op in ("vcc_lo", "vcc_hi", "exec_lo", "exec_hi", "m0"):
        return [op]
    return []


class Ins:
    __slots__ = ("text", "mn", "ops", "mods", "dst", "src", "kind", "label", "target",
                 "srcA", "srcB", "srcC", "passes", "states", "data", "comment")

    def __init__(self, text, label=None):
        self.text = text
        self.label = label
        self.target = None
        self.dst, self.src = set(), set()
        self.srcA = self.srcB = self.srcC = self.data = frozenset()
        self.passes = 0
        self.states = 1
        self.kind = "label" if label else None
        self.mn = ""
        self.mods = ""
        if label:
            self.states = 0
            return
        parts = text.split(None, 1)
        mn = self.mn = parts[0]
        rest = parts[1] if len(parts) > 1 else ""
        ops = [o.strip() for o in rest.split(",")] if rest else []
        if ops:
            m = re.search(r"\s(op_sel|op_sel_hi|neg_lo|neg_hi|quad_perm):\[", " " + rest)
            if m:
                head = rest[: max(m.start(), 0)]
                self.mods = rest[max(m.start(), 0):]
                ops = [o.strip() for o in head.split(",")]
            last = ops[-1].split(None, 1)
            if len(last) > 1 and not ops[-1].startswith("hwreg"):
                ops[-1] = last[0]
                self.mods = last[1] + " " + self.mods
        self.ops = ops
        R = lambda i: regs_of(ops[i]) if i < len(ops) else []
        if mn.startswith("v_mfma"):
            self.kind = "mfma"
            self.dst = set(R(0))
            self.srcA, self.srcB, self.srcC = frozenset(R(1)), frozenset(R(2)), frozenset(R(3))
            self.src = set(self.srcA | self.srcB | self.srcC)
            self.passes = 8 if "32x32" in mn else 4
        elif mn.startswith("v_"):
            self.kind = "valu"
            base = re.sub(r"_(e32|e64|dpp|sdwa)$", "", mn)
            self.dst = set(R(0))
            first = 1
            if base in ("v_add_co_u32", "v_sub_co_u32", "v_addc_co_u32", "v_subb_co_u32"):
                self.dst |= set(R(1))
                first = 2
            for i in range(first, len(ops)):
                self.src |= set(R(i))
            if base.startswith("v_permlane") and "swap" in base:
                self.dst |= set(R(1))
                self.src |= set(R(0))
            if base in RMW or mn.endswith("_dpp") or base == "v_writelane_b32":
                self.src |= set(R(0))
        elif mn.startswith("ds_"):
            self.kind = "ds"
            if mn.startswith("ds_read") or mn.startswith("ds_bpermute") or mn.startswith("ds_swizzle"):
                self.dst = set(R(0))
                for i in range(1, len(ops)):
                    self.src |= set(R(i))
            else:
                for i in range(len(ops)):
                    self.src |= set(R(i))
        elif mn.startswith("buffer_") or mn.startswith("global_"):
            self.kind = "vmem"
            lds = re.search(r"\blds\b", self.mods) or "_lds_" in mn
            if "load" in mn and not lds:
                self.dst = set(R(0))
                for i in range(1, len(ops)):
                    self.src |= set(R(i))
            else:
                for i in range(len(ops)):
                    self.src |= set(R(i))
                if lds:
                    self.src.add("m0")
                elif mn.endswith("x4") or mn.endswith("x3"):
                    self.data = frozenset(R(0) if mn.startswith("buffer_") else R(1))
        elif mn.startswith("s_"):
            self.kind = "salu"
            if mn == "s_nop":
                self.states = int(ops[0], 0) + 1
            elif mn.startswith("s_cbranch") or mn == "s_branch":
                self.kind = "branch"
                self.target = ops[0]
            elif mn in ("s_waitcnt", "s_barrier", "s_endpgm", "s_sleep", "s_setprio"):
                pass
            elif mn.startswith("s_cmp") or mn.startswith("s_bitcmp"):
                for i in range(len(ops)):
                    self.src |= set(R(i))
            elif mn.startswith("s_load") or mn.startswith("s_memrealtime") or mn.startswith("s_memtime"):
                self.kind = "smem"
                self.dst = set(R(0))
                for i in range(1, len(ops)):
                    self.src |= set(R(i))
            else:
                self.dst = set(R(0))
                for i in range(1, len(ops)):
                    self.src |= set(R(i))
                if "saveexec" in mn:
                    self.dst |= {"exec_lo", "exec_hi"}
        else:
            raise ValueError("unknown instruction: " + text)

    @property
    def trans(self):
        return re.sub(r"_(e32|e64)$", "", self.mn) in TRANS

    @property
    def dpp(self):
        return self.mn.endswith("_dpp")


def is_s(r):
    return r[0] == "s" or r.startswith("vcc")


def need_states(p, c):
    n = 0
    if p.kind == "valu":
        vd = {r for r in p.dst if r[0] in "va" and not r.startswith("vcc")}
        sd = {r for r in p.dst if is_s(r)}
        if c.kind == "vmem" and sd & c.src:
            n = max(n, 5)
        if c.kind == "valu":
            if c.dpp and vd & c.src:
                n = max(n, 2)
            if sd & c.src:
                n = max(n, 4 if c.mn.startswith(("v_readlane", "v_writelane")) else 2)
            if c.mn.startswith(("v_readlane", "v_readfirstlane")) and vd & c.src:
                n = max(n, 1)
            if p.trans and vd & c.src:
                n = max(n, 1)
            if c.mn.startswith("v_permlane") and vd & c.src:
                n = max(n, 2)
        if p.mn.startswith("v_dot") and c.kind in ("valu", "mfma", "vmem", "ds") and vd & (c.src | c.dst):
            chain = c.mn == p.mn and not vd & set(regs_of(c.ops[1]) + regs_of(c.ops[2]))
            if not chain:
                n = max(n, 3)
        if c.kind == "mfma" and vd & c.src:
            n = max(n, 2)
        if c.kind in ("salu", "branch") and sd & c.src:
            n = max(n, 1)
    elif p.kind == "salu":
        if "m0" in p.dst and c.kind == "vmem" and "m0" in c.src:
            n = max(n, 1)
    elif p.kind == "vmem":
        if p.data and p.data & c.dst:
            n = max(n, 2)
    elif p.kind == "mfma":
        big = p.passes == 8
        if c.kind == "mfma":
            if p.dst & (c.srcA | c.srcB):
                n = max(n, 12 if big else 8)
            if p.dst & c.srcC and not (set(c.srcC) == p.dst and c.passes == p.passes):
                n = max(n, 10 if big else 6)
        elif c.kind in ("valu", "vmem", "ds"):
            if p.dst & (c.src | c.dst):
                n = max(n, 12 if big else 8)
            if p.srcC & c.dst:
                n = max(n, 7 if big else 3)
    return n


class Asm:
    def __init__(self):
        self.ins = []
        self.vmq = []
        self.lgq = []
        self.cond = 0
        self.nlab = 0

    def I(self, text, tag=None):
        for line in text.split("\n"):
            line = line.split(";")[0].strip()
            if not line:
                continue
            ins = Ins(line)
            self.ins.append(ins)
            if ins.kind == "vmem":
                self.vmq.append([tag, self.cond == 0])
            elif ins.kind == "ds":
                self.lgq.append([tag, self.cond == 0])
            elif ins.kind == "smem":
                self.lgq.append(["smem", True])
        return self

    __call__ = I

    def L(self, name):
        self.ins.append(Ins(name + ":", label=name))

    def newlabel(self, stem):
        self.nlab += 1
        return f"L_{stem}_{self.nlab}"

    def comment(self, text):
        ins = Ins("x:", label="__c")
        ins.text = "; " + text
        ins.label = None
        ins.kind = "comment"
        self.ins.append(ins)

    @staticmethod
    def _count(q, tags, cap):
        last = -1
        for i, (t, _) in enumerate(q):
            if t in tags:
                last = i
        if last < 0:
            return None
        n = sum(1 for t, sure in q[last + 1:] if sure)
        return last, min(n, cap)

    def wait(self, vm=None, lg=None):
        parts = []
        if vm is not None:
            if vm == 0:
                parts.append("vmcnt(0)")
                self.vmq = []
            else:
                got = self._count(self.vmq, vm if isinstance(vm, (tuple, list, set)) else (vm,), 63)
                if got:
                    parts.append(f"vmcnt({got[1]})")
                    self.vmq = self.vmq[got[0] + 1:]
        if lg is not None:
            smem = any(t == "smem" for t, _ in self.lgq)
            if lg == 0 or smem:
                parts.append("lgkmcnt(0)")
                self.lgq = []
            else:
                got = self._count(self.lgq, lg if isinstance(lg, (tuple, list, set)) else (lg,), 15)
                if got:
                    parts.append(f"lgkmcnt({got[1]})")
                    self.lgq = self.lgq[got[0] + 1:]
        if parts:
            self.ins.append(Ins("s_waitcnt " + " ".join(parts)))

    def snapshot(self):
        return [list(x) for x in self.vmq], [list(x) for x in self.lgq]

    def restore(self, snap):
        self.vmq, self.lgq = [list(x) for x in snap[0]], [list(x) for x in snap[1]]

    def pad(self):
        added = 0
        while True:
            ins = self.ins
            at = {x.label: i for i, x in enumerate(ins) if x.label}
            jumps = {}
            for i, x in enumerate(ins):
                if x.kind == "branch":
                    jumps.setdefault(at[x.target], []).append(i)
            fixes = {}
            for ci, c in enumerate(ins):
                if c.kind in ("label", "comment"):
                    continue
                worst = 0
                stack = [(ci, 0)]
                seen = {}
                while stack:
                    i, dist = stack.pop()
                    preds = []
                    if i > 0 and ins[i - 1].mn not in ("s_branch", "s_endpgm"):
                        preds.append(i - 1)
                    if ins[i].label and i in jumps:
                        preds += jumps[i]
                    for pi in preds:
                        p = ins[pi]
                        if p.kind not in ("label", "comment"):
                            worst = max(worst, need_states(p, c) - dist)
                        nd = dist + p.states
                        if nd < 13 and seen.get(pi, 99) > nd:
                            seen[pi] = nd
                            stack.append((pi, nd))
                if worst > 0:
                    fixes[ci] = worst
            if not fixes:
                return added
            out, last = [], -100
            for i, x in enumerate(ins):
                if i in fixes and i - last > 14:
                    out.append(Ins(f"s_nop {fixes[i] - 1}"))
                    added += fixes[i]
                    last = i
                out.append(x)
            self.ins = out

    def text(self):
        out = []
        for x in self.ins:
            out.append(x.text if x.kind == "label" else "    " + x.text)
        return "\n".join(out) + "\n"


def vr(base, n=1, kind="v"):
    return f"{kind}{base}" if n == 1 else f"{kind}[{base}:{base + n - 1}]"


def ar(base, n=1):
    return vr(base, n, "a")


def sr(base, n=1):
    return vr(base, n, "s")
```

```python
KB = 1024

WS_E = 0
F_PREP = 0x1000
F_LATE = 0x1800
F_H1 = 0x2000
F_KV = 0x3000
F_O = 0x4000
F_H2 = 0x6000
F_HID = 0x7000
ST1 = 0x8000
MODL = 0x10000
MODE = 0x20000
ST2 = 0x40000
STAMP = 0xC0000
H1 = 0x100000
H2X = 0x300000
OO = 0x500000
KV = 0x700000
HID = 0xB00000
WOF = 0x1100000
W1F = 0x1180000
W2F = 0x1300000
WS_SIZE = 0x1500000

L_WK = 0
L_WV = 32 * KB
L_WQ = 64 * KB
L_W1 = 0
L_HX = 0
R1 = 96 * KB
L_KV = R1
L_PREP = R1
L_OX = R1
L_QX = R1 + 48 * KB
L_GS = R1 + 52 * KB
L_ML = R1 + 53 * KB
LDS_SIZE = 160 * KB

TAG_STEP = 0x9E3779B0
```

```python
import os
import struct
import sys

sys.path.insert(0, os.path.dirname(os.path.abspath(__file__)))
from asmlib import Asm, vr, ar, sr
from layout import *

NAME = "adaLN_cond__sliding_block__dense_activation_silu__prompt"
KERNEL = NAME + "_kernel"


def fbits(x):
    return "0x%08x" % struct.unpack("<I", struct.pack("<f", x))[0]


LOG2E = 1.4426950408889634

SX, SWQ, SWM, SC, SOUT, SWS, SPR = 28, 32, 36, 40, 44, 48, 52
sG, sM, sW, sTAG, sFAST, sTO, sXCC, sP = 56, 57, 58, 59, 60, 61, 62, 63
sT = 64
sRT, sF0, sH2, sFT0 = 76, 77, 78, 79
STAMP0 = 80
sHI = 26
sGW = 27

vL16, vTR, vTR2, vQA, vQB, vL = 1, 2, 3, 4, 8, 12
vA0, vA1, vA2 = 13, 14, 15
vX1 = 16


class Gen:
    def __init__(self, stamps=False, opts=None):
        self.a = Asm()
        self.stamps = stamps
        self.nstamp = 0
        self.stamp_names = []
        self.o = dict(opts or {})

    def stamp(self, name):
        if not self.stamps:
            return
        a = self.a
        a("s_memrealtime s[100:101]")
        a.wait(lg=0)
        a(f"v_writelane_b32 v0, s100, {self.nstamp}")
        self.nstamp += 1
        self.stamp_names.append(name)
        assert self.nstamp <= 32

    def srd(self, base, ptr, size):
        a = self.a
        a(f"s_mov_b32 s{base}, s{ptr}")
        a(f"s_and_b32 s{base + 1}, s{ptr + 1}, 0xffff")
        a(f"s_mov_b32 s{base + 2}, {size}")
        a(f"s_mov_b32 s{base + 3}, 0x20000")

    def ld(self, dst, n, voff, srd, soff, imm=0, mods="", tag=None, kind="v"):
        suf = {1: "dword", 2: "dwordx2", 4: "dwordx4"}[n]
        off = f" offset:{imm}" if imm else ""
        so = f"s{soff}" if isinstance(soff, int) else soff
        self.a(f"buffer_load_{suf} {vr(dst, n, kind)}, v{voff}, {sr(srd, 4)}, {so} offen{off} {mods}".rstrip(), tag)

    def st(self, src, n, voff, srd, soff, imm=0, mods="", tag=None):
        suf = {1: "dword", 2: "dwordx2", 4: "dwordx4"}[n]
        off = f" offset:{imm}" if imm else ""
        so = f"s{soff}" if isinstance(soff, int) else soff
        self.a(f"buffer_store_{suf} {vr(src, n)}, v{voff}, {sr(srd, 4)}, {so} offen{off} {mods}".rstrip(), tag)

    def dma(self, voff, srd, soff, imm=0, mods="", tag=None):
        off = f" offset:{imm}" if imm else ""
        self.a(f"buffer_load_dwordx4 v{voff}, {sr(srd, 4)}, s{soff} offen{off} {mods} lds".replace("  ", " "), tag)

    def local_stores(self, emit):
        a = self.a
        slow, done = a.newlabel("slow"), a.newlabel("stored")
        a(f"s_cmp_lg_u32 s{sFAST}, 0")
        a(f"s_cbranch_scc0 {slow}")
        snap = a.snapshot()
        emit("")
        a(f"s_branch {done}")
        a.L(slow)
        a.restore(snap)
        emit("sc1")
        a.L(done)

    def poll(self, loads, check):
        a = self.a
        top, done = a.newlabel("poll"), a.newlabel("polled")
        a.L(top)
        loads()
        a.wait(vm=0)
        check()
        a(f"s_cbranch_vccz {done}")
        a(f"s_cmp_eq_u32 s{sTO}, 0")
        a(f"s_cbranch_scc1 {done}")
        a(f"s_sub_u32 s{sTO}, s{sTO}, 1")
        a(f"s_branch {top}")
        a.L(done)

    def poll_flags(self, voff, soff):
        self.poll(lambda: self.ld(vA2, 1, voff, SWS, soff, mods="sc1"),
                  lambda: self.a(f"v_cmp_ne_u32 vcc, s{sTAG}, v{vA2}"))

    def flag_store(self, soff, mods, lanes=1, voff=None):
        a = self.a
        a(f"s_mov_b64 exec, {(1 << lanes) - 1}")
        self.st(vA1, 1, vA0 if voff is None else voff, SWS, soff, mods=mods)
        a("s_mov_b64 exec, -1")

    def csel(self, dst, yes, no):
        self.a(f"s_mov_b32 s{dst}, {no}")
        self.a(f"s_cmov_b32 s{dst}, {yes}")

    def bf16r(self, dst, src):
        self.a(f"v_cvt_pk_bf16_f32 v{dst}, v{src}, v{src}")
        self.a(f"v_and_b32 v{dst}, s{sHI}, v{dst}")

    def unpack(self, dst, src, n):
        for i in range(n):
            self.a(f"v_lshlrev_b32 v{dst + 2 * i}, 16, v{src + i}")
            self.a(f"v_and_b32 v{dst + 2 * i + 1}, s{sHI}, v{src + i}")

    def silu_bf16(self, dst, src_u16, t):
        a = self.a
        a(f"v_lshlrev_b32 v{dst}, 16, v{src_u16}")
        a(f"v_mul_f32 v{t}, {fbits(-LOG2E)}, v{dst}")
        a(f"v_exp_f32 v{t}, v{t}")
        a(f"v_add_f32 v{t}, 1.0, v{t}")
        a(f"v_rcp_f32 v{t}, v{t}")
        a(f"v_mul_f32 v{dst}, v{dst}, v{t}")
        self.bf16r(dst, dst)

    def ror_add(self, regs, steps):
        for n in steps:
            for r in regs:
                self.a(f"v_add_f32_dpp v{r}, v{r}, v{r} row_ror:{n} row_mask:0xf bank_mask:0xf")

    def reduce8(self, p):
        a = self.a
        for i in range(4):
            a(f"v_permlane32_swap_b32 v{p + i}, v{p + 4 + i}")
        for i in range(4):
            a(f"v_add_f32 v{p + i}, v{p + i}, v{p + 4 + i}")
        for i in range(2):
            a(f"v_permlane16_swap_b32 v{p + i}, v{p + 2 + i}")
        for i in range(2):
            a(f"v_add_f32 v{p + i}, v{p + i}, v{p + 2 + i}")
        self.ror_add([p, p + 1], [8, 4, 2])

    def ln_finish(self, vsum, vsq, t):
        a = self.a
        a(f"v_mul_f32 v{vsum}, {fbits(1 / 512)}, v{vsum}")
        a(f"v_mul_f32 v{t}, v{vsum}, v{vsum}")
        a(f"s_mov_b32 s{sT + 11}, {fbits(1 / 512)}")
        a(f"v_fma_f32 v{vsq}, v{vsq}, s{sT + 11}, -v{t}")
        a(f"v_max_f32 v{vsq}, 0, v{vsq}")
        self.bf16r(vsum, vsum)
        self.bf16r(vsq, vsq)
        a(f"v_add_f32 v{vsq}, {fbits(1e-5)}, v{vsq}")
        self.bf16r(vsq, vsq)
        a(f"v_sqrt_f32 v{vsq}, v{vsq}")
        self.bf16r(vsq, vsq)
        a(f"v_rcp_f32 v{vsq}, v{vsq}")

    def startup(self):
        a = self.a
        a("s_cmp_ge_u32 s2, 256")
        a("s_cbranch_scc1 L_end")
        a("s_load_dwordx16 s[4:19], s[0:1], 0")
        a("s_load_dwordx4 s[20:23], s[0:1], 64")
        a("s_load_dwordx2 s[24:25], s[0:1], 80")
        if self.stamps:
            a("s_memrealtime s[100:101]")
            a("s_memtime s[98:99]")
        a(f"v_lshrrev_b32 v{vA0}, 6, v0")
        a(f"v_and_b32 v{vL}, 63, v0")
        a(f"v_readfirstlane_b32 s{sW}, v{vA0}")
        a("s_and_b32 s3, s2, 7")
        a(f"s_lshr_b32 s{sT}, s2, 3")
        a(f"s_lshr_b32 s{sT + 1}, s{sT}, 4")
        a(f"s_lshl_b32 s{sG}, s3, 1")
        a(f"s_add_u32 s{sG}, s{sG}, s{sT + 1}")
        a(f"s_and_b32 s{sM}, s{sT}, 15")
        a(f"s_lshl_b32 s{sP}, s{sG}, 4")
        a(f"s_add_u32 s{sP}, s{sP}, s{sM}")
        a(f"s_lshl_b32 s{sGW}, s{sG}, 2")
        a(f"s_add_u32 s{sGW}, s{sGW}, s{sW}")
        a(f"s_getreg_b32 s{sXCC}, hwreg(HW_REG_XCC_ID, 0, 4)")
        a(f"s_mov_b32 s{sHI}, 0xffff0000")
        a(f"s_mov_b32 s{sTO}, 0x80000")
        a(f"s_lshr_b32 s{sRT}, s{sM}, 2")
        a(f"s_and_b32 s{sF0}, s{sM}, 3")
        a(f"s_lshl_b32 s{sF0}, s{sF0}, 7")
        a(f"s_lshl_b32 s3, s{sW}, 5")
        a(f"s_add_u32 s{sF0}, s{sF0}, s3")
        a(f"v_lshlrev_b32 v{vL16}, 4, v{vL}")
        vWM, vCO, vXS, vWR, vPT, vCT = 84, 85, 86, 87, 88, 90
        a(f"v_lshrrev_b32 v92, 1, v{vL}")
        a(f"v_mul_u32_u24 v{vWM}, 6144, v92")
        a(f"v_and_b32 v93, 1, v{vL}")
        a(f"v_lshl_add_u32 v{vWM}, v93, 4, v{vWM}")
        a(f"v_lshlrev_b32 v{vCO}, 1, v92")
        a(f"v_and_b32 v92, 31, v{vL}")
        a(f"v_lshlrev_b32 v{vXS}, 10, v92")
        a(f"v_lshrrev_b32 v93, 5, v{vL}")
        a(f"v_lshl_add_u32 v{vXS}, v93, 4, v{vXS}")
        a(f"v_lshrrev_b32 v92, 2, v{vL}")
        a(f"v_and_b32 v93, 3, v{vL}")
        a(f"v_lshlrev_b32 v94, 4, v93")
        a(f"v_mul_u32_u24 v{vWR}, 3072, v92")
        a(f"v_add_u32 v{vWR}, v{vWR}, v94")
        a(f"s_lshl_b32 s3, s{sT}, 2")
        a(f"s_add_u32 s3, s3, s{sW}")
        a(f"s_lshl_b32 s3, s3, 9")
        a(f"v_lshl_add_u32 v{vCT}, v93, 7, s3")
        a(f"v_min_u32 v{vCT}, (L_code_end-{KERNEL}-4), v{vCT}")
        a(f"s_getpc_b64 s[{sT + 2}:{sT + 3}]")
        a.L("L_pc")
        a(f"s_sub_u32 s{sT + 2}, s{sT + 2}, (L_pc-{KERNEL})")
        a(f"s_subb_u32 s{sT + 3}, s{sT + 3}, 0")
        a(f"v_mov_b32 v{vCT + 1}, s{sT + 3}")
        a(f"v_add_co_u32 v{vCT}, vcc, s{sT + 2}, v{vCT}")
        a(f"v_addc_co_u32 v{vCT + 1}, vcc, 0, v{vCT + 1}, vcc")
        a(f"v_and_b32 v96, 15, v{vL}")
        a(f"v_lshrrev_b32 v97, 2, v96")
        a(f"v_lshlrev_b32 v97, 6, v97")
        a(f"v_lshl_add_u32 v97, v93, 3, v97")
        a(f"v_bfe_u32 v96, v{vL}, 4, 1")
        a(f"v_lshl_add_u32 v97, v96, 5, v97")
        a(f"v_lshrrev_b32 v96, 5, v{vL}")
        a(f"v_lshl_add_u32 v{vTR}, v96, 9, v97")
        a(f"v_add_u32 v{vTR2}, 0x10000, v{vTR}")
        a(f"v_lshl_add_u32 v95, v96, 8, v97")
        a(f"s_lshl_b32 s3, s{sW}, 12")
        a(f"s_add_u32 s3, s3, {L_PREP}")
        a(f"v_add_u32 v95, s3, v95")
        a.wait(lg=0)
        if self.stamps:
            a(f"v_writelane_b32 v0, s100, 0")
            self.nstamp = 1
            self.stamp_names.append("entry")
        a(f"s_load_dword s{sTAG}, s[24:25], 0")
        self.srd(SWM, 18, 512 * 6144)
        self.srd(SC, 16, 1024)
        self.srd(SX, 4, 2048 * 1024)
        a(f"s_mul_i32 s{sT}, s{sG}, {32 * 6144}")
        a(f"s_and_b32 s3, s{sM}, 1")
        a(f"s_lshl_b32 s3, s3, 10")
        a(f"s_add_u32 s{sT}, s{sT}, s3")
        a(f"s_lshr_b32 s3, s{sM}, 1")
        a(f"s_lshl_b32 s3, s3, 7")
        a(f"s_add_u32 s{sT}, s{sT}, s3")
        a(f"s_lshl_b32 s3, s{sW}, 5")
        a(f"s_add_u32 s{sT}, s{sT}, s3")
        self.ld(32, 4, vWM, SWM, sT, tag="we", mods="nt")
        a(f"s_lshl_b32 s{sT + 1}, s{sG}, 6")
        a(f"buffer_load_ushort v36, v{vCO}, {sr(SC, 4)}, s{sT + 1} offen", "we")
        a(f"s_lshl_b32 s{sT + 2}, s{sP}, 3")
        a(f"s_lshl_b32 s3, s{sW}, 1")
        a(f"s_add_u32 s{sT + 2}, s{sT + 2}, s3")
        a(f"s_lshl_b32 s{sT + 3}, s{sT + 2}, 10")
        self.ld(40, 4, vL16, SX, sT + 3, tag="rows")
        self.ld(44, 4, vL16, SX, sT + 3, imm=1024, tag="rows")
        a(f"s_lshl_b32 s{sT + 3}, s{sGW}, 15")
        a(f"s_lshl_b32 s3, s{sM}, 6")
        a(f"s_add_u32 s{sT + 3}, s{sT + 3}, s3")
        self.ld(48, 4, vXS, SX, sT + 3, tag="xs")
        self.ld(52, 4, vXS, SX, sT + 3, imm=32, tag="xs")
        self.srd(SWS, 24, WS_SIZE)
        self.srd(SWQ, 6, 512 * 3072)
        self.srd(SOUT, 20, 2048 * 1024)
        a(f"s_lshl_b32 s{sT + 4}, s{sGW}, 15")
        a(f"s_lshl_b32 s3, s{sM}, 11")
        a(f"s_add_u32 s{sT + 4}, s{sT + 4}, s3")
        a(f"s_add_u32 s{sT + 4}, s{sT + 4}, {H1}")
        a(f"s_lshl_b32 s{sT + 5}, s{sGW}, 6")
        a(f"s_add_u32 s{sT + 5}, s{sT + 5}, {F_H1}")
        a(f"v_lshl_add_u32 v{vPT}, v{vL}, 7, s{sT + 4}")
        a(f"v_mov_b32 v92, s{sT + 5}")
        a(f"v_cmp_gt_u32 vcc, 16, v{vL}")
        a(f"v_cndmask_b32 v{vPT}, v92, v{vPT}, vcc")
        self.ld(37, 1, vPT, SWS, "0", mods="sc1")
        a(f"global_load_dword v38, v[{vCT}:{vCT + 1}], off")
        sU, sRS, sS0, sS1, sS2, sD0, sD2 = sT + 6, sT + 7, sT + 8, sT + 9, sT + 10, 22, 23
        a(f"s_lshl_b32 s{sU}, s{sP}, 2")
        a(f"s_add_u32 s{sU}, s{sU}, s{sW}")
        a(f"s_mov_b32 s{SPR + 3}, 0x20000")
        a(f"s_cmp_ge_u32 s{sU}, 472")
        a("s_cbranch_scc1 L_prep_w1")
        a(f"s_cmp_ge_u32 s{sU}, 128")
        a(f"s_cselect_b32 s{SPR}, s14, s8")
        a(f"s_cselect_b32 s{SPR + 1}, s15, s9")
        self.csel(SPR + 2, 1376 * 1024, 512 * 1024)
        self.csel(sD2, 86 * 1024, 32 * 1024)
        self.csel(sD0, W2F, WOF)
        a(f"s_cselect_b32 s3, 128, 0")
        a(f"s_and_b32 s{SPR + 1}, s{SPR + 1}, 0xffff")
        a(f"s_sub_u32 s{sU}, s{sU}, s3")
        a(f"s_movk_i32 s{sRS}, 1024")
        a(f"s_movk_i32 s{sS1}, 16384")
        a(f"s_movk_i32 s{sS2}, 64")
        a(f"s_lshr_b32 s3, s{sU}, 3")
        a(f"s_and_b32 s{sU}, s{sU}, 7")
        a(f"s_lshl_b32 s{sS0}, s3, 15")
        a(f"s_lshl_b32 s3, s3, 11")
        a(f"s_add_u32 s{sD0}, s{sD0}, s3")
        a(f"s_lshl_b32 s3, s{sU}, 7")
        a(f"s_add_u32 s{sS0}, s{sS0}, s3")
        a(f"s_mul_i32 s3, s{sU}, s{sD2}")
        a(f"s_lshl_b32 s3, s3, 1")
        a(f"s_add_u32 s{sD0}, s{sD0}, s3")
        a("s_branch L_prep_go")
        a.L("L_prep_w1")
        a(f"s_mov_b32 s{SPR}, s12")
        a(f"s_and_b32 s{SPR + 1}, s13, 0xffff")
        a(f"s_mov_b32 s{SPR + 2}, {512 * 2752}")
        a(f"s_movk_i32 s{sRS}, 2752")
        a(f"s_mov_b32 s{sS1}, {16 * 2752}")
        a(f"s_mov_b32 s{sS2}, {32 * 2752}")
        a(f"s_movk_i32 s{sD2}, 2048")
        a(f"s_sub_u32 s{sU}, s{sU}, 472")
        a(f"s_and_b32 s3, s{sU}, 7")
        a(f"s_lshr_b32 s{sU}, s{sU}, 3")
        a(f"s_mul_i32 s{sS0}, s3, {64 * 2752}")
        a(f"s_lshl_b32 s3, s3, 12")
        a(f"s_add_u32 s{sD0}, s3, {W1F}")
        a(f"s_lshl_b32 s3, s{sU}, 6")
        a(f"s_add_u32 s{sS0}, s{sS0}, s3")
        a(f"s_lshl_b32 s3, s{sU}, 15")
        a(f"s_add_u32 s{sD0}, s{sD0}, s3")
        a(f"s_cmp_ge_u32 s{sU}, 43")
        a(f"s_cselect_b32 s{sS0}, 0x7f000000, s{sS0}")
        a(f"s_cselect_b32 s{sD0}, 0x7f000000, s{sD0}")
        a.L("L_prep_go")
        a(f"v_lshrrev_b32 v92, 2, v{vL}")
        a(f"v_mul_lo_u32 v92, v92, s{sRS}")
        a(f"v_add_u32 v92, v92, v94")
        a(f"s_lshl_b32 s3, s{sW}, 12")
        a(f"s_add_u32 m0, s3, {L_PREP}")
        self.dma(92, SPR, sS0, tag="prep", mods="nt")
        a(f"s_add_u32 s{sU}, s{sS0}, s{sS1}")
        a("s_add_u32 m0, m0, 1024")
        self.dma(92, SPR, sU, tag="prep", mods="nt")
        a(f"s_add_u32 s{sS0}, s{sS0}, s{sS2}")
        a("s_add_u32 m0, m0, 1024")
        self.dma(92, SPR, sS0, tag="prep", mods="nt")
        a(f"s_add_u32 s{sU}, s{sS0}, s{sS1}")
        a("s_add_u32 m0, m0, 1024")
        self.dma(92, SPR, sU, tag="prep", mods="nt")
        a(f"s_and_b32 s{sT + 6}, s{sP}, 7")
        a(f"s_mul_i32 s{sT + 7}, s{sT + 6}, {64 * 6144}")
        a(f"s_lshr_b32 s3, s{sP}, 3")
        a(f"s_lshl_b32 s3, s3, 6")
        a(f"s_lshl_b32 s{sT + 8}, s{sW}, 4")
        a(f"s_add_u32 s{sT + 8}, s{sT + 8}, s3")
        a(f"s_lshl_b32 s3, s{sT + 8}, 1")
        a(f"s_add_u32 s{sT + 7}, s{sT + 7}, s3")
        a(f"s_add_u32 s{sT + 7}, s{sT + 7}, 2048")
        self.ld(56, 4, vWM, SWM, sT + 7, tag="wl", mods="nt")
        a(f"s_add_u32 s{sT + 7}, s{sT + 7}, {32 * 6144}")
        self.ld(60, 4, vWM, SWM, sT + 7, tag="wl", mods="nt")
        a(f"s_lshl_b32 s3, s{sT + 6}, 7")
        a(f"buffer_load_ushort v64, v{vCO}, {sr(SC, 4)}, s3 offen", "wl")
        a(f"buffer_load_ushort v65, v{vCO}, {sr(SC, 4)}, s3 offen offset:64", "wl")
        a(f"s_lshl_b32 s{sT + 6}, s{sT + 6}, 11")
        a(f"s_add_u32 s{sT + 8}, s{sT + 8}, s{sT + 6}")
        a(f"s_lshl_b32 s{sT + 8}, s{sT + 8}, 2")
        a(f"s_add_u32 s{sT + 8}, s{sT + 8}, {MODL}")
        self.vWR = vWR
        a(f"s_mul_i32 s{sT + 9}, s{sW}, {16 * 3072}")
        a(f"s_lshl_b32 s3, s{sM}, 6")
        a(f"s_add_u32 s{sT + 9}, s{sT + 9}, s3")
        a(f"s_lshl_b32 s{sT + 10}, s{sW}, 10")
        for u in range(8):
            for base, col in ((L_WK, 1024), (L_WV, 2048)):
                a(f"s_add_u32 s3, s{sT + 9}, {u * 64 * 3072 + col}")
                a(f"s_add_u32 m0, s{sT + 10}, {base + u * 4096}")
                self.dma(vWR, SWQ, 3, tag="wkv")
        self.stamp("issued")
        a.wait(lg=0)
        a(f"s_add_u32 s{sTAG}, s{sTAG}, {TAG_STEP}")
        a(f"s_and_b32 s{sTAG}, s{sTAG}, 0xfffffff0")
        vC16 = 93
        a(f"v_and_b32 v96, 1, v{vL}")
        a(f"v_lshlrev_b32 v{vC16}, 3, v96")
        a(f"v_lshrrev_b32 v96, 5, v{vL}")
        a(f"v_lshl_add_u32 v{vC16}, v96, 2, v{vC16}")
        a(f"v_bfe_u32 v96, v{vL}, 4, 1")
        a(f"v_lshl_add_u32 v{vC16}, v96, 1, v{vC16}")
        a.wait(vm="we")
        self.stamp("we")
        self.silu_bf16(96, 36, 97)
        self.unpack(100, 32, 4)
        for i in range(8):
            a(f"v_mul_f32 v{100 + i}, v96, v{100 + i}")
        self.reduce8(100)
        a(f"v_mov_b32 v102, v101")
        a(f"v_mov_b32 v101, s{sTAG}")
        a(f"v_mov_b32 v103, s{sTAG}")
        a(f"v_lshlrev_b32 v96, 3, v{vC16}")
        a(f"s_and_b32 s3, s{sM}, 1")
        a(f"s_lshl_b32 s{sT}, s3, 5")
        a(f"s_lshr_b32 s3, s{sM}, 1")
        a(f"s_lshl_b32 s3, s3, 2")
        a(f"s_add_u32 s{sT}, s{sT}, s3")
        a(f"s_add_u32 s{sT}, s{sT}, s{sW}")
        a(f"s_lshl_b32 s{sT}, s{sT}, 4")
        a(f"s_add_u32 s{sT}, s{sT}, s{sG}")
        a(f"s_lshl_b32 s{sT}, s{sT}, 7")
        a(f"s_add_u32 s{sT}, s{sT}, {MODE}")
        a(f"s_mov_b32 s{sT + 6}, 0x00030003")
        a(f"s_mov_b32 s{sT + 7}, 0x00030003")
        a(f"s_mov_b64 exec, s[{sT + 6}:{sT + 7}]")
        self.st(100, 4, 96, SWS, sT, mods="sc1")
        a("s_mov_b64 exec, -1")
        a.wait(vm="rows")
        a(f"s_mov_b32 s3, 0x3f803f80")
        for r, base in ((0, 40), (1, 44)):
            a(f"v_dot2_f32_bf16 v{104 + 2 * r}, v{base}, s3, 0")
            a(f"v_dot2_f32_bf16 v{105 + 2 * r}, v{base}, v{base}, 0")
        for i in range(1, 4):
            for r, base in ((0, 40), (1, 44)):
                a(f"v_dot2_f32_bf16 v{104 + 2 * r}, v{base + i}, s3, v{104 + 2 * r}")
                a(f"v_dot2_f32_bf16 v{105 + 2 * r}, v{base + i}, v{base + i}, v{105 + 2 * r}")
        a("v_permlane32_swap_b32 v104, v106")
        a("v_permlane32_swap_b32 v105, v107")
        a("v_add_f32 v104, v104, v106")
        a("v_add_f32 v105, v105, v107")
        a("v_permlane16_swap_b32 v104, v105")
        a("v_add_f32 v104, v104, v105")
        self.ror_add([104], [8, 4, 2, 1])
        a("v_mov_b32 v106, v104")
        a("v_permlane16_swap_b32 v104, v106")
        self.ln_finish(104, 106, 105)
        a(f"s_or_b32 s3, s{sTAG}, s{sXCC}")
        a(f"v_mov_b32 v105, s3")
        a(f"v_mov_b32 v107, s{sTAG}")
        a(f"v_lshrrev_b32 v96, 1, v{vL}")
        a(f"s_lshl_b32 s{sT + 2}, s{sT + 2}, 4")
        a(f"s_add_u32 s{sT + 2}, s{sT + 2}, {ST1}")
        a(f"s_mov_b32 s{sT + 6}, 1")
        a(f"s_mov_b32 s{sT + 7}, 1")
        a(f"s_mov_b64 exec, s[{sT + 6}:{sT + 7}]")
        self.st(104, 4, 96, SWS, sT + 2, mods="sc1")
        a("s_mov_b64 exec, -1")
        self.stamp("pub1")
        a.wait(vm="prep")
        for i in range(4):
            a(f"ds_read_b64_tr_b16 v[{68 + 4 * i}:{69 + 4 * i}], v95 offset:{i * 1024}", i)
            a(f"ds_read_b64_tr_b16 v[{70 + 4 * i}:{71 + 4 * i}], v95 offset:{i * 1024 + 512}", i)
        a(f"s_add_u32 s3, s{sD0}, s{sD2}")
        for i in range(4):
            a.wait(lg=i)
            self.st(68 + 4 * i, 4, vL16, SWS, sD0 if i < 2 else 3, imm=(i & 1) * 1024, mods="sc1")
        a.wait(vm="wl")
        self.silu_bf16(96, 64, 98)
        self.silu_bf16(97, 65, 98)
        self.unpack(100, 56, 4)
        self.unpack(108, 60, 4)
        for i in range(8):
            a(f"v_mul_f32 v{100 + i}, v96, v{100 + i}")
        for i in range(8):
            a(f"v_fmac_f32 v{100 + i}, v97, v{108 + i}")
        self.reduce8(100)
        a(f"v_lshlrev_b32 v96, 2, v{vC16}")
        a(f"s_mov_b32 s{sT + 6}, 0x00030003")
        a(f"s_mov_b32 s{sT + 7}, 0x00030003")
        a(f"s_mov_b64 exec, s[{sT + 6}:{sT + 7}]")
        self.st(100, 2, 96, SWS, sT + 8, mods="sc1")
        a("s_mov_b64 exec, -1")
        a.wait(vm="xs")
        self.unpack(112, 48, 8)
        a(f"s_and_b32 s3, s{sW}, 1")
        a(f"s_lshl_b32 s{sT}, s3, 5")
        a(f"s_lshl_b32 s3, s{sM}, 1")
        a(f"s_add_u32 s{sT}, s{sT}, s3")
        a(f"s_lshr_b32 s3, s{sW}, 1")
        a(f"s_add_u32 s{sT}, s{sT}, s3")
        a(f"s_lshl_b32 s{sT}, s{sT}, 11")
        a(f"s_add_u32 s{sT}, s{sT}, {MODE}")
        a(f"v_lshlrev_b32 v84, 5, v{vL}")
        a(f"v_and_b32 v85, 31, v{vL}")
        a(f"v_lshlrev_b32 v85, 4, v85")
        a(f"s_lshl_b32 s{sT + 1}, s{sGW}, 9")
        a(f"s_add_u32 s{sT + 1}, s{sT + 1}, {ST1}")
        a(f"v_and_b32 v86, 15, v{vL}")
        a(f"v_lshlrev_b32 v86, 7, v86")
        a(f"s_lshl_b32 s{sT + 2}, s{sG}, 11")
        a(f"s_add_u32 s{sT + 2}, s{sT + 2}, {ST1}")
        self.stamp("prepoll")

        def loads():
            self.ld(96, 4, 84, SWS, sT, mods="sc1")
            self.ld(100, 4, 84, SWS, sT, imm=16, mods="sc1")
            self.ld(104, 4, 85, SWS, sT + 1, mods="sc1")
            self.ld(108, 1, 86, SWS, sT + 2, imm=4, mods="sc1")

        def check():
            a(f"v_and_b32 v109, -16, v108")
            a(f"v_and_b32 v105, -16, v105")
            a(f"v_xor_b32 v109, s{sTAG}, v109")
            for r in (97, 99, 101, 103, 105, 107):
                a(f"v_bitop3_b32 v109, v109, v{r}, s{sTAG} bitop3:0xf6")
            a("v_cmp_ne_u32 vcc, 0, v109")
        self.poll(loads, check)
        self.stamp("modok")
        a(f"v_and_b32 v108, 15, v108")
        a(f"v_cmp_ne_u32 vcc, s{sXCC}, v108")
        a("s_cmp_eq_u64 vcc, 0")
        a(f"s_cselect_b32 s{sFAST}, 1, 0")
        if self.o.get("force_slow"):
            a(f"s_mov_b32 s{sFAST}, 0")
        a(f"s_cmp_lg_u32 s{sFAST}, 0")
        self.csel(sH2, H1, H2X)
        a("v_permlane32_swap_b32 v96, v100")
        a("v_permlane32_swap_b32 v98, v102")
        a("v_add_f32 v96, v96, v100")
        a("v_add_f32 v98, v98, v102")
        a("v_permlane16_swap_b32 v96, v98")
        a("v_add_f32 v96, v96, v98")
        self.ror_add([96], [8, 4])
        self.bf16r(96, 96)
        a(f"s_and_b32 s3, s{sW}, 1")
        a(f"v_cvt_f32_u32 v97, s3")
        a(f"v_add_f32 v96, v96, v97")
        self.bf16r(96, 96)
        a(f"v_and_b32 v97, 3, v{vL}")
        a(f"v_lshlrev_b32 v97, 2, v97")
        a(f"v_lshrrev_b32 v98, 5, v{vL}")
        a(f"v_lshl_add_u32 v97, v98, 1, v97")
        a(f"v_bfe_u32 v99, v{vL}, 4, 1")
        a(f"v_add_u32 v97, v97, v99")
        a(f"s_lshl_b32 s3, s3, 5")
        a(f"s_lshr_b32 s{sT}, s{sW}, 1")
        a(f"s_lshl_b32 s{sT}, s{sT}, 4")
        a(f"s_add_u32 s3, s3, s{sT}")
        a(f"v_add_u32 v97, s3, v97")
        a(f"v_lshlrev_b32 v97, 2, v97")
        a(f"v_add_u32 v97, {L_GS}, v97")
        a(f"ds_write_b32 v97, v96")
        a(f"v_lshlrev_b32 v98, 5, v98")
        a(f"v_add_u32 v98, {L_GS}, v98")
        a("v_mul_f32 v104, v104, v106")
        for i in range(16):
            a(f"v_fma_f32 v{112 + i}, v{112 + i}, v106, -v104")
        a.wait(lg=0)
        a("s_barrier")
        for s in range(2):
            for q in range(2):
                a(f"ds_read_b128 v[{32 + 8 * s + 4 * q}:{35 + 8 * s + 4 * q}], v98 offset:{128 + s * 64 + q * 16}", ("g", s))
                a(f"ds_read_b128 v[{48 + 8 * s + 4 * q}:{51 + 8 * s + 4 * q}], v98 offset:{s * 64 + q * 16}", ("g", s))
        a(f"v_mov_b32 v{vA1}, s{sTAG}")
        a(f"v_mov_b32 v{vA0}, 0")
        a(f"s_lshl_b32 s3, s{sP}, 2")
        a(f"s_add_u32 s3, s3, {F_PREP}")
        a(f"s_cmp_eq_u32 s{sW}, 0")
        a(f"s_cselect_b32 s3, s3, 0x7f000000")
        self.flag_store(3, "sc1")
        for s in range(2):
            a.wait(lg=[("g", s)])
            for i in range(8):
                a(f"v_fma_f32 v{112 + 8 * s + i}, v{112 + 8 * s + i}, v{32 + 8 * s + i}, v{48 + 8 * s + i}")
            for i in range(4):
                a(f"v_cvt_pk_bf16_f32 v{64 + 4 * s + i}, v{112 + 8 * s + 2 * i}, v{113 + 8 * s + 2 * i}")
        a(f"s_lshl_b32 s3, s{sM}, 2")
        a(f"s_add_u32 s3, s3, s{sT + 5}")

        def emit(mods):
            self.st(64, 4, vL16, SWS, sT + 4, mods=mods)
            self.st(68, 4, vL16, SWS, sT + 4, imm=1024, mods=mods)
            a.wait(vm=0)
            self.flag_store(3, mods)
        self.local_stores(emit)
        self.stamp("h1pub")

    def g1(self):
        a = self.a
        X, WR, ACK, ACV, ACQ = 128, 32, 96, 112, 80
        a(f"v_and_b32 v{vA0}, 15, v{vL}")
        a(f"v_lshlrev_b32 v{vA0}, 2, v{vA0}")
        self.poll_flags(vA0, sT + 5)
        self.stamp("h1ok")
        a(f"s_lshl_b32 s{sT}, s{sGW}, 15")
        a(f"s_add_u32 s{sT}, s{sT}, {H1}")
        for s in range(32):
            if s and s % 4 == 0:
                a(f"s_add_u32 s{sT}, s{sT}, 4096")
            self.ld(X + 4 * s, 4, vL16, SWS, sT, imm=(s % 4) * 1024, mods="sc1", tag=("x", s))
        for u in range(8):
            a(f"s_add_u32 s3, s{sT + 9}, {u * 64 * 3072}")
            a(f"s_add_u32 m0, s{sT + 10}, {L_WQ + u * 4096}")
            self.dma(self.vWR, SWQ, 3, tag="wq")
        a(f"s_lshl_b32 s{sT}, s{sGW}, 15")
        a(f"s_lshl_b32 s3, s{sM}, 11")
        a(f"s_add_u32 s{sT}, s{sT}, s3")
        a(f"s_add_u32 s{sT}, s{sT}, {OO}")
        a(f"s_lshl_b32 s{sT + 1}, s{sG}, 2")
        a(f"s_add_u32 s{sT + 1}, s{sT + 1}, 3")
        a(f"s_sub_u32 s{sT + 1}, s{sT + 1}, s{sW}")
        a(f"s_lshl_b32 s{sT + 1}, s{sT + 1}, 15")
        a(f"s_add_u32 s{sT + 1}, s{sT + 1}, s3")
        a(f"s_add_u32 s{sT + 1}, s{sT + 1}, {OO + 1024 - 8 * 128}")
        a(f"s_lshl_b32 s{sT + 2}, s{sG}, 2")
        a(f"s_add_u32 s{sT + 2}, s{sT + 2}, s{sRT}")
        a(f"s_lshl_b32 s{sT + 2}, s{sT + 2}, 13")
        a(f"s_lshr_b32 s3, s{sF0}, 6")
        a(f"s_lshl_b32 s3, s3, 10")
        a(f"s_add_u32 s{sT + 2}, s{sT + 2}, s3")
        a(f"s_add_u32 s{sT + 2}, s{sT + 2}, {ST2 - 16 * 128}")
        a(f"s_lshl_b32 s{sT + 3}, s{sG}, 9")
        a(f"s_add_u32 s{sT + 3}, s{sT + 3}, {F_O - 24 * 128}")
        a(f"s_lshl_b32 s{sT + 4}, s{sG}, 8")
        a(f"s_add_u32 s{sT + 5}, s{sT + 4}, {F_HID - 30 * 128}")
        a(f"s_add_u32 s{sT + 4}, s{sT + 4}, {F_H2 - 28 * 128}")
        a(f"v_mov_b32 v{vA1}, s{sT + 5}")
        for lim, sreg in ((30, sT + 4), (28, sT + 3), (24, sT + 2), (16, sT + 1), (8, sT)):
            a(f"v_mov_b32 v{vA2}, s{sreg}")
            a(f"v_and_b32 v{vA0}, 31, v{vL}")
            a(f"v_cmp_gt_u32 vcc, {lim}, v{vA0}")
            a(f"v_cndmask_b32 v{vA1}, v{vA1}, v{vA2}, vcc")
        a(f"v_lshl_add_u32 v{vA1}, v{vA0}, 7, v{vA1}")
        self.ld(vA2, 1, vA1, SWS, "0", mods="sc1")

        def rd(tile_base, s, dst, tag):
            v, off = (vTR, tile_base) if tile_base < 65536 else (vTR2, tile_base - 65536)
            a(f"ds_read_b64_tr_b16 v[{dst}:{dst + 1}], v{v} offset:{off + s * 1024}", tag)
            a(f"ds_read_b64_tr_b16 v[{dst + 2}:{dst + 3}], v{v} offset:{off + s * 1024 + 256}", tag)

        wk = lambda s: WR + 8 * (s % 4)
        wv = lambda s: WR + 8 * (s % 4) + 4
        for s in range(2):
            rd(L_WK, s, wk(s), ("k", s))
            rd(L_WV, s, wv(s), ("v", s))
        for s in range(32):
            a.wait(vm=[("x", s)], lg=[("k", s)])
            c = "0" if s == 0 else vr(ACK, 16)
            a(f"v_mfma_f32_32x32x16_bf16 {vr(ACK, 16)}, {vr(wk(s), 4)}, {vr(X + 4 * s, 4)}, {c}")
            if s + 2 < 32:
                rd(L_WK, s + 2, wk(s + 2), ("k", s + 2))
            a.wait(lg=[("v", s)])
            c = "0" if s == 0 else vr(ACV, 16)
            a(f"v_mfma_f32_32x32x16_bf16 {vr(ACV, 16)}, {vr(X + 4 * s, 4)}, {vr(wv(s), 4)}, {c}")
            if s + 2 < 32:
                rd(L_WV, s + 2, wv(s + 2), ("v", s + 2))
        self.stamp("pass1")
        a(f"s_lshl_b32 s{sT}, s{sP}, 2")
        a(f"s_add_u32 s{sT}, s{sT}, s{sW}")
        a(f"s_lshl_b32 s{sT + 1}, s{sT}, 2")
        a(f"s_add_u32 s{sT + 1}, s{sT + 1}, {F_KV}")
        a(f"s_lshl_b32 s{sT}, s{sT}, 12")
        a(f"s_add_u32 s{sT}, s{sT}, {KV}")
        a(f"s_lshl_b32 s3, s{sW}, 12")
        a(f"s_add_u32 s3, s3, {L_KV + 8 * 4096}")
        a(f"v_add_u32 v{vA0}, s3, v{vL16}")
        a.wait(vm="wq")
        for f in range(4):
            src = ACK + 8 * f
            for i in range(4):
                a(f"v_cvt_pk_bf16_f32 v{64 + 4 * f + i}, v{src + 2 * i}, v{src + 2 * i + 1}")
            self.st(64 + 4 * f, 4, vL16, SWS, sT, imm=f * 1024, mods="sc1", tag="kv")
        for f in range(4):
            a(f"ds_write_b128 v{vA0}, {vr(64 + 4 * f, 4)} offset:{f * 1024}")
        a.wait(lg=0)
        a("s_barrier")
        fill = self.attn_setup()
        wq = lambda s: WR + 4 * (s % 4)
        for s in range(3):
            rd(L_WQ, s, wq(s), ("q", s))
        for s in range(32):
            a.wait(lg=[("q", s)])
            c = "0" if s == 0 else vr(ACQ, 16)
            a(f"v_mfma_f32_32x32x16_bf16 {vr(ACQ, 16)}, {vr(wq(s), 4)}, {vr(X + 4 * s, 4)}, {c}")
            if s + 3 < 32:
                rd(L_WQ, s + 3, wq(s + 3), ("q", s + 3))
            for _ in range(3):
                if fill:
                    a(fill.pop(0))
            if s == 14:
                a(f"v_mov_b32 v{vA1}, s{sTAG}")
                a(f"v_mov_b32 v{vA0}, 0")
                a.wait(vm="kv")
                self.flag_store(sT + 1, "sc1")
        while fill:
            a(fill.pop(0))
        a(f"s_sub_u32 s3, 3, s{sW}")
        a(f"s_lshl_b32 s3, s3, 10")
        a(f"s_add_u32 s3, s3, {L_QX}")
        a(f"v_add_u32 v{vA0}, s3, v{vL16}")
        a(f"s_lshl_b32 s3, s{sW}, 10")
        a(f"s_add_u32 s3, s3, {L_QX}")
        a(f"v_add_u32 v{vA1}, s3, v{vL16}")
        sc = fbits(0.25 * LOG2E)
        for i in list(range(8, 16)) + list(range(8)):
            a(f"v_mul_f32 v{ACQ + i}, {sc}, v{ACQ + i}")
        for i in range(4):
            a(f"v_cvt_pk_bf16_f32 v{vQB + i}, v{ACQ + 8 + 2 * i}, v{ACQ + 9 + 2 * i}")
        a(f"ds_write_b128 v{vA0}, {vr(vQB, 4)}")
        for i in range(4):
            a(f"v_cvt_pk_bf16_f32 v{vQA + i}, v{ACQ + 2 * i}, v{ACQ + 1 + 2 * i}")
        a.wait(lg=0)
        a("s_barrier")
        a(f"ds_read_b128 {vr(vQB, 4)}, v{vA1}", "qb")
        self.stamp("pass2")

    MD, MF = 48, 16
    S0, OA, OB = 64, 96, 112
    KR, VR, PR = 128, 136, 160
    vKVB, vONE, vVA, vVB = 176, 177, 180, 192
    XR = 204
    MLR = 212

    def attn_setup(self):
        out = []
        t0, t1 = 112, 113
        out.append(f"v_and_b32 v{t0}, 31, v{vL}")
        out.append(f"v_lshrrev_b32 v{t1}, 5, v{vL}")
        out.append(f"v_lshlrev_b32 v{t1}, 2, v{t1}")
        out.append(f"v_sub_u32 v{t0}, v{t0}, v{t1}")
        out.append(f"v_mov_b32 v{t1}, {fbits(-1e30)}")
        for r in range(16):
            key = 8 * (r >> 2) + (r & 3)
            out.append(f"v_cmp_le_i32 vcc, {key}, v{t0}")
            out.append(f"v_cndmask_b32 v{self.MD + r}, v{t1}, 0, vcc"
                       .replace("v_cndmask_b32", "v_cndmask_b32_e64"))
            out.append(f"v_sub_f32 v{self.MF + r}, v{t1}, v{self.MD + r}")
        return out

    def attn_addresses(self):
        a = self.a
        a(f"v_add_u32 v{self.vKVB}, {L_KV}, v{vL16}")
        a(f"v_mov_b32 v{self.vONE}, {L_GS - 2048}")
        a(f"v_and_b32 v{vA0}, 16, v{vL}")
        a(f"v_cmp_eq_u32 vcc, 0, v{vA0}")
        for b in range(12):
            a(f"v_add_u32 v{vA0}, {b * 4096}, v{self.vKVB}")
            a(f"v_cndmask_b32 v{self.vVA + b}, v{self.vONE}, v{vA0}, vcc")
            a(f"v_cndmask_b32 v{self.vVB + b}, v{vA0}, v{self.vONE}, vcc")

    def attn_items(self, items, first, bulk=None):
        a = self.a
        first = set(first)
        bulk = bulk or []
        n = len(items)
        S = lambda i: self.S0 + 16 * (i % 2)
        P = lambda i: self.PR + 8 * (i % 2)
        K = lambda i: self.KR + 4 * (i % 2)
        V = lambda i: self.VR + 8 * (i % 3)

        def ldk(i):
            u, b, _ = items[i]
            a(f"ds_read_b128 {vr(K(i), 4)}, v{self.vKVB} offset:{b * 4096 + u * 1024}", ("K", i))

        def ldv(i):
            u, b, _ = items[i]
            va = (self.vVB if u else self.vVA) + b
            a(f"ds_read_b128 {vr(V(i), 4)}, v{va} offset:2048", ("V", i))
            a(f"ds_read_b128 {vr(V(i) + 4, 4)}, v{va} offset:3072", ("V", i))

        def qk(i):
            u, _, mask = items[i]
            c = {None: "0", "d": vr(self.MD, 16), "f": vr(self.MF, 16)}[mask]
            a.wait(lg=[("K", i)])
            a(f"v_mfma_f32_32x32x16_bf16 {vr(S(i), 16)}, {vr(K(i), 4)}, {vr(vQB if u else vQA, 4)}, {c}")

        def pv(i, half):
            u = items[i][0]
            o = vr(self.OB if u else self.OA, 16)
            c = o
            if half == 0:
                a.wait(lg=[("V", i)])
                if u in first:
                    first.discard(u)
                    c = "0"
            a(f"v_mfma_f32_32x32x16_bf16 {o}, {vr(V(i) + 4 * half, 4)}, {vr(P(i) + 4 * half, 4)}, {c}")

        ex = lambda i, r: a(f"v_exp_f32 v{S(i) + r}, v{S(i) + r}")
        cv = lambda i, k: a(f"v_cvt_pk_bf16_f32 v{P(i) + k}, v{S(i) + 2 * k}, v{S(i) + 2 * k + 1}")

        ldk(0)
        if n > 1:
            ldk(1)
        ldv(0)
        a.wait(lg="qb")
        qk(0)
        for i in range(n):
            if i + 1 < n:
                qk(i + 1)
            ex(i, 0)
            if i + 2 < n:
                ldk(i + 2)
            ex(i, 1)
            if i + 1 < n:
                ldv(i + 1)
            ex(i, 2)
            ex(i, 3)
            if i:
                pv(i - 1, 0)
            for r in range(4, 16):
                ex(i, r)
                per = -(-len(bulk) // (n - i)) if bulk else 0
                if r in (5, 7, 9, 11, 13, 14, 15) and bulk and (5, 7, 9, 11, 13, 14, 15).index(r) < per:
                    bulk.pop(0)()
                if r % 2 == 1:
                    cv(i, (r - 5) // 2)
                if r == 8 and i:
                    pv(i - 1, 1)
            cv(i, 6)
            cv(i, 7)
        pv(n - 1, 0)
        pv(n - 1, 1)
        while bulk:
            bulk.pop(0)()

    def fallback(self, u):
        a = self.a
        S, P, K, V = self.S0, self.PR, self.KR, self.VR
        O = self.OB if u else self.OA
        Q = vQB if u else vQA
        vM, vKA, vVAd = self.S0 + 16, self.S0 + 17, self.S0 + 18
        sB, sE, sQB = sT, sT + 1, sT + 2
        if u:
            a(f"s_sub_u32 s{sQB}, 3, s{sW}")
        else:
            a(f"s_mov_b32 s{sQB}, s{sW}")
        a(f"s_add_u32 s{sE}, s{sQB}, 8")
        a(f"v_mov_b32 v{vM}, {fbits(-3e38)}")
        for r in range(16):
            a(f"v_mov_b32 v{O + r}, 0")
        a(f"v_and_b32 v{vA0}, 16, v{vL}")
        a(f"v_cmp_{'ne' if u else 'eq'}_u32 s[{sT + 4}:{sT + 5}], 0, v{vA0}")
        for ps in range(2):
            top, nd, nf = a.newlabel("fb"), a.newlabel("fbd"), a.newlabel("fbf")
            a(f"s_lshl_b32 s3, s{sG}, 2")
            a(f"s_sub_i32 s3, 8, s3")
            a(f"s_max_i32 s{sB}, s3, s{sQB}")
            a.L(top)
            a(f"s_lshl_b32 s3, s{sB}, 12")
            a(f"v_add_u32 v{vKA}, s3, v{self.vKVB}")
            a(f"v_cndmask_b32_e64 v{vVAd}, v{self.vONE}, v{vKA}, s[{sT + 4}:{sT + 5}]")
            a(f"ds_read_b128 {vr(K, 4)}, v{vKA} offset:{u * 1024}")
            a(f"ds_read_b128 {vr(V, 4)}, v{vVAd} offset:2048")
            a(f"ds_read_b128 {vr(V + 4, 4)}, v{vVAd} offset:3072")
            a.wait(lg=0)
            a(f"v_mfma_f32_32x32x16_bf16 {vr(S, 16)}, {vr(K, 4)}, {vr(Q, 4)}, 0")
            a("s_nop 11")
            a(f"s_cmp_eq_u32 s{sB}, s{sE}")
            a(f"s_cbranch_scc0 {nd}")
            for r in range(16):
                a(f"v_add_f32 v{S + r}, v{S + r}, v{self.MD + r}")
            a.L(nd)
            a(f"s_cmp_eq_u32 s{sB}, s{sQB}")
            a(f"s_cbranch_scc0 {nf}")
            for r in range(16):
                a(f"v_add_f32 v{S + r}, v{S + r}, v{self.MF + r}")
            a.L(nf)
            if ps == 0:
                for r in range(0, 16, 2):
                    a(f"v_max3_f32 v{vM}, v{S + r}, v{S + r + 1}, v{vM}")
            else:
                for r in range(16):
                    a(f"v_sub_f32 v{S + r}, v{S + r}, v{vM}")
                for r in range(16):
                    a(f"v_exp_f32 v{S + r}, v{S + r}")
                for k in range(8):
                    a(f"v_cvt_pk_bf16_f32 v{P + k}, v{S + 2 * k}, v{S + 2 * k + 1}")
                for half in range(2):
                    a(f"v_mfma_f32_32x32x16_bf16 {vr(O, 16)}, {vr(V + 4 * half, 4)}, {vr(P + 4 * half, 4)}, {vr(O, 16)}")
            a(f"s_add_u32 s{sB}, s{sB}, 1")
            a(f"s_cmp_le_u32 s{sB}, s{sE}")
            a(f"s_cbranch_scc1 {top}")
            if ps == 0:
                a(f"v_mov_b32 v{vKA}, v{vM}")
                a(f"v_permlane32_swap_b32 v{vM}, v{vKA}")
                a(f"v_max_f32 v{vM}, v{vM}, v{vKA}")
        a("s_nop 11")

    def wfrag_loads(self, sreg, dst, n, kind, tag, first=0):
        out = []
        for i in range(n):
            def f(i=i):
                if i and i % 4 == 0:
                    self.a(f"s_add_u32 s{sreg}, s{sreg}, 4096")
                self.ld(dst + 4 * i, 4, vL16, SWS, sreg, imm=(i % 4) * 1024, mods="sc1", tag=(tag, first + i), kind=kind)
            out.append(f)
        return out

    def attention(self):
        a = self.a
        self.attn_addresses()
        a(f"v_mov_b32 v{self.PR}, 0x3f803f80")
        for i in range(1, 4):
            a(f"v_mov_b32 v{self.PR + i}, v{self.PR}")
        a(f"ds_write_b128 v{self.vONE}, {vr(self.PR, 4)} offset:2048")
        a(f"ds_write_b128 v{self.vONE}, {vr(self.PR, 4)} offset:3072")
        a.wait(lg=0)
        for w in range(1, 4):
            a(f"s_cmp_eq_u32 s{sW}, {w}")
            a(f"s_cbranch_scc1 L_own{w}")
        snap = a.snapshot()
        for w in range(4):
            a.restore(snap)
            if w:
                a.L(f"L_own{w}")
            ua = [(0, 8 + i, "d" if i == w else None) for i in range(w + 1)]
            ub = [(1, 8 + i, "d" if i == 3 - w else None) for i in range(4 - w)]
            self.attn_items(ua + ub, first=(0, 1))
            if w < 3:
                a("s_branch L_own_done")
        a.L("L_own_done")
        self.stamp("own")
        a(f"s_lshl_b32 s{sT}, s{sP}, 2")
        a(f"s_add_u32 s{sT}, s{sT}, s{sW}")
        a(f"s_sub_u32 s{sT + 1}, s{sT}, 64")
        a(f"s_sub_u32 s{sT + 2}, s{sT}, 128")
        a(f"s_cmp_ge_u32 s{sG}, 1")
        a(f"s_cselect_b32 s{sT + 3}, s{sT + 1}, s{sT}")
        a(f"s_cmp_ge_u32 s{sG}, 2")
        a(f"s_cselect_b32 s{sT + 4}, s{sT + 2}, s{sT}")
        a(f"v_mov_b32 v{vA0}, s{sT + 3}")
        a(f"v_mov_b32 v{vA1}, s{sT + 4}")
        a(f"v_and_b32 v{vA2}, 1, v{vL}")
        a(f"v_cmp_eq_u32 vcc, 0, v{vA2}")
        a(f"v_cndmask_b32 v{vA0}, v{vA0}, v{vA1}, vcc")
        a(f"v_lshlrev_b32 v{vA0}, 2, v{vA0}")
        a(f"s_mov_b32 s{sT + 5}, {F_KV}")
        a(f"s_mov_b32 s{sT + 6}, {F_PREP}")
        FL = self.MLR

        def loads():
            self.ld(vA2, 1, vA0, SWS, sT + 5, mods="sc1")
            self.ld(FL, 4, vL16, SWS, sT + 6, mods="sc1")

        def check():
            a(f"v_xor_b32 v{vA2}, s{sTAG}, v{vA2}")
            for r in range(4):
                a(f"v_bitop3_b32 v{vA2}, v{vA2}, v{FL + r}, s{sTAG} bitop3:0xf6")
            a(f"v_cmp_ne_u32 vcc, 0, v{vA2}")
        self.poll(loads, check)
        self.stamp("kvok")
        for k, (sreg, lim) in enumerate(((sT + 2, 2), (sT + 1, 1))):
            a(f"s_lshl_b32 s{sreg}, s{sreg}, 12")
            a(f"s_add_u32 s{sreg}, s{sreg}, {KV}")
            a(f"s_cmp_ge_u32 s{sG}, {lim}")
            a(f"s_cselect_b32 s{sreg}, s{sreg}, 0x7f000000")
            a(f"s_lshl_b32 s3, s{sW}, 12")
            a(f"s_add_u32 m0, s3, {L_KV + k * 4 * 4096}")
            for f in range(4):
                self.dma(vL16, SWS, sreg, imm=f * 1024, mods="sc1", tag="rkv")
        a(f"s_lshl_b32 s3, s{sP}, 2")
        a(f"s_add_u32 s3, s3, s{sW}")
        a(f"s_cmp_eq_u32 s3, 0")
        a(f"s_cselect_b32 s3, {WS_E}, 0x7f000000")
        a(f"v_mov_b32 v{vA1}, s{sTAG}")
        a(f"v_mov_b32 v{vA0}, 0")
        self.flag_store(3, "sc1")
        a(f"v_and_b32 v{vA0}, 31, v{vL}")
        a(f"v_lshlrev_b32 v{vA0}, 10, v{vA0}")
        a(f"v_lshrrev_b32 v{vA1}, 5, v{vL}")
        a(f"v_lshl_add_u32 v{vA0}, v{vA1}, 4, v{vA0}")
        a(f"s_lshl_b32 s3, s{sG}, 2")
        a(f"s_add_u32 s3, s3, s{sRT}")
        a(f"s_lshl_b32 s3, s3, 15")
        a(f"s_lshl_b32 s{sT}, s{sF0}, 1")
        a(f"s_add_u32 s3, s3, s{sT}")
        self.ld(self.XR, 4, vA0, SX, 3, tag="xr")
        self.ld(self.XR + 4, 4, vA0, SX, 3, imm=32, tag="xr")
        a(f"v_and_b32 v{vA0}, 7, v{vL}")
        a(f"v_lshlrev_b32 v{vA0}, 4, v{vA0}")
        a(f"v_bfe_u32 v{vA2}, v{vL}, 3, 2")
        a(f"v_lshl_add_u32 v{vA0}, v{vA2}, 11, v{vA0}")
        a(f"v_lshl_add_u32 v{vA0}, v{vA1}, 15, v{vA0}")
        a(f"s_lshl_b32 s3, s{sF0}, 2")
        a(f"s_add_u32 s3, s3, {MODL}")
        for k in range(4):
            self.ld(self.MLR + 4 * k, 4, vA0, SWS, 3, mods="sc1", tag="ml")
            if k < 3:
                a(f"s_add_u32 s3, s3, 8192")
        a(f"s_lshl_b32 s{sT + 6}, s{sF0}, 10")
        a(f"s_add_u32 s{sT + 6}, s{sT + 6}, {WOF}")
        a(f"s_mul_i32 s{sFT0}, s{sM}, 3")
        a(f"s_lshl_b32 s3, s{sM}, 1")
        a(f"s_add_u32 s3, s3, 11")
        a(f"s_min_u32 s{sFT0}, s{sFT0}, s3")
        a(f"s_lshl_b32 s{sT + 7}, s{sFT0}, 15")
        a(f"s_lshl_b32 s{sT + 8}, s{sW}, 12")
        a(f"s_add_u32 s{sT + 7}, s{sT + 7}, s{sT + 8}")
        a(f"s_add_u32 s{sT + 7}, s{sT + 7}, {W1F}")
        a(f"s_add_u32 s{sT + 9}, s{sT + 7}, 65536")
        a(f"s_cmp_ge_u32 s{sM}, 11")
        a(f"s_cselect_b32 s{sT + 9}, 0x7f000000, s{sT + 9}")

        def mkbulk():
            out = self.wfrag_loads(sT + 6, 0, 32, "a", "wo")
            for u in range(6):
                for f in range(4):
                    def g(u=u, f=f):
                        if f == 0:
                            if u < 4:
                                a(f"s_add_u32 s3, s{sT + 7}, {u * 16384}")
                            else:
                                a(f"s_add_u32 s3, s{sT + 9}, {(u - 4) * 16384}")
                            a(f"s_add_u32 m0, s{sT + 8}, {L_W1 + u * 16384}")
                        self.dma(vL16, SWS, 3, imm=f * 1024, mods="sc1", tag="w1")
                    out.append(g)
            return out
        a.wait(vm="rkv")
        a("s_barrier")
        self.stamp("kvin")
        a(f"s_cmp_eq_u32 s{sG}, 0")
        a("s_cbranch_scc1 L_rem_g0")
        a(f"s_cmp_eq_u32 s{sG}, 1")
        a("s_cbranch_scc1 L_rem_g1")
        for w in range(1, 4):
            a(f"s_cmp_eq_u32 s{sW}, {w}")
            a(f"s_cbranch_scc1 L_rem{w}")
        snap = a.snapshot()
        for w in range(4):
            a.restore(snap)
            if w:
                a.L(f"L_rem{w}")
            ua = [(0, b, "f" if b == w else None) for b in range(w, 8)]
            ub = [(1, b, "f" if b == 3 - w else None) for b in range(3 - w, 8)]
            self.attn_items(ua + ub, first=(), bulk=mkbulk())
            a("s_branch L_rem_done")
        a.L("L_rem_g1")
        a.restore(snap)
        self.attn_items([(u, b, None) for u in range(2) for b in range(4, 8)], first=(), bulk=mkbulk())
        a("s_branch L_rem_done")
        a.L("L_rem_g0")
        a.restore(snap)
        for f in mkbulk():
            f()
        a.L("L_rem_done")
        self.stamp("attn")
        lo, hi = fbits(2.0 ** -60), fbits(2.0 ** 60)
        for u, (O, lreg) in enumerate(((self.OA, self.OA + 8), (self.OB, self.OB))):
            ok = a.newlabel("ok")
            a(f"v_cmp_lt_f32 vcc, {lo}, v{lreg}")
            a(f"s_mov_b64 s[{sT}:{sT + 1}], vcc")
            a(f"v_cmp_gt_f32 vcc, {hi}, v{lreg}")
            a(f"s_and_b64 s[{sT}:{sT + 1}], s[{sT}:{sT + 1}], vcc")
            if self.o.get("force_fallback"):
                a(f"s_mov_b64 s[{sT}:{sT + 1}], 0")
            a(f"s_cmp_eq_u64 s[{sT}:{sT + 1}], -1")
            a(f"s_cbranch_scc1 {ok}")
            self.fallback(u)
            a.L(ok)
        a(f"v_rcp_f32 v{self.OA + 9}, v{self.OA + 8}")
        a(f"v_rcp_f32 v{self.OB + 1}, v{self.OB}")
        for i in range(8):
            a(f"v_mul_f32 v{self.OA + i}, v{self.OA + i}, v{self.OA + 9}")
        for i in range(4):
            a(f"v_cvt_pk_bf16_f32 v{64 + i}, v{self.OA + 2 * i}, v{self.OA + 2 * i + 1}")
        for i in range(8):
            a(f"v_mul_f32 v{self.OB + 8 + i}, v{self.OB + 8 + i}, v{self.OB + 1}")
        for i in range(4):
            a(f"v_cvt_pk_bf16_f32 v{68 + i}, v{self.OB + 8 + 2 * i}, v{self.OB + 9 + 2 * i}")
        a(f"s_lshl_b32 s{sT}, s{sGW}, 5")
        a(f"s_lshl_b32 s3, s{sM}, 1")
        a(f"s_add_u32 s{sT}, s{sT}, s3")
        a(f"s_lshl_b32 s{sT + 1}, s{sG}, 2")
        a(f"s_add_u32 s{sT + 1}, s{sT + 1}, 3")
        a(f"s_sub_u32 s{sT + 1}, s{sT + 1}, s{sW}")
        a(f"s_lshl_b32 s{sT + 1}, s{sT + 1}, 5")
        a(f"s_add_u32 s{sT + 1}, s{sT + 1}, s3")
        a(f"s_add_u32 s{sT + 1}, s{sT + 1}, 1")
        a(f"s_sub_u32 s3, s{sT + 1}, s{sT}")
        a(f"v_mul_lo_u32 v{vA0}, s3, v{vL}")
        a(f"v_add_lshl_u32 v{vA0}, v{vA0}, s{sT}, 2")
        a(f"v_mov_b32 v{vA1}, s{sTAG}")
        a(f"s_lshl_b32 s{sT}, s{sT}, 10")
        a(f"s_add_u32 s{sT}, s{sT}, {OO}")
        a(f"s_lshl_b32 s{sT + 1}, s{sT + 1}, 10")
        a(f"s_add_u32 s{sT + 1}, s{sT + 1}, {OO}")
        a(f"s_mov_b32 s{sT + 2}, {F_O}")

        def emit(mods):
            self.st(64, 4, vL16, SWS, sT, mods=mods)
            self.st(68, 4, vL16, SWS, sT + 1, mods=mods)
            a.wait(vm=0)
            self.flag_store(sT + 2, mods, lanes=2)
        self.local_stores(emit)
        a("s_barrier")
        self.stamp("opub")

    def g2(self):
        a = self.a
        ACC, XR_ = 96, 128
        M = self.MLR
        for k in range(1, 4):
            for i in range(4):
                a(f"v_add_f32 v{M + i}, v{M + i}, v{M + 4 * k + i}")
        a(f"v_permlane32_swap_b32 v{M}, v{M + 1}")
        a(f"v_permlane32_swap_b32 v{M + 2}, v{M + 3}")
        a(f"v_add_f32 v{M}, v{M}, v{M + 1}")
        a(f"v_add_f32 v{M + 2}, v{M + 2}, v{M + 3}")
        a(f"v_bfe_u32 v{vA0}, v{vL}, 3, 2")
        a(f"v_cmp_eq_u32 vcc, 2, v{vA0}")
        a(f"v_cndmask_b32_e64 v{M + 1}, 0, 1.0, vcc")
        for r in (M, M + 2):
            self.bf16r(r, r)
            a(f"v_add_f32 v{r}, v{r}, v{M + 1}")
            self.bf16r(r, r)
        a(f"v_and_b32 v{vA0}, 31, v{vL}")
        a(f"v_lshlrev_b32 v{vA0}, 4, v{vA0}")
        a(f"v_lshrrev_b32 v{vA1}, 5, v{vL}")
        a(f"v_lshl_add_u32 v{vA0}, v{vA1}, 2, v{vA0}")
        a(f"s_lshl_b32 s3, s{sW}, 9")
        a(f"s_add_u32 s3, s3, {L_ML}")
        a(f"v_add_u32 v{vA0}, s3, v{vA0}")
        a(f"ds_write_b32 v{vA0}, v{M}")
        a(f"ds_write_b32 v{vA0}, v{M + 2} offset:8")
        vML = 3
        a(f"v_lshlrev_b32 v{vML}, 4, v{vA1}")
        a(f"v_add_u32 v{vML}, s3, v{vML}")
        self.vML = vML
        a(f"v_permlane32_swap_b32 v{self.XR}, v{self.XR + 2}")
        a(f"v_permlane32_swap_b32 v{self.XR + 1}, v{self.XR + 3}")
        a(f"v_permlane32_swap_b32 v{self.XR + 4}, v{self.XR + 6}")
        a(f"v_permlane32_swap_b32 v{self.XR + 5}, v{self.XR + 7}")
        self.unpack(vX1, self.XR, 8)
        a(f"s_lshl_b32 s{sT}, s{sG}, 2")
        a(f"s_add_u32 s{sT}, s{sT}, s{sRT}")
        a(f"s_lshl_b32 s{sT}, s{sT}, 5")
        a(f"s_lshl_b32 s3, s{sW}, 3")
        a(f"s_add_u32 s{sT}, s{sT}, s3")
        a(f"s_lshl_b32 s{sT + 1}, s{sT}, 2")
        a(f"s_add_u32 s{sT + 1}, s{sT + 1}, {F_O}")
        a(f"s_lshl_b32 s{sT}, s{sT}, 10")
        a(f"s_add_u32 s{sT}, s{sT}, {OO}")
        a(f"v_and_b32 v{vA0}, 7, v{vL}")
        a(f"v_lshlrev_b32 v{vA0}, 2, v{vA0}")
        self.poll_flags(vA0, sT + 1)
        self.stamp("ook")
        a(f"s_lshl_b32 s3, s{sW}, 13")
        for k in range(2):
            a(f"s_add_u32 m0, s3, {L_OX + k * 4096}")
            for f in range(4):
                self.dma(vL16, SWS, sT, imm=f * 1024, mods="sc1", tag="ox")
            if k == 0:
                a(f"s_add_u32 s{sT}, s{sT}, 4096")
        a(f"s_mul_i32 s{sT + 2}, s{sGW}, {86 * 1024}")
        a(f"s_lshl_b32 s3, s{sFT0}, 11")
        a(f"s_add_u32 s{sT + 2}, s{sT + 2}, s3")
        a(f"s_add_u32 s{sT + 2}, s{sT + 2}, {HID}")
        a(f"s_cmp_ge_u32 s{sM}, 11")
        a(f"s_cselect_b32 s3, 31, 47")
        a(f"v_min_u32 v{vA0}, s3, v{vL}")
        a(f"v_lshlrev_b32 v{vA0}, 7, v{vA0}")
        self.ld(vA2, 1, vA0, SWS, sT + 2, mods="sc1")
        a(f"s_lshr_b32 s3, s{sF0}, 5")
        a(f"s_mul_i32 s{sT + 6}, s3, {86 * 1024}")
        a(f"s_add_u32 s{sT + 6}, s{sT + 6}, {W2F}")
        w2a = self.wfrag_loads(sT + 6, 128, 32, "a", "w2")
        a(f"v_add_u32 v{vA0}, {L_OX}, v{vL16}")
        GA = 32
        for i in range(4):
            a(f"ds_read_b128 {vr(GA + 4 * i, 4)}, v{vML} offset:{32 * i}")
        a.wait(vm="ox")
        a("s_barrier")
        xr = lambda s: XR_ + 4 * (s % 8)
        rd = lambda s: a(f"ds_read_b128 {vr(xr(s), 4)}, v{vA0} offset:{s * 1024}", ("o", s))
        for s in range(6):
            rd(s)
        for s in range(32):
            a.wait(lg=[("o", s)])
            c = "0" if s == 0 else vr(ACC, 16)
            a(f"v_mfma_f32_32x32x16_bf16 {vr(ACC, 16)}, {ar(4 * s, 4)}, {vr(xr(s), 4)}, {c}")
            if s + 6 < 32:
                rd(s + 6)
            if self.o.get("w2_in_g2", 1):
                w2a.pop(0)()
        self.stamp("g2")
        for i in range(4):
            a(f"ds_read_b128 {vr(48 + 4 * i, 4)}, v{vML} offset:{128 + 32 * i}")
            a(f"ds_read_b128 {vr(64 + 4 * i, 4)}, v{vML} offset:{256 + 32 * i}")
        a(f"s_lshl_b32 s{sT}, s{sG}, 2")
        a(f"s_add_u32 s{sT}, s{sT}, s{sRT}")
        a(f"s_lshl_b32 s{sT + 1}, s{sT}, 13")
        a(f"s_add_u32 s{sT + 1}, s{sT + 1}, {ST2}")
        a(f"s_lshr_b32 s3, s{sF0}, 6")
        a(f"s_lshl_b32 s3, s3, 10")
        a(f"s_add_u32 s{sT + 3}, s{sT + 1}, s3")
        a(f"s_and_b32 s3, s{sW}, 1")
        a(f"s_lshl_b32 s3, s3, 3")
        a(f"s_add_u32 s{sT + 3}, s{sT + 3}, s3")
        for r in range(16):
            a(f"v_fmac_f32 v{vX1 + r}, v{GA + r}, v{ACC + r}")
        for k in range(8):
            a(f"v_cvt_pk_bf16_f32 v{80 + k}, v{vX1 + 2 * k}, v{vX1 + 2 * k + 1}")
        a(f"s_mov_b32 s3, 0x3f803f80")
        a(f"v_dot2_f32_bf16 v88, v80, s3, 0")
        a(f"v_dot2_f32_bf16 v90, v80, v80, 0")
        for k in range(1, 8):
            a(f"v_dot2_f32_bf16 v88, v{80 + k}, s3, v88")
            a(f"v_dot2_f32_bf16 v90, v{80 + k}, v{80 + k}, v90")
        a(f"v_mov_b32 v89, s{sTAG}")
        a("v_permlane32_swap_b32 v88, v90")
        a("v_add_f32 v88, v88, v90")
        self.local_stores(lambda mods: self.st(88, 2, vL16, SWS, sT + 3, mods=mods))
        self.unpack(vX1, 80, 8)
        a(f"s_add_u32 s{sT + 4}, s{sT + 1}, 4096")

        def loads():
            for k in range(8):
                self.ld(128 + 4 * k, 4, vL16, SWS, sT + 1 if k < 4 else sT + 4, imm=(k % 4) * 1024, mods="sc1")

        def check():
            a(f"v_xor_b32 v{vA2}, s{sTAG}, v129")
            for r in range(131, 160, 2):
                a(f"v_bitop3_b32 v{vA2}, v{vA2}, v{r}, s{sTAG} bitop3:0xf6")
            a(f"v_cmp_ne_u32 vcc, 0, v{vA2}")
        self.poll(loads, check)
        self.stamp("st2ok")
        for step in (16, 8, 4, 2):
            for r in range(128, 128 + step, 2):
                a(f"v_add_f32 v{r}, v{r}, v{r + step}")
        a("v_mov_b32 v130, v128")
        a("v_permlane32_swap_b32 v128, v130")
        self.ln_finish(128, 130, 129)
        a("v_mul_f32 v128, v128, v130")
        a.wait(lg=0)
        for r in range(16):
            a(f"v_fma_f32 v{80 + r}, v{vX1 + r}, v130, -v128")
        for r in range(16):
            a(f"v_fma_f32 v{80 + r}, v{80 + r}, v{64 + r}, v{48 + r}")
        for k in range(8):
            a(f"v_cvt_pk_bf16_f32 v{64 + k}, v{80 + 2 * k}, v{81 + 2 * k}")
        a(f"s_lshl_b32 s{sT}, s{sT}, 15")
        a(f"s_lshl_b32 s3, s{sF0}, 6")
        a(f"s_add_u32 s{sT}, s{sT}, s3")
        a(f"s_add_u32 s{sT}, s{sT}, s{sH2}")
        a(f"s_lshl_b32 s{sT + 1}, s{sP}, 2")
        a(f"s_add_u32 s{sT + 1}, s{sT + 1}, s{sW}")
        a(f"s_lshl_b32 s{sT + 1}, s{sT + 1}, 2")
        a(f"s_add_u32 s{sT + 1}, s{sT + 1}, {F_H2}")
        a(f"v_mov_b32 v{vA1}, s{sTAG}")
        a(f"v_mov_b32 v{vA0}, 0")

        def emit(mods):
            self.st(64, 4, vL16, SWS, sT, mods=mods)
            self.st(68, 4, vL16, SWS, sT, imm=1024, mods=mods)
            a.wait(vm=0)
            self.flag_store(sT + 1, mods)
        self.local_stores(emit)
        self.w2a = w2a
        self.stamp("h2pub")

    def silu_ops(self, acc, dst, t):
        out = []
        c = fbits(-LOG2E)
        for k in range(0, 16, 4):
            rr = range(k, k + 4)
            out += [f"v_mul_f32 v{t + r % 4}, {c}, v{acc + r}" for r in rr]
            out += [f"v_exp_f32 v{t + r % 4}, v{t + r % 4}" for r in rr]
            out += [f"v_add_f32 v{t + r % 4}, 1.0, v{t + r % 4}" for r in rr]
            out += [f"v_rcp_f32 v{t + r % 4}, v{t + r % 4}" for r in rr]
            out += [f"v_mul_f32 v{acc + r}, v{acc + r}, v{t + r % 4}" for r in rr]
            out += [f"v_cvt_pk_bf16_f32 v{dst + r // 2}, v{acc + r}, v{acc + r + 1}" for r in (k, k + 2)]
        return out

    def g3(self):
        a = self.a
        X, WR, ACC, T, HP = 128, 32, 64, 112, 116
        vB2 = vTR
        a(f"s_lshl_b32 s{sT}, s{sGW}, 6")
        a(f"s_add_u32 s{sT}, s{sT}, {F_H2}")
        a(f"v_and_b32 v{vA0}, 15, v{vL}")
        a(f"v_lshlrev_b32 v{vA0}, 2, v{vA0}")
        a(f"v_add_u32 v{vB2}, 0x10000, v{vL16}")
        self.poll_flags(vA0, sT)
        self.stamp("h2ok")
        a(f"s_lshl_b32 s{sT}, s{sGW}, 15")
        a(f"s_add_u32 s{sT}, s{sT}, s{sH2}")
        for s in range(32):
            if s and s % 4 == 0:
                a(f"s_add_u32 s{sT}, s{sT}, 4096")
            self.ld(X + 4 * s, 4, vL16, SWS, sT, imm=(s % 4) * 1024, mods="sc1", tag=("x", s))
        bulk = list(self.w2a)
        bulk.append(lambda: a(f"s_add_u32 s{sT + 6}, s{sT + 6}, 4096"))
        bulk += self.wfrag_loads(sT + 6, 0, 32, "a", "w2", first=32)

        def rd(t, s, dst):
            off = L_W1 + (t * 32 + s) * 1024
            v, off = (vL16, off) if off < 65536 else (vB2, off - 65536)
            a(f"ds_read_b128 {vr(dst, 4)}, v{v} offset:{off}", ("w", t, s))

        wr = lambda t, s: WR + 8 * (s % 4) + 4 * t
        for s in range(3):
            rd(0, s, wr(0, s))
            rd(1, s, wr(1, s))
        for s in range(32):
            for t in range(2):
                a.wait(vm=[("x", s)] if t == 0 else None, lg=[("w", t, s)])
                c = "0" if s == 0 else vr(ACC + 16 * t, 16)
                a(f"v_mfma_f32_32x32x16_bf16 {vr(ACC + 16 * t, 16)}, {vr(wr(t, s), 4)}, {vr(X + 4 * s, 4)}, {c}")
                if s + 3 < 32:
                    rd(t, s + 3, wr(t, s + 3))
                if s >= 8 and bulk:
                    bulk.pop(0)()
        while bulk:
            bulk.pop(0)()
        self.stamp("passA")

        def stores(t):
            def emit(mods):
                so = sT + 2 if t < 2 else sT + 3
                self.st(HP, 4, vL16, SWS, so, imm=(2 * t % 4) * 1024, mods=mods)
                self.st(HP + 4, 4, vL16, SWS, so, imm=(2 * t % 4 + 1) * 1024, mods=mods)
            return lambda: self.local_stores(emit)

        a(f"s_add_u32 s{sT + 3}, s{sT + 2}, 4096")
        a(f"s_cmp_ge_u32 s{sM}, 11")
        a("s_cbranch_scc1 L_g3_two")
        snap = a.snapshot()
        fill = self.silu_ops(ACC, HP, T) + [stores(0)] + self.silu_ops(ACC + 16, HP, T) + [stores(1)]
        w3 = lambda s: WR + 4 * (s % 8)
        for s in range(5):
            rd(2, s, w3(s))
        for s in range(32):
            a.wait(lg=[("w", 2, s)])
            c = "0" if s == 0 else vr(ACC + 32, 16)
            a(f"v_mfma_f32_32x32x16_bf16 {vr(ACC + 32, 16)}, {vr(w3(s), 4)}, {vr(X + 4 * s, 4)}, {c}")
            if s + 5 < 32:
                rd(2, s + 5, w3(s + 5))
            if s >= 1:
                per = -(-len(fill) // (32 - s))
                for _ in range(per):
                    f = fill.pop(0)
                    a(f) if isinstance(f, str) else f()
        assert not fill
        for f in self.silu_ops(ACC + 32, HP, T):
            a(f)
        stores(2)()
        a("s_branch L_g3_done")
        a.L("L_g3_two")
        a.restore(snap)
        for t in range(2):
            for f in self.silu_ops(ACC + 16 * t, HP, T):
                a(f)
            stores(t)()
        a.L("L_g3_done")
        self.stamp("g3")
        a(f"s_lshl_b32 s{sT}, s{sGW}, 4")
        a(f"s_add_u32 s{sT}, s{sT}, s{sM}")
        a(f"s_lshl_b32 s{sT}, s{sT}, 2")
        a(f"s_add_u32 s{sT}, s{sT}, {F_HID}")
        a(f"v_mov_b32 v{vA1}, s{sTAG}")
        a(f"v_mov_b32 v{vA0}, 0")
        a.wait(vm=0)
        self.local_stores(lambda mods: self.flag_store(sT, mods))
        a(f"s_add_u32 s{sT + 6}, s{sT + 6}, 4096")
        if self.o.get("w2late_early", 1):
            for f in self.wfrag_loads(sT + 6, 128, 22, "v", "w2", first=64):
                f()
        a("s_barrier")
        self.stamp("hidpub")

    def g4(self):
        a = self.a
        ACC, XR_, GB = 96, 32, 64
        vB2 = vTR
        a(f"s_lshl_b32 s{sT}, s{sG}, 2")
        a(f"s_add_u32 s{sT}, s{sT}, s{sRT}")
        a(f"s_lshl_b32 s{sT + 1}, s{sT}, 6")
        a(f"s_add_u32 s{sT + 1}, s{sT + 1}, {F_HID}")
        a(f"s_mul_i32 s{sT + 2}, s{sT}, {86 * 1024}")
        a(f"s_add_u32 s{sT + 2}, s{sT + 2}, {HID}")
        a(f"s_lshl_b32 s{sT + 3}, s{sW}, 12")
        a(f"v_and_b32 v{vA0}, 15, v{vL}")
        a(f"v_lshlrev_b32 v{vA0}, 2, v{vA0}")
        for i in range(4):
            a(f"ds_read_b128 {vr(GB + 4 * i, 4)}, v{self.vML} offset:{384 + 32 * i}")
        self.poll_flags(vA0, sT + 1)
        self.stamp("hidok")
        a(f"s_add_u32 s{sT + 4}, s{sT + 2}, s{sT + 3}")
        for u in range(5):
            a(f"s_add_u32 m0, s{sT + 3}, {L_HX + u * 16384}")
            for f in range(4):
                self.dma(vL16, SWS, sT + 4, imm=f * 1024, mods="sc1", tag=("hx", u))
            if u < 4:
                a(f"s_add_u32 s{sT + 4}, s{sT + 4}, 16384")
        a(f"s_lshl_b32 s3, s{sW}, 11")
        a(f"s_add_u32 s3, s3, {80 * 1024}")
        a(f"s_add_u32 m0, s3, {L_HX}")
        a(f"s_add_u32 s{sT + 4}, s{sT + 2}, s3")
        for f in range(2):
            self.dma(vL16, SWS, sT + 4, imm=f * 1024, mods="sc1", tag=("hx", 5))
        if not self.o.get("w2late_early", 1):
            for f in self.wfrag_loads(sT + 6, 128, 22, "v", "w2", first=64):
                f()
        a(f"v_and_b32 v{vA0}, 31, v{vL}")
        a(f"v_lshlrev_b32 v{vA0}, 10, v{vA0}")
        a(f"v_lshrrev_b32 v{vA1}, 5, v{vL}")
        a(f"v_lshl_add_u32 v{vA0}, v{vA1}, 4, v{vA0}")
        a(f"s_lshl_b32 s{sT}, s{sT}, 15")
        a(f"s_lshl_b32 s3, s{sF0}, 1")
        a(f"s_add_u32 s{sT}, s{sT}, s3")

        xr = lambda s: XR_ + 4 * (s % 8)

        def rd(s):
            if s % 16 == 0:
                a.wait(vm=[("hx", s // 16)])
                a("s_barrier")
            off = L_HX + s * 1024
            v, off = (vL16, off) if off < 65536 else (vB2, off - 65536)
            a(f"ds_read_b128 {vr(xr(s), 4)}, v{v} offset:{off}", ("h", s))

        def w2(s):
            if s < 32:
                return ar(128 + 4 * s, 4)
            if s < 64:
                return ar(4 * (s - 32), 4)
            return vr(128 + 4 * (s - 64), 4)
        for s in range(6):
            rd(s)
        for s in range(86):
            a.wait(vm=[("w2", s)], lg=[("h", s)])
            c = "0" if s == 0 else vr(ACC, 16)
            a(f"v_mfma_f32_32x32x16_bf16 {vr(ACC, 16)}, {w2(s)}, {vr(xr(s), 4)}, {c}")
            if s + 6 < 86:
                rd(s + 6)
        self.stamp("g4")
        for r in range(16):
            a(f"v_fmac_f32 v{vX1 + r}, v{GB + r}, v{ACC + r}")
        for k in range(8):
            a(f"v_cvt_pk_bf16_f32 v{80 + k}, v{vX1 + 2 * k}, v{vX1 + 2 * k + 1}")
        for p in (80, 84):
            a(f"v_permlane32_swap_b32 v{p}, v{p + 2}")
            a(f"v_permlane32_swap_b32 v{p + 1}, v{p + 3}")
        om = self.o.get("out_mods", "")
        self.st(80, 4, vA0, SOUT, sT, mods=om)
        self.st(84, 4, vA0, SOUT, sT, imm=32, mods=om)
        if self.stamps:
            a.wait(vm=0)
            self.stamp("end")
            a("s_memtime s[100:101]")
            a.wait(lg=0)
            a("s_sub_u32 s100, s100, s98")
            a("v_writelane_b32 v0, s100, 63")
            a(f"s_lshl_b32 s3, s2, 2")
            a(f"s_add_u32 s3, s3, s{sW}")
            a(f"s_lshl_b32 s3, s3, 8")
            a(f"s_add_u32 s3, s3, {STAMP}")
            a(f"v_lshlrev_b32 v{vA0}, 2, v{vL}")
            self.st(0, 1, vA0, SWS, 3)

    def build(self):
        a = self.a
        self.startup()
        self.g1()
        self.attention()
        self.g2()
        self.g3()
        self.g4()
        a.L("L_end")
        a("s_endpgm")
        a.L("L_code_end")
        nops = a.pad()
        head = open(os.path.join(os.path.dirname(os.path.abspath(__file__)), "..", "cdna_kernels", NAME + ".s.ref")).read()
        head = [l for l in head.split("\n") if l.startswith(";") and "@launch" not in l and "Override" not in l
                and "grid=ceil" not in l]
        out = "\n".join(head) + "\n"
        out += f"; @launch grid=(256,1,1) block=(256,1,1) lds={LDS_SIZE}\n"
        out += "; One persistent workgroup per CU; 16 workgroups share a block of 128 tokens and hand their\n"
        out += "; tiles to each other through tagged words in the workspace.\n"
        out += '.amdgcn_target "amdgcn-amd-amdhsa--gfx950"\n.text\n'
        out += f".globl {KERNEL}\n.p2align 8\n.type {KERNEL},@function\n{KERNEL}:\n"
        out += a.text()
        out += f""".section .rodata,"a"
.p2align 6
.amdhsa_kernel {KERNEL}
  .amdhsa_next_free_vgpr 512
  .amdhsa_next_free_sgpr 102
  .amdhsa_accum_offset 256
  .amdhsa_group_segment_fixed_size 0
  .amdhsa_kernarg_size 88
  .amdhsa_user_sgpr_count 2
  .amdhsa_user_sgpr_kernarg_segment_ptr 1
  .amdhsa_system_sgpr_workgroup_id_x 1
  .amdhsa_float_denorm_mode_32 3
.end_amdhsa_kernel
"""
        return out, nops


def main():
    import argparse
    ap = argparse.ArgumentParser()
    ap.add_argument("-o", default=None)
    ap.add_argument("--stamps", action="store_true")
    ap.add_argument("--opt", action="append", default=[])
    args = ap.parse_args()
    opts = {}
    for kv in args.opt:
        k, _, v = kv.partition("=")
        try:
            opts[k] = int(v) if v else 1
        except ValueError:
            opts[k] = v
    g = Gen(stamps=args.stamps, opts=opts)
    text, nops = g.build()
    path = args.o or os.path.join(os.path.dirname(os.path.abspath(__file__)), "..", "cdna_kernels", NAME + ".s")
    open(path, "w").write(text)
    if args.stamps:
        open(path + ".stamps", "w").write("\n".join(g.stamp_names))
    n = sum(1 for x in g.a.ins if x.kind not in ("label", "comment"))
    print(f"wrote {path}: {n} instructions, {nops} pad states, {len(text)} bytes of text")


if __name__ == "__main__":
    main()
```

```python
import re

TRANS = ("v_exp_f32", "v_log_f32", "v_rcp_f32", "v_rsq_f32", "v_sqrt_f32", "v_sin_f32", "v_cos_f32")
RMW = ("v_fmac_f32", "v_dot2c_f32_bf16", "v_pk_fmac_f16")


def regs_of(op):
    op = op.strip()
    op = op.lstrip("-")
    if op.startswith("abs(") and op.endswith(")"):
        op = op[4:-1]
    if op.startswith("|") and op.endswith("|"):
        op = op[1:-1]
    m = re.fullmatch(r"([vas])\[(\d+):(\d+)\]", op)
    if m:
        return [f"{m.group(1)}{i}" for i in range(int(m.group(2)), int(m.group(3)) + 1)]
    m = re.fullmatch(r"([vas])(\d+)", op)
    if m:
        return [op]
    if op == "vcc":
        return ["vcc_lo", "vcc_hi"]
    if op == "exec":
        return ["exec_lo", "exec_hi"]
    if op in ("vcc_lo", "vcc_hi", "exec_lo", "exec_hi", "m0"):
        return [op]
    return []


class Ins:
    __slots__ = ("text", "mn", "ops", "mods", "dst", "src", "kind", "label", "target",
                 "srcA", "srcB", "srcC", "passes", "states", "data", "comment")

    def __init__(self, text, label=None):
        self.text = text
        self.label = label
        self.target = None
        self.dst, self.src = set(), set()
        self.srcA = self.srcB = self.srcC = self.data = frozenset()
        self.passes = 0
        self.states = 1
        self.kind = "label" if label else None
        self.mn = ""
        self.mods = ""
        if label:
            self.states = 0
            return
        parts = text.split(None, 1)
        mn = self.mn = parts[0]
        rest = parts[1] if len(parts) > 1 else ""
        ops = [o.strip() for o in rest.split(",")] if rest else []
        if ops:
            m = re.search(r"\s(op_sel|op_sel_hi|neg_lo|neg_hi|quad_perm):\[", " " + rest)
            if m:
                head = rest[: max(m.start(), 0)]
                self.mods = rest[max(m.start(), 0):]
                ops = [o.strip() for o in head.split(",")]
            last = ops[-1].split(None, 1)
            if len(last) > 1 and not ops[-1].startswith("hwreg"):
                ops[-1] = last[0]
                self.mods = last[1] + " " + self.mods
        self.ops = ops
        R = lambda i: regs_of(ops[i]) if i < len(ops) else []
        if mn.startswith("v_mfma"):
            self.kind = "mfma"
            self.dst = set(R(0))
            self.srcA, self.srcB, self.srcC = frozenset(R(1)), frozenset(R(2)), frozenset(R(3))
            self.src = set(self.srcA | self.srcB | self.srcC)
            self.passes = 8 if "32x32" in mn else 4
        elif mn.startswith("v_"):
            self.kind = "valu"
            base = re.sub(r"_(e32|e64|dpp|sdwa)$", "", mn)
            self.dst = set(R(0))
            first = 1
            if base in ("v_add_co_u32", "v_sub_co_u32", "v_addc_co_u32", "v_subb_co_u32"):
                self.dst |= set(R(1))
                first = 2
            for i in range(first, len(ops)):
                self.src |= set(R(i))
            if base.startswith("v_permlane") and "swap" in base:
                self.dst |= set(R(1))
                self.src |= set(R(0))
            if base in RMW or mn.endswith("_dpp") or base == "v_writelane_b32":
                self.src |= set(R(0))
        elif mn.startswith("ds_"):
            self.kind = "ds"
            if mn.startswith("ds_read") or mn.startswith("ds_bpermute") or mn.startswith("ds_swizzle"):
                self.dst = set(R(0))
                for i in range(1, len(ops)):
                    self.src |= set(R(i))
            else:
                for i in range(len(ops)):
                    self.src |= set(R(i))
        elif mn.startswith("buffer_") or mn.startswith("global_"):
            self.kind = "vmem"
            lds = re.search(r"\blds\b", self.mods) or "_lds_" in mn
            if "load" in mn and not lds:
                self.dst = set(R(0))
                for i in range(1, len(ops)):
                    self.src |= set(R(i))
            else:
                for i in range(len(ops)):
                    self.src |= set(R(i))
                if lds:
                    self.src.add("m0")
                elif mn.endswith("x4") or mn.endswith("x3"):
                    self.data = frozenset(R(0) if mn.startswith("buffer_") else R(1))
        elif mn.startswith("s_"):
            self.kind = "salu"
            if mn == "s_nop":
                self.states = int(ops[0], 0) + 1
            elif mn.startswith("s_cbranch") or mn == "s_branch":
                self.kind = "branch"
                self.target = ops[0]
            elif mn in ("s_waitcnt", "s_barrier", "s_endpgm", "s_sleep", "s_setprio"):
                pass
            elif mn.startswith("s_cmp") or mn.startswith("s_bitcmp"):
                for i in range(len(ops)):
                    self.src |= set(R(i))
            elif mn.startswith("s_load") or mn.startswith("s_memrealtime") or mn.startswith("s_memtime"):
                self.kind = "smem"
                self.dst = set(R(0))
                for i in range(1, len(ops)):
                    self.src |= set(R(i))
            else:
                self.dst = set(R(0))
                for i in range(1, len(ops)):
                    self.src |= set(R(i))
                if "saveexec" in mn:
                    self.dst |= {"exec_lo", "exec_hi"}
        else:
            raise ValueError("unknown instruction: " + text)

    @property
    def trans(self):
        return re.sub(r"_(e32|e64)$", "", self.mn) in TRANS

    @property
    def dpp(self):
        return self.mn.endswith("_dpp")


def is_s(r):
    return r[0] == "s" or r.startswith("vcc")


def need_states(p, c):
    n = 0
    if p.kind == "valu":
        vd = {r for r in p.dst if r[0] in "va" and not r.startswith("vcc")}
        sd = {r for r in p.dst if is_s(r)}
        if c.kind == "vmem" and sd & c.src:
            n = max(n, 5)
        if c.kind == "valu":
            if c.dpp and vd & c.src:
                n = max(n, 2)
            if sd & c.src:
                n = max(n, 4 if c.mn.startswith(("v_readlane", "v_writelane")) else 2)
            if c.mn.startswith(("v_readlane", "v_readfirstlane")) and vd & c.src:
                n = max(n, 1)
            if p.trans and vd & c.src:
                n = max(n, 1)
            if c.mn.startswith("v_permlane") and vd & c.src:
                n = max(n, 2)
        if p.mn.startswith("v_dot") and c.kind in ("valu", "mfma", "vmem", "ds") and vd & (c.src | c.dst):
            chain = c.mn == p.mn and not vd & set(regs_of(c.ops[1]) + regs_of(c.ops[2]))
            if not chain:
                n = max(n, 3)
        if c.kind == "mfma" and vd & c.src:
            n = max(n, 2)
        if c.kind in ("salu", "branch") and sd & c.src:
            n = max(n, 1)
    elif p.kind == "salu":
        if "m0" in p.dst and c.kind == "vmem" and "m0" in c.src:
            n = max(n, 1)
    elif p.kind == "vmem":
        if p.data and p.data & c.dst:
            n = max(n, 2)
    elif p.kind == "mfma":
        big = p.passes == 8
        if c.kind == "mfma":
            if p.dst & (c.srcA | c.srcB):
                n = max(n, 12 if big else 8)
            if p.dst & c.srcC and not (set(c.srcC) == p.dst and c.passes == p.passes):
                n = max(n, 10 if big else 6)
        elif c.kind in ("valu", "vmem", "ds"):
            if p.dst & (c.src | c.dst):
                n = max(n, 12 if big else 8)
            if p.srcC & c.dst:
                n = max(n, 7 if big else 3)
    return n


class Asm:
    def __init__(self):
        self.ins = []
        self.vmq = []
        self.lgq = []
        self.cond = 0
        self.nlab = 0
        self.seen = set()

    def I(self, text, tag=None):
        for line in text.split("\n"):
            line = line.split(";")[0].strip()
            if not line:
                continue
            ins = Ins(line)
            self.ins.append(ins)
            self.seen.add(tag)
            if ins.kind == "vmem":
                self.vmq.append([tag, self.cond == 0])
            elif ins.kind == "ds":
                self.lgq.append([tag, self.cond == 0])
            elif ins.kind == "smem":
                self.lgq.append(["smem", True])
        return self

    __call__ = I

    def L(self, name):
        self.ins.append(Ins(name + ":", label=name))

    def newlabel(self, stem):
        self.nlab += 1
        return f"L_{stem}_{self.nlab}"

    def comment(self, text):
        ins = Ins("x:", label="__c")
        ins.text = "; " + text
        ins.label = None
        ins.kind = "comment"
        self.ins.append(ins)

    @staticmethod
    def _count(q, tags, cap):
        last = -1
        for i, (t, _) in enumerate(q):
            if t in tags:
                last = i
        if last < 0:
            return None
        n = sum(1 for t, sure in q[last + 1:] if sure)
        return last, min(n, cap)

    def wait(self, vm=None, lg=None):
        parts = []
        for want in (vm, lg):
            if want is not None and want != 0:
                for t in (want if isinstance(want, (tuple, list, set)) else (want,)):
                    assert t in self.seen, f"wait for an operation never issued: {t}"
        if vm is not None:
            if vm == 0:
                parts.append("vmcnt(0)")
                self.vmq = []
            else:
                got = self._count(self.vmq, vm if isinstance(vm, (tuple, list, set)) else (vm,), 63)
                if got:
                    parts.append(f"vmcnt({got[1]})")
                    self.vmq = self.vmq[got[0] + 1:]
        if lg is not None:
            smem = any(t == "smem" for t, _ in self.lgq)
            if lg == 0 or smem:
                parts.append("lgkmcnt(0)")
                self.lgq = []
            else:
                got = self._count(self.lgq, lg if isinstance(lg, (tuple, list, set)) else (lg,), 15)
                if got:
                    parts.append(f"lgkmcnt({got[1]})")
                    self.lgq = self.lgq[got[0] + 1:]
        if parts:
            self.ins.append(Ins("s_waitcnt " + " ".join(parts)))

    def snapshot(self):
        return [list(x) for x in self.vmq], [list(x) for x in self.lgq]

    def restore(self, snap):
        self.vmq, self.lgq = [list(x) for x in snap[0]], [list(x) for x in snap[1]]

    def pad(self):
        added = 0
        while True:
            ins = self.ins
            at = {x.label: i for i, x in enumerate(ins) if x.label}
            jumps = {}
            for i, x in enumerate(ins):
                if x.kind == "branch":
                    jumps.setdefault(at[x.target], []).append(i)
            fixes = {}
            for ci, c in enumerate(ins):
                if c.kind in ("label", "comment"):
                    continue
                worst = 0
                stack = [(ci, 0)]
                seen = {}
                while stack:
                    i, dist = stack.pop()
                    preds = []
                    if i > 0 and ins[i - 1].mn not in ("s_branch", "s_endpgm"):
                        preds.append(i - 1)
                    if ins[i].label and i in jumps:
                        preds += jumps[i]
                    for pi in preds:
                        p = ins[pi]
                        if p.kind not in ("label", "comment"):
                            worst = max(worst, need_states(p, c) - dist)
                        nd = dist + p.states
                        if nd < 13 and seen.get(pi, 99) > nd:
                            seen[pi] = nd
                            stack.append((pi, nd))
                if worst > 0:
                    fixes[ci] = worst
            if not fixes:
                return added
            out, last = [], -100
            for i, x in enumerate(ins):
                if i in fixes and i - last > 14:
                    out.append(Ins(f"s_nop {fixes[i] - 1}"))
                    added += fixes[i]
                    last = i
                out.append(x)
            self.ins = out

    def text(self):
        out = []
        for x in self.ins:
            out.append(x.text if x.kind == "label" else "    " + x.text)
        return "\n".join(out) + "\n"


def vr(base, n=1, kind="v"):
    return f"{kind}{base}" if n == 1 else f"{kind}[{base}:{base + n - 1}]"


def ar(base, n=1):
    return vr(base, n, "a")


def sr(base, n=1):
    return vr(base, n, "s")
```

```python
import os
import struct
import sys

sys.path.insert(0, os.path.dirname(os.path.abspath(__file__)))
from asmlib import Asm, vr, ar, sr
from layout import *

NAME = "adaLN_cond__sliding_block__dense_activation_silu__prompt"
KERNEL = NAME + "_kernel"


def fbits(x):
    return "0x%08x" % struct.unpack("<I", struct.pack("<f", x))[0]


LOG2E = 1.4426950408889634

SX, SWQ, SWM, SC, SOUT, SWS, SPR = 28, 32, 36, 40, 44, 48, 52
sG, sM, sW, sTAG, sFAST, sTO, sXCC, sP = 56, 57, 58, 59, 60, 61, 62, 63
sT = 64
sRT, sF0, sH2, sFT0 = 76, 77, 78, 79
sWQO, sWQL, sLATE, sWO, sW2, sW1, sW1C, sW4K, sHID, sBG = 80, 81, 82, 83, 84, 85, 86, 87, 88, 89
sHI = 26
sGW = 27

vL16, vTR, vTR2, vQA, vQB, vL = 1, 2, 3, 4, 8, 12
vA0, vA1, vA2 = 13, 14, 15
vX1 = 16


class Gen:
    def __init__(self, stamps=False, opts=None):
        self.a = Asm()
        self.stamps = stamps
        self.nstamp = 0
        self.stamp_names = []
        self.o = dict(opts or {})

    def stamp(self, name):
        if not self.stamps:
            return
        a = self.a
        a("s_memrealtime s[100:101]")
        a.wait(lg=0)
        a(f"v_writelane_b32 v0, s100, {self.nstamp}")
        self.nstamp += 1
        self.stamp_names.append(name)
        assert self.nstamp <= 60

    def srd(self, base, ptr, size):
        a = self.a
        a(f"s_mov_b32 s{base}, s{ptr}")
        a(f"s_and_b32 s{base + 1}, s{ptr + 1}, 0xffff")
        a(f"s_mov_b32 s{base + 2}, {size}")
        a(f"s_mov_b32 s{base + 3}, 0x20000")

    def ld(self, dst, n, voff, srd, soff, imm=0, mods="", tag=None, kind="v"):
        suf = {1: "dword", 2: "dwordx2", 4: "dwordx4"}[n]
        off = f" offset:{imm}" if imm else ""
        so = f"s{soff}" if isinstance(soff, int) else soff
        self.a(f"buffer_load_{suf} {vr(dst, n, kind)}, v{voff}, {sr(srd, 4)}, {so} offen{off} {mods}".rstrip(), tag)

    def st(self, src, n, voff, srd, soff, imm=0, mods="", tag=None):
        suf = {1: "dword", 2: "dwordx2", 4: "dwordx4"}[n]
        off = f" offset:{imm}" if imm else ""
        so = f"s{soff}" if isinstance(soff, int) else soff
        self.a(f"buffer_store_{suf} {vr(src, n)}, v{voff}, {sr(srd, 4)}, {so} offen{off} {mods}".rstrip(), tag)

    def dma(self, voff, srd, soff, imm=0, mods="", tag=None):
        off = f" offset:{imm}" if imm else ""
        self.a(f"buffer_load_dwordx4 v{voff}, {sr(srd, 4)}, s{soff} offen{off} {mods} lds".replace("  ", " "), tag)

    def local_stores(self, emit):
        a = self.a
        slow, done = a.newlabel("slow"), a.newlabel("stored")
        a(f"s_cmp_lg_u32 s{sFAST}, 0")
        a(f"s_cbranch_scc0 {slow}")
        snap = a.snapshot()
        emit("")
        a(f"s_branch {done}")
        a.L(slow)
        a.restore(snap)
        emit("sc1")
        a.L(done)

    def poll(self, loads, check):
        a = self.a
        top, done = a.newlabel("poll"), a.newlabel("polled")
        a.L(top)
        loads()
        a.wait(vm=0)
        check()
        a(f"s_cbranch_vccz {done}")
        a(f"s_cmp_eq_u32 s{sTO}, 0")
        a(f"s_cbranch_scc1 {done}")
        a(f"s_sub_u32 s{sTO}, s{sTO}, 1")
        a(f"s_branch {top}")
        a.L(done)

    def poll_flags(self, voff, soff):
        self.poll(lambda: self.ld(vA2, 1, voff, SWS, soff, mods="sc1"),
                  lambda: self.a(f"v_cmp_ne_u32 vcc, s{sTAG}, v{vA2}"))

    def flag_store(self, soff, mods, lanes=1, voff=None):
        a = self.a
        a(f"s_mov_b64 exec, {(1 << lanes) - 1}")
        self.st(vA1, 1, vA0 if voff is None else voff, SWS, soff, mods=mods)
        a("s_mov_b64 exec, -1")

    def csel(self, dst, yes, no):
        self.a(f"s_mov_b32 s{dst}, {no}")
        self.a(f"s_cmov_b32 s{dst}, {yes}")

    def bf16r(self, dst, src):
        self.a(f"v_cvt_pk_bf16_f32 v{dst}, v{src}, v{src}")
        self.a(f"v_and_b32 v{dst}, s{sHI}, v{dst}")

    def unpack(self, dst, src, n):
        for i in range(n):
            self.a(f"v_lshlrev_b32 v{dst + 2 * i}, 16, v{src + i}")
            self.a(f"v_and_b32 v{dst + 2 * i + 1}, s{sHI}, v{src + i}")

    def silu_bf16(self, dst, src_u16, t):
        a = self.a
        a(f"v_lshlrev_b32 v{dst}, 16, v{src_u16}")
        a(f"v_mul_f32 v{t}, {fbits(-LOG2E)}, v{dst}")
        a(f"v_exp_f32 v{t}, v{t}")
        a(f"v_add_f32 v{t}, 1.0, v{t}")
        a(f"v_rcp_f32 v{t}, v{t}")
        a(f"v_mul_f32 v{dst}, v{dst}, v{t}")
        self.bf16r(dst, dst)

    def ror_add(self, regs, steps):
        for n in steps:
            for r in regs:
                self.a(f"v_add_f32_dpp v{r}, v{r}, v{r} row_ror:{n} row_mask:0xf bank_mask:0xf")

    def reduce8(self, p):
        a = self.a
        for i in range(4):
            a(f"v_permlane32_swap_b32 v{p + i}, v{p + 4 + i}")
        for i in range(4):
            a(f"v_add_f32 v{p + i}, v{p + i}, v{p + 4 + i}")
        for i in range(2):
            a(f"v_permlane16_swap_b32 v{p + i}, v{p + 2 + i}")
        for i in range(2):
            a(f"v_add_f32 v{p + i}, v{p + i}, v{p + 2 + i}")
        self.ror_add([p, p + 1], [8, 4, 2])

    def ln_finish(self, vsum, vsq, t):
        a = self.a
        a(f"v_mul_f32 v{vsum}, {fbits(1 / 512)}, v{vsum}")
        a(f"v_mul_f32 v{t}, v{vsum}, v{vsum}")
        a(f"s_mov_b32 s{sT + 11}, {fbits(1 / 512)}")
        a(f"v_fma_f32 v{vsq}, v{vsq}, s{sT + 11}, -v{t}")
        a(f"v_max_f32 v{vsq}, 0, v{vsq}")
        self.bf16r(vsum, vsum)
        self.bf16r(vsq, vsq)
        a(f"v_add_f32 v{vsq}, {fbits(1e-5)}, v{vsq}")
        self.bf16r(vsq, vsq)
        a(f"v_sqrt_f32 v{vsq}, v{vsq}")
        self.bf16r(vsq, vsq)
        a(f"v_rcp_f32 v{vsq}, v{vsq}")

    def startup(self):
        a = self.a
        a("s_cmp_ge_u32 s2, 256")
        a("s_cbranch_scc1 L_end")
        a("s_load_dwordx16 s[4:19], s[0:1], 0")
        a("s_load_dwordx4 s[20:23], s[0:1], 64")
        a("s_load_dwordx2 s[24:25], s[0:1], 80")
        if self.stamps:
            a("s_memrealtime s[100:101]")
            a("s_memtime s[98:99]")
        a(f"v_lshrrev_b32 v{vA0}, 6, v0")
        a(f"v_and_b32 v{vL}, 63, v0")
        a(f"v_readfirstlane_b32 s{sW}, v{vA0}")
        a("s_and_b32 s3, s2, 7")
        a(f"s_lshr_b32 s{sT}, s2, 3")
        a(f"s_lshr_b32 s{sT + 1}, s{sT}, 4")
        a(f"s_lshl_b32 s{sG}, s3, 1")
        a(f"s_add_u32 s{sG}, s{sG}, s{sT + 1}")
        a(f"s_and_b32 s{sM}, s{sT}, 15")
        a(f"s_lshl_b32 s{sP}, s{sG}, 4")
        a(f"s_add_u32 s{sP}, s{sP}, s{sM}")
        a(f"s_lshl_b32 s{sGW}, s{sG}, 2")
        a(f"s_add_u32 s{sGW}, s{sGW}, s{sW}")
        a(f"s_getreg_b32 s{sXCC}, hwreg(HW_REG_XCC_ID, 0, 4)")
        a(f"s_mov_b32 s{sHI}, 0xffff0000")
        a(f"s_mov_b32 s{sTO}, 0x80000")
        a(f"s_lshr_b32 s{sRT}, s{sM}, 2")
        a(f"s_and_b32 s{sF0}, s{sM}, 3")
        a(f"s_lshl_b32 s{sF0}, s{sF0}, 7")
        a(f"s_lshl_b32 s3, s{sW}, 5")
        a(f"s_add_u32 s{sF0}, s{sF0}, s3")
        a(f"v_lshlrev_b32 v{vL16}, 4, v{vL}")
        vWM, vCO, vXS, vWR, vPT, vCT = 84, 85, 86, 87, 88, 90
        a(f"v_lshrrev_b32 v92, 1, v{vL}")
        a(f"v_mul_u32_u24 v{vWM}, 6144, v92")
        a(f"v_and_b32 v93, 1, v{vL}")
        a(f"v_lshl_add_u32 v{vWM}, v93, 4, v{vWM}")
        a(f"v_lshlrev_b32 v{vCO}, 1, v92")
        a(f"v_and_b32 v92, 31, v{vL}")
        a(f"v_lshlrev_b32 v{vXS}, 10, v92")
        a(f"v_lshrrev_b32 v93, 5, v{vL}")
        a(f"v_lshl_add_u32 v{vXS}, v93, 4, v{vXS}")
        a(f"v_lshrrev_b32 v92, 2, v{vL}")
        a(f"v_and_b32 v93, 3, v{vL}")
        a(f"v_lshlrev_b32 v94, 4, v93")
        a(f"v_mul_u32_u24 v{vWR}, 3072, v92")
        a(f"v_add_u32 v{vWR}, v{vWR}, v94")
        a(f"s_lshl_b32 s3, s{sT}, 2")
        a(f"s_add_u32 s3, s3, s{sW}")
        a(f"s_lshl_b32 s3, s3, 9")
        a(f"v_lshl_add_u32 v{vCT}, v93, 7, s3")
        a(f"v_min_u32 v{vCT}, (L_code_end-{KERNEL}-4), v{vCT}")
        a(f"s_getpc_b64 s[{sT + 2}:{sT + 3}]")
        a.L("L_pc")
        a(f"s_sub_u32 s{sT + 2}, s{sT + 2}, (L_pc-{KERNEL})")
        a(f"s_subb_u32 s{sT + 3}, s{sT + 3}, 0")
        a(f"v_mov_b32 v{vCT + 1}, s{sT + 3}")
        a(f"v_add_co_u32 v{vCT}, vcc, s{sT + 2}, v{vCT}")
        a(f"v_addc_co_u32 v{vCT + 1}, vcc, 0, v{vCT + 1}, vcc")
        a(f"v_and_b32 v96, 15, v{vL}")
        a(f"v_lshrrev_b32 v97, 2, v96")
        a(f"v_lshlrev_b32 v97, 6, v97")
        a(f"v_lshl_add_u32 v97, v93, 3, v97")
        a(f"v_bfe_u32 v96, v{vL}, 4, 1")
        a(f"v_lshl_add_u32 v97, v96, 5, v97")
        a(f"v_lshrrev_b32 v96, 5, v{vL}")
        a(f"v_lshl_add_u32 v{vTR}, v96, 9, v97")
        a(f"v_add_u32 v{vTR2}, 0x10000, v{vTR}")
        a(f"v_lshl_add_u32 v95, v96, 8, v97")
        a(f"s_lshl_b32 s3, s{sW}, 12")
        a(f"s_add_u32 s3, s3, {L_PREP}")
        a(f"v_add_u32 v95, s3, v95")
        a.wait(lg=0)
        if self.stamps:
            a(f"v_writelane_b32 v0, s100, 0")
            self.nstamp = 1
            self.stamp_names.append("entry")
        self.stamp("karg")
        a(f"s_load_dword s{sTAG}, s[24:25], 0")
        if self.o.get("fine"):
            self.stamp("E")
        self.srd(SWM, 18, 512 * 6144)
        self.srd(SC, 16, 1024)
        self.srd(SX, 4, 2048 * 1024)
        if self.o.get("probe"):
            kind = self.o["probe"]
            ptr, size, base = {"bx": (10, 2 << 20, 0), "wslo": (24, 256 << 20, 32 << 20), "wshi": (24, 256 << 20, 250 << 20),
                               "wsmid": (24, 256 << 20, 128 << 20), "out": (20, 2 << 20, 0), "none": (10, 2 << 20, 0)}[kind]
            self.srd(SPR, ptr, size)
            a(f"s_lshl_b32 s3, s2, 13")
            a(f"s_add_u32 s3, s3, {base}")
            a(f"v_mov_b32 v100, 0")
            for i in range(16 if kind != "none" else 0):
                self.ld(101, 1, 100, SPR, 3, imm=i * 256)
                a.wait(vm=0)
        a(f"s_mul_i32 s{sT}, s{sG}, {32 * 6144}")
        a(f"s_and_b32 s3, s{sM}, 1")
        a(f"s_lshl_b32 s3, s3, 10")
        a(f"s_add_u32 s{sT}, s{sT}, s3")
        a(f"s_lshr_b32 s3, s{sM}, 1")
        a(f"s_lshl_b32 s3, s3, 7")
        a(f"s_add_u32 s{sT}, s{sT}, s3")
        a(f"s_lshl_b32 s3, s{sW}, 5")
        a(f"s_add_u32 s{sT}, s{sT}, s3")
        self.ld(32, 4, vWM, SWM, sT, tag="we", mods="nt")
        a(f"s_lshl_b32 s{sT + 1}, s{sG}, 6")
        a(f"buffer_load_ushort v36, v{vCO}, {sr(SC, 4)}, s{sT + 1} offen", "we")
        if self.o.get("fine"):
            self.stamp("i_we")
        a(f"s_lshl_b32 s{sT + 2}, s{sP}, 3")
        a(f"s_lshl_b32 s3, s{sW}, 1")
        a(f"s_add_u32 s{sT + 2}, s{sT + 2}, s3")
        a(f"s_lshl_b32 s{sT + 3}, s{sT + 2}, 10")
        self.ld(40, 4, vL16, SX, sT + 3, tag="rows")
        self.ld(44, 4, vL16, SX, sT + 3, imm=1024, tag="rows")
        a(f"s_lshl_b32 s{sT + 3}, s{sGW}, 15")
        a(f"s_lshl_b32 s3, s{sM}, 6")
        a(f"s_add_u32 s{sT + 3}, s{sT + 3}, s3")
        self.ld(48, 4, vXS, SX, sT + 3, tag="xs")
        self.ld(52, 4, vXS, SX, sT + 3, imm=32, tag="xs")
        if self.o.get("fine"):
            self.stamp("i_x")
        self.srd(SWS, 24, WS_SIZE)
        self.srd(SWQ, 6, 512 * 3072)
        self.srd(SOUT, 20, 2048 * 1024)
        a(f"s_lshl_b32 s{sT + 4}, s{sGW}, 15")
        a(f"s_lshl_b32 s3, s{sM}, 11")
        a(f"s_add_u32 s{sT + 4}, s{sT + 4}, s3")
        a(f"s_add_u32 s{sT + 4}, s{sT + 4}, {H1}")
        a(f"s_lshl_b32 s{sT + 5}, s{sGW}, 6")
        a(f"s_add_u32 s{sT + 5}, s{sT + 5}, {F_H1}")
        a(f"v_lshl_add_u32 v{vPT}, v{vL}, 7, s{sT + 4}")
        a(f"v_mov_b32 v92, s{sT + 5}")
        a(f"v_cmp_gt_u32 vcc, 16, v{vL}")
        a(f"v_cndmask_b32 v{vPT}, v92, v{vPT}, vcc")
        self.ld(37, 1, vPT, SWS, "0", mods="sc1")
        a(f"global_load_dword v38, v[{vCT}:{vCT + 1}], off")
        if self.o.get("fine"):
            self.stamp("i_pt")
        sU, sRS, sS0, sS1, sS2, sD0, sD2 = sT + 6, sT + 7, sT + 8, sT + 9, sT + 10, 22, 23
        a(f"s_lshl_b32 s{sU}, s{sP}, 2")
        a(f"s_add_u32 s{sU}, s{sU}, s{sW}")
        a(f"s_mov_b32 s{SPR + 3}, 0x20000")
        a(f"s_cmp_ge_u32 s{sU}, 472")
        a("s_cbranch_scc1 L_prep_w1")
        a(f"s_cmp_ge_u32 s{sU}, 128")
        a(f"s_cselect_b32 s{SPR}, s14, s8")
        a(f"s_cselect_b32 s{SPR + 1}, s15, s9")
        self.csel(SPR + 2, 1376 * 1024, 512 * 1024)
        self.csel(sD2, 86 * 1024, 32 * 1024)
        self.csel(sD0, W2F, WOF)
        a(f"s_cselect_b32 s3, 128, 0")
        a(f"s_and_b32 s{SPR + 1}, s{SPR + 1}, 0xffff")
        a(f"s_sub_u32 s{sU}, s{sU}, s3")
        a(f"s_movk_i32 s{sRS}, 1024")
        a(f"s_movk_i32 s{sS1}, 16384")
        a(f"s_movk_i32 s{sS2}, 64")
        a(f"s_lshr_b32 s3, s{sU}, 3")
        a(f"s_and_b32 s{sU}, s{sU}, 7")
        a(f"s_lshl_b32 s{sS0}, s3, 15")
        a(f"s_lshl_b32 s3, s3, 11")
        a(f"s_add_u32 s{sD0}, s{sD0}, s3")
        a(f"s_lshl_b32 s3, s{sU}, 7")
        a(f"s_add_u32 s{sS0}, s{sS0}, s3")
        a(f"s_mul_i32 s3, s{sU}, s{sD2}")
        a(f"s_lshl_b32 s3, s3, 1")
        a(f"s_add_u32 s{sD0}, s{sD0}, s3")
        a("s_branch L_prep_go")
        a.L("L_prep_w1")
        a(f"s_mov_b32 s{SPR}, s12")
        a(f"s_and_b32 s{SPR + 1}, s13, 0xffff")
        a(f"s_mov_b32 s{SPR + 2}, {512 * 2752}")
        a(f"s_movk_i32 s{sRS}, 2752")
        a(f"s_mov_b32 s{sS1}, {16 * 2752}")
        a(f"s_mov_b32 s{sS2}, {32 * 2752}")
        a(f"s_movk_i32 s{sD2}, 2048")
        a(f"s_sub_u32 s{sU}, s{sU}, 472")
        a(f"s_and_b32 s3, s{sU}, 7")
        a(f"s_lshr_b32 s{sU}, s{sU}, 3")
        a(f"s_mul_i32 s{sS0}, s3, {64 * 2752}")
        a(f"s_lshl_b32 s3, s3, 12")
        a(f"s_add_u32 s{sD0}, s3, {W1F}")
        a(f"s_lshl_b32 s3, s{sU}, 6")
        a(f"s_add_u32 s{sS0}, s{sS0}, s3")
        a(f"s_lshl_b32 s3, s{sU}, 15")
        a(f"s_add_u32 s{sD0}, s{sD0}, s3")
        a(f"s_cmp_ge_u32 s{sU}, 43")
        a(f"s_cselect_b32 s{sS0}, 0x7f000000, s{sS0}")
        a(f"s_cselect_b32 s{sD0}, 0x7f000000, s{sD0}")
        a.L("L_prep_go")
        a(f"v_lshrrev_b32 v92, 2, v{vL}")
        a(f"v_mul_lo_u32 v92, v92, s{sRS}")
        a(f"v_add_u32 v92, v92, v94")
        a(f"s_lshl_b32 s3, s{sW}, 12")
        a(f"s_add_u32 m0, s3, {L_PREP}")
        self.dma(92, SPR, sS0, tag="prep", mods="nt")
        a(f"s_add_u32 s{sU}, s{sS0}, s{sS1}")
        a("s_add_u32 m0, m0, 1024")
        self.dma(92, SPR, sU, tag="prep", mods="nt")
        a(f"s_add_u32 s{sS0}, s{sS0}, s{sS2}")
        a("s_add_u32 m0, m0, 1024")
        self.dma(92, SPR, sS0, tag="prep", mods="nt")
        a(f"s_add_u32 s{sU}, s{sS0}, s{sS1}")
        a("s_add_u32 m0, m0, 1024")
        self.dma(92, SPR, sU, tag="prep", mods="nt")
        if self.o.get("fine"):
            self.stamp("i_prep")
        self.vWR = vWR
        a(f"s_mul_i32 s{sWQO}, s{sW}, {16 * 3072}")
        a(f"s_lshl_b32 s3, s{sM}, 6")
        a(f"s_add_u32 s{sWQO}, s{sWQO}, s3")
        a(f"s_lshl_b32 s{sWQL}, s{sW}, 10")
        self.keep = (vWM, vCO)
        self.stamp("issued")
        a.wait(lg=0)
        a(f"s_add_u32 s{sTAG}, s{sTAG}, {TAG_STEP}")
        a(f"s_and_b32 s{sTAG}, s{sTAG}, 0xfffffff0")
        vC16 = 93
        a(f"v_and_b32 v96, 1, v{vL}")
        a(f"v_lshlrev_b32 v{vC16}, 3, v96")
        a(f"v_lshrrev_b32 v96, 5, v{vL}")
        a(f"v_lshl_add_u32 v{vC16}, v96, 2, v{vC16}")
        a(f"v_bfe_u32 v96, v{vL}, 4, 1")
        a(f"v_lshl_add_u32 v{vC16}, v96, 1, v{vC16}")
        a.wait(vm="we")
        self.stamp("we")
        self.silu_bf16(96, 36, 97)
        self.unpack(100, 32, 4)
        for i in range(8):
            a(f"v_mul_f32 v{100 + i}, v96, v{100 + i}")
        self.reduce8(100)
        a(f"v_mov_b32 v102, v101")
        a(f"v_mov_b32 v101, s{sTAG}")
        a(f"v_mov_b32 v103, s{sTAG}")
        a(f"v_lshlrev_b32 v96, 3, v{vC16}")
        a(f"s_and_b32 s3, s{sM}, 1")
        a(f"s_lshl_b32 s{sT}, s3, 5")
        a(f"s_lshr_b32 s3, s{sM}, 1")
        a(f"s_lshl_b32 s3, s3, 2")
        a(f"s_add_u32 s{sT}, s{sT}, s3")
        a(f"s_add_u32 s{sT}, s{sT}, s{sW}")
        a(f"s_lshl_b32 s{sT}, s{sT}, 4")
        a(f"s_add_u32 s{sT}, s{sT}, s{sG}")
        a(f"s_lshl_b32 s{sT}, s{sT}, 7")
        a(f"s_add_u32 s{sT}, s{sT}, {MODE}")
        a(f"s_mov_b32 s{sT + 6}, 0x00030003")
        a(f"s_mov_b32 s{sT + 7}, 0x00030003")
        a(f"s_mov_b64 exec, s[{sT + 6}:{sT + 7}]")
        self.st(100, 4, 96, SWS, sT, mods="sc1")
        a("s_mov_b64 exec, -1")
        a.wait(vm="rows")
        a(f"s_mov_b32 s3, 0x3f803f80")
        for r, base in ((0, 40), (1, 44)):
            a(f"v_dot2_f32_bf16 v{104 + 2 * r}, v{base}, s3, 0")
            a(f"v_dot2_f32_bf16 v{105 + 2 * r}, v{base}, v{base}, 0")
        for i in range(1, 4):
            for r, base in ((0, 40), (1, 44)):
                a(f"v_dot2_f32_bf16 v{104 + 2 * r}, v{base + i}, s3, v{104 + 2 * r}")
                a(f"v_dot2_f32_bf16 v{105 + 2 * r}, v{base + i}, v{base + i}, v{105 + 2 * r}")
        a("v_permlane32_swap_b32 v104, v106")
        a("v_permlane32_swap_b32 v105, v107")
        a("v_add_f32 v104, v104, v106")
        a("v_add_f32 v105, v105, v107")
        a("v_permlane16_swap_b32 v104, v105")
        a("v_add_f32 v104, v104, v105")
        self.ror_add([104], [8, 4, 2, 1])
        a("v_mov_b32 v106, v104")
        a("v_permlane16_swap_b32 v104, v106")
        self.ln_finish(104, 106, 105)
        a(f"s_or_b32 s3, s{sTAG}, s{sXCC}")
        a(f"v_mov_b32 v105, s3")
        a(f"v_mov_b32 v107, s{sTAG}")
        a(f"v_lshrrev_b32 v96, 1, v{vL}")
        a(f"s_lshl_b32 s{sT + 2}, s{sT + 2}, 4")
        a(f"s_add_u32 s{sT + 2}, s{sT + 2}, {ST1}")
        a(f"s_mov_b32 s{sT + 6}, 1")
        a(f"s_mov_b32 s{sT + 7}, 1")
        a(f"s_mov_b64 exec, s[{sT + 6}:{sT + 7}]")
        self.st(104, 4, 96, SWS, sT + 2, mods="sc1")
        a("s_mov_b64 exec, -1")
        self.stamp("pub1")
        for f in self.wtile_dmas(range(self.o.get("nu", 4)), "kv", "wkv0"):
            f()
        a.wait(vm="prep")
        for i in range(4):
            a(f"ds_read_b64_tr_b16 v[{68 + 4 * i}:{69 + 4 * i}], v95 offset:{i * 1024}", i)
            a(f"ds_read_b64_tr_b16 v[{70 + 4 * i}:{71 + 4 * i}], v95 offset:{i * 1024 + 512}", i)
        a(f"s_add_u32 s3, s{sD0}, s{sD2}")
        for i in range(4):
            a.wait(lg=i)
            self.st(68 + 4 * i, 4, vL16, SWS, sD0 if i < 2 else 3, imm=(i & 1) * 1024, mods="sc1")
        a.wait(vm="xs")
        self.unpack(112, 48, 8)
        a(f"s_and_b32 s3, s{sW}, 1")
        a(f"s_lshl_b32 s{sT}, s3, 5")
        a(f"s_lshl_b32 s3, s{sM}, 1")
        a(f"s_add_u32 s{sT}, s{sT}, s3")
        a(f"s_lshr_b32 s3, s{sW}, 1")
        a(f"s_add_u32 s{sT}, s{sT}, s3")
        a(f"s_lshl_b32 s{sT}, s{sT}, 11")
        a(f"s_add_u32 s{sT}, s{sT}, {MODE}")
        a(f"v_lshlrev_b32 v84, 5, v{vL}")
        a(f"v_and_b32 v85, 31, v{vL}")
        a(f"v_lshlrev_b32 v85, 4, v85")
        a(f"s_lshl_b32 s{sT + 1}, s{sGW}, 9")
        a(f"s_add_u32 s{sT + 1}, s{sT + 1}, {ST1}")
        a(f"v_and_b32 v86, 15, v{vL}")
        a(f"v_lshlrev_b32 v86, 7, v86")
        a(f"s_lshl_b32 s{sT + 2}, s{sG}, 11")
        a(f"s_add_u32 s{sT + 2}, s{sT + 2}, {ST1}")
        self.stamp("prepoll")

        def loads():
            self.ld(96, 4, 84, SWS, sT, mods="sc1")
            self.ld(100, 4, 84, SWS, sT, imm=16, mods="sc1")
            self.ld(104, 4, 85, SWS, sT + 1, mods="sc1")
            self.ld(108, 1, 86, SWS, sT + 2, imm=4, mods="sc1")

        def check():
            a(f"v_and_b32 v109, -16, v108")
            a(f"v_and_b32 v105, -16, v105")
            a(f"v_xor_b32 v109, s{sTAG}, v109")
            for r in (97, 99, 101, 103, 105, 107):
                a(f"v_bitop3_b32 v109, v109, v{r}, s{sTAG} bitop3:0xf6")
            a("v_cmp_ne_u32 vcc, 0, v109")
        self.poll(loads, check)
        self.stamp("modok")
        a(f"v_and_b32 v108, 15, v108")
        a(f"v_cmp_ne_u32 vcc, s{sXCC}, v108")
        a("s_cmp_eq_u64 vcc, 0")
        a(f"s_cselect_b32 s{sFAST}, 1, 0")
        if self.o.get("force_slow"):
            a(f"s_mov_b32 s{sFAST}, 0")
        a(f"s_cmp_lg_u32 s{sFAST}, 0")
        self.csel(sH2, H1, H2X)
        a("v_permlane32_swap_b32 v96, v100")
        a("v_permlane32_swap_b32 v98, v102")
        a("v_add_f32 v96, v96, v100")
        a("v_add_f32 v98, v98, v102")
        a("v_permlane16_swap_b32 v96, v98")
        a("v_add_f32 v96, v96, v98")
        self.ror_add([96], [8, 4])
        self.bf16r(96, 96)
        a(f"s_and_b32 s3, s{sW}, 1")
        a(f"v_cvt_f32_u32 v97, s3")
        a(f"v_add_f32 v96, v96, v97")
        self.bf16r(96, 96)
        a(f"v_and_b32 v97, 3, v{vL}")
        a(f"v_lshlrev_b32 v97, 2, v97")
        a(f"v_lshrrev_b32 v98, 5, v{vL}")
        a(f"v_lshl_add_u32 v97, v98, 1, v97")
        a(f"v_bfe_u32 v99, v{vL}, 4, 1")
        a(f"v_add_u32 v97, v97, v99")
        a(f"s_lshl_b32 s3, s3, 5")
        a(f"s_lshr_b32 s{sT}, s{sW}, 1")
        a(f"s_lshl_b32 s{sT}, s{sT}, 4")
        a(f"s_add_u32 s3, s3, s{sT}")
        a(f"v_add_u32 v97, s3, v97")
        a(f"v_lshlrev_b32 v97, 2, v97")
        a(f"v_add_u32 v97, {L_GS}, v97")
        a(f"ds_write_b32 v97, v96")
        a(f"v_lshlrev_b32 v98, 5, v98")
        a(f"v_add_u32 v98, {L_GS}, v98")
        a("v_mul_f32 v104, v104, v106")
        for i in range(16):
            a(f"v_fma_f32 v{112 + i}, v{112 + i}, v106, -v104")
        a.wait(lg=0)
        a("s_barrier")
        for s in range(2):
            for q in range(2):
                a(f"ds_read_b128 v[{32 + 8 * s + 4 * q}:{35 + 8 * s + 4 * q}], v98 offset:{128 + s * 64 + q * 16}", ("g", s))
                a(f"ds_read_b128 v[{48 + 8 * s + 4 * q}:{51 + 8 * s + 4 * q}], v98 offset:{s * 64 + q * 16}", ("g", s))
        a(f"v_mov_b32 v{vA1}, s{sTAG}")
        a(f"v_mov_b32 v{vA0}, 0")
        a(f"s_lshl_b32 s3, s{sP}, 2")
        a(f"s_add_u32 s3, s3, {F_PREP}")
        a(f"s_cmp_eq_u32 s{sW}, 0")
        a(f"s_cselect_b32 s3, s3, 0x7f000000")
        self.flag_store(3, "sc1")
        for s in range(2):
            a.wait(lg=[("g", s)])
            for i in range(8):
                a(f"v_fma_f32 v{112 + 8 * s + i}, v{112 + 8 * s + i}, v{32 + 8 * s + i}, v{48 + 8 * s + i}")
            for i in range(4):
                a(f"v_cvt_pk_bf16_f32 v{64 + 4 * s + i}, v{112 + 8 * s + 2 * i}, v{113 + 8 * s + 2 * i}")
        a(f"s_lshl_b32 s3, s{sM}, 2")
        a(f"s_add_u32 s3, s3, s{sT + 5}")

        def emit(mods):
            self.st(64, 4, vL16, SWS, sT + 4, mods=mods)
            self.st(68, 4, vL16, SWS, sT + 4, imm=1024, mods=mods)
            a.wait(vm=0)
            self.flag_store(3, mods)
        self.local_stores(emit)
        self.stamp("h1pub")

    def wtile_dmas(self, us, which, tag):
        a, out = self.a, []
        tiles = {"kv": ((L_WK, 1024), (L_WV, 2048)), "q": ((L_WQ, 0),)}[which]
        for u in us:
            for base, col in tiles:
                def f(u=u, base=base, col=col):
                    a(f"s_add_u32 s3, s{sWQO}, {u * 64 * 3072 + col}")
                    a(f"s_add_u32 m0, s{sWQL}, {base + u * 4096}")
                    self.dma(self.vWR, SWQ, 3, tag=tag)
                out.append(f)
        return out

    def xloads(self, X, sreg):
        out = []
        self.a.seen -= {("x", s) for s in range(32)}
        for s in range(32):
            def f(s=s):
                if s and s % 4 == 0:
                    self.a(f"s_add_u32 s{sreg}, s{sreg}, 4096")
                self.ld(X + 4 * s, 4, vL16, SWS, sreg, imm=(s % 4) * 1024, mods="sc1", tag=("x", s))
            out.append(f)
        return out

    def take(self, n):
        for _ in range(n):
            if self.bg:
                self.bg.pop(0)[1]()

    def take_until(self, name):
        while any(k == name for k, _ in self.bg):
            self.bg.pop(0)[1]()

    def touch_addr_ops(self, dst):
        o = []
        o.append(f"s_lshl_b32 s{sT}, s{sGW}, 15")
        o.append(f"s_lshl_b32 s{sT + 6}, s{sM}, 11")
        o.append(f"s_add_u32 s{sT}, s{sT}, s{sT + 6}")
        o.append(f"s_add_u32 s{sT}, s{sT}, {OO}")
        o.append(f"s_lshl_b32 s{sT + 1}, s{sG}, 2")
        o.append(f"s_add_u32 s{sT + 1}, s{sT + 1}, 3")
        o.append(f"s_sub_u32 s{sT + 1}, s{sT + 1}, s{sW}")
        o.append(f"s_lshl_b32 s{sT + 1}, s{sT + 1}, 15")
        o.append(f"s_add_u32 s{sT + 1}, s{sT + 1}, s{sT + 6}")
        o.append(f"s_add_u32 s{sT + 1}, s{sT + 1}, {OO + 1024 - 8 * 128}")
        o.append(f"s_lshl_b32 s{sT + 2}, s{sG}, 2")
        o.append(f"s_add_u32 s{sT + 2}, s{sT + 2}, s{sRT}")
        o.append(f"s_lshl_b32 s{sT + 2}, s{sT + 2}, 13")
        o.append(f"s_lshr_b32 s{sT + 6}, s{sF0}, 6")
        o.append(f"s_lshl_b32 s{sT + 6}, s{sT + 6}, 10")
        o.append(f"s_add_u32 s{sT + 2}, s{sT + 2}, s{sT + 6}")
        o.append(f"s_add_u32 s{sT + 2}, s{sT + 2}, {ST2 - 16 * 128}")
        o.append(f"s_lshl_b32 s{sT + 3}, s{sG}, 9")
        o.append(f"s_add_u32 s{sT + 3}, s{sT + 3}, {F_O - 24 * 128}")
        o.append(f"s_lshl_b32 s{sT + 4}, s{sG}, 8")
        o.append(f"s_add_u32 s{sT + 5}, s{sT + 4}, {F_HID - 30 * 128}")
        o.append(f"s_add_u32 s{sT + 4}, s{sT + 4}, {F_H2 - 28 * 128}")
        o.append(f"v_mov_b32 v{dst}, s{sT + 5}")
        o.append(f"v_and_b32 v{vA0}, 31, v{vL}")
        for lim, sreg in ((30, sT + 4), (28, sT + 3), (24, sT + 2), (16, sT + 1), (8, sT)):
            o.append(f"v_cmp_gt_u32 vcc, {lim}, v{vA0}")
            o.append(f"v_mov_b32 v{vA2}, s{sreg}")
            o.append("s_nop 0")
            o.append(f"v_cndmask_b32 v{dst}, v{dst}, v{vA2}, vcc")
        o.append(f"v_lshl_add_u32 v{dst}, v{vA0}, 7, v{dst}")
        return o

    def setup_background(self):
        o = []
        o.append(f"s_lshl_b32 s{sWO}, s{sF0}, 10")
        o.append(f"s_add_u32 s{sWO}, s{sWO}, {WOF}")
        o.append(f"s_lshr_b32 s{sW2}, s{sF0}, 5")
        o.append(f"s_mul_i32 s{sW2}, s{sW2}, {86 * 1024}")
        o.append(f"s_add_u32 s{sW2}, s{sW2}, {W2F}")
        o.append(f"s_mul_i32 s{sFT0}, s{sM}, 3")
        o.append(f"s_lshl_b32 s{sW1}, s{sM}, 1")
        o.append(f"s_add_u32 s{sW1}, s{sW1}, 11")
        o.append(f"s_min_u32 s{sFT0}, s{sFT0}, s{sW1}")
        o.append(f"s_lshl_b32 s{sW1}, s{sFT0}, 15")
        o.append(f"s_lshl_b32 s{sW4K}, s{sW}, 12")
        o.append(f"s_add_u32 s{sW1}, s{sW1}, s{sW4K}")
        o.append(f"s_add_u32 s{sW1}, s{sW1}, {W1F}")
        o.append(f"s_add_u32 s{sW1C}, s{sW1}, 65536")
        o.append(f"s_cmp_ge_u32 s{sM}, 11\ns_cselect_b32 s{sW1C}, 0x7f000000, s{sW1C}")
        o.append(f"s_mul_i32 s{sHID}, s{sGW}, {86 * 1024}")
        o.append(f"s_lshl_b32 s{sLATE}, s{sFT0}, 11")
        o.append(f"s_add_u32 s{sHID}, s{sHID}, s{sLATE}")
        o.append(f"s_add_u32 s{sHID}, s{sHID}, {HID}")
        return o

    def w1_dmas(self, us):
        a, out = self.a, []
        for u in us:
            for f in range(4):
                def g(u=u, f=f):
                    if f == 0:
                        a(f"s_add_u32 s{sBG}, s{sW1 if u < 4 else sW1C}, {(u % 4) * 16384}")
                    a(f"s_add_u32 m0, s{sW4K}, {L_W1 + u * 16384}")
                    self.dma(vL16, SWS, sBG, imm=f * 1024, mods="sc1", tag="w1")
                out.append(g)
        return out

    def g1(self):
        a = self.a
        X, WR, ACK, ACV, ACQ = 128, 32, 96, 112, 80
        nu = self.o.get("nu", 4)
        a(f"v_and_b32 v{vA0}, 15, v{vL}")
        a(f"v_lshlrev_b32 v{vA0}, 2, v{vA0}")
        a(f"s_lshl_b32 s{sT + 8}, s{sGW}, 15")
        a(f"s_add_u32 s{sT + 8}, s{sT + 8}, {H1}")

        def rd(tile_base, s, dst, tag):
            v, off = (vTR, tile_base) if tile_base < 65536 else (vTR2, tile_base - 65536)
            a(f"ds_read_b64_tr_b16 v[{dst}:{dst + 1}], v{v} offset:{off + s * 1024}", tag)
            a(f"ds_read_b64_tr_b16 v[{dst + 2}:{dst + 3}], v{v} offset:{off + s * 1024 + 256}", tag)

        wk = lambda s: WR + 8 * (s % 4)
        wv = lambda s: WR + 8 * (s % 4) + 4
        for s in range(2):
            rd(L_WK, s, wk(s), ("k", s))
            rd(L_WV, s, wv(s), ("v", s))
        self.poll_flags(vA0, sT + 5)
        self.stamp("h1ok")
        xl = self.xloads(X, sT + 8)
        ahead = self.o.get("xahead", 6)
        for _ in range(ahead):
            xl.pop(0)()
        rest = self.wtile_dmas(range(nu, 8), "kv", "wkv1") + self.wtile_dmas(range(8), "q", "wq")
        fill = self.touch_addr_ops(vA1) + self.setup_background()
        for s in range(32):
            a.wait(vm=[("x", s)], lg=[("k", s)])
            c = "0" if s == 0 else vr(ACK, 16)
            a(f"v_mfma_f32_32x32x16_bf16 {vr(ACK, 16)}, {vr(wk(s), 4)}, {vr(X + 4 * s, 4)}, {c}")
            if s + 2 == 4 * nu and nu < 8:
                a.wait(vm="wkv1")
                a("s_barrier")
            if xl:
                xl.pop(0)()
            if s + 2 < 32:
                rd(L_WK, s + 2, wk(s + 2), ("k", s + 2))
            a.wait(lg=[("v", s)])
            c = "0" if s == 0 else vr(ACV, 16)
            a(f"v_mfma_f32_32x32x16_bf16 {vr(ACV, 16)}, {vr(X + 4 * s, 4)}, {vr(wv(s), 4)}, {c}")
            if rest:
                rest.pop(0)()
            else:
                for _ in range(4):
                    if fill:
                        a(fill.pop(0))
            if s + 2 < 32:
                rd(L_WV, s + 2, wv(s + 2), ("v", s + 2))
        assert not rest
        while fill:
            a(fill.pop(0))
        self.stamp("pass1")
        a(f"s_lshl_b32 s{sT}, s{sP}, 2")
        a(f"s_add_u32 s{sT}, s{sT}, s{sW}")
        a(f"s_lshl_b32 s{sT + 1}, s{sT}, 2")
        a(f"s_add_u32 s{sT + 1}, s{sT + 1}, {F_KV}")
        a(f"s_lshl_b32 s{sT}, s{sT}, 12")
        a(f"s_add_u32 s{sT}, s{sT}, {KV}")
        a(f"s_lshl_b32 s3, s{sW}, 12")
        a(f"s_add_u32 s3, s3, {L_KV + 8 * 4096}")
        a(f"v_add_u32 v{vA0}, s3, v{vL16}")
        a(f"s_mov_b32 s{sT + 2}, {F_PREP}")
        a.wait(vm="wq")
        a("s_barrier")
        wq = lambda s: WR + 4 * (s % 4)
        for s in range(3):
            rd(L_WQ, s, wq(s), ("q", s))
        fill = []
        for f in range(4):
            src = ACK + 8 * f
            fill += [f"v_cvt_pk_bf16_f32 v{64 + 4 * f + i}, v{src + 2 * i}, v{src + 2 * i + 1}" for i in range(4)]
            fill.append(lambda f=f: self.st(64 + 4 * f, 4, vL16, SWS, sT, imm=f * 1024, mods="sc1", tag="kv"))
        fill.append(lambda: self.ld(vQA, 4, vL16, SWS, sT + 2, mods="sc1", tag="prepf"))
        fill.append(lambda: self.ld(vA2, 1, vA1, SWS, "0", mods="sc1", tag="opt"))
        fill += [f"ds_write_b128 v{vA0}, {vr(64 + 4 * f, 4)} offset:{f * 1024}" for f in range(4)]
        fill += self.attn_setup()
        self.bg = [("wo", f) for f in self.wfrag_loads(sWO, 0, 32, "a", "wo")]
        sflag = self.o.get("sflag", 16)
        for s in range(32):
            a.wait(lg=[("q", s)])
            c = "0" if s == 0 else vr(ACQ, 16)
            a(f"v_mfma_f32_32x32x16_bf16 {vr(ACQ, 16)}, {vr(wq(s), 4)}, {vr(X + 4 * s, 4)}, {c}")
            if s + 3 < 32:
                rd(L_WQ, s + 3, wq(s + 3), ("q", s + 3))
            for _ in range(5 if s < 6 else 3):
                if fill:
                    f = fill.pop(0)
                    a(f) if isinstance(f, str) else f()
            if s == sflag:
                a(f"v_mov_b32 v{vQB}, s{sTAG}")
                a(f"v_mov_b32 v{vQB + 1}, 0")
                a.wait(vm="prepf")
                a("s_mov_b64 exec, 1")
                self.st(vQB, 1, vQB + 1, SWS, sT + 1, mods="sc1")
                a("s_mov_b64 exec, -1")

                def check():
                    a(f"v_xor_b32 v{vQB + 2}, s{sTAG}, v{vQA}")
                    for r in range(1, 4):
                        a(f"v_bitop3_b32 v{vQB + 2}, v{vQB + 2}, v{vQA + r}, s{sTAG} bitop3:0xf6")
                    a(f"v_cmp_ne_u32 s[{sT + 4}:{sT + 5}], 0, v{vQB + 2}")
                check()
                a(f"s_cmp_eq_u64 s[{sT + 4}:{sT + 5}], 0")
                a("s_cbranch_scc1 L_prep_seen")
                snap = a.snapshot()

                def check2():
                    a(f"s_mov_b64 s[{sT + 6}:{sT + 7}], vcc")
                    check()
                    a(f"s_mov_b64 vcc, s[{sT + 4}:{sT + 5}]")
                a(f"s_mov_b64 s[{sT + 8}:{sT + 9}], vcc")
                self.poll(lambda: self.ld(vQA, 4, vL16, SWS, sT + 2, mods="sc1"), check2)
                a(f"s_mov_b64 vcc, s[{sT + 8}:{sT + 9}]")
                a.restore(snap)
                a.L("L_prep_seen")
            if s > sflag and s % 2 == 1:
                self.take(1)
        while fill:
            f = fill.pop(0)
            a(f) if isinstance(f, str) else f()
        a(f"s_sub_u32 s3, 3, s{sW}")
        a(f"s_lshl_b32 s3, s3, 10")
        a(f"s_add_u32 s3, s3, {L_QX}")
        a(f"v_add_u32 v{vA0}, s3, v{vL16}")
        a(f"s_lshl_b32 s3, s{sW}, 10")
        a(f"s_add_u32 s3, s3, {L_QX}")
        a(f"v_add_u32 v{vA1}, s3, v{vL16}")
        self.attn_addresses()
        sc = fbits(0.25 * LOG2E)
        for i in list(range(8, 16)) + list(range(8)):
            a(f"v_mul_f32 v{ACQ + i}, {sc}, v{ACQ + i}")
        for i in range(4):
            a(f"v_cvt_pk_bf16_f32 v{vQB + i}, v{ACQ + 8 + 2 * i}, v{ACQ + 9 + 2 * i}")
        a(f"ds_write_b128 v{vA0}, {vr(vQB, 4)}")
        for i in range(4):
            a(f"v_cvt_pk_bf16_f32 v{vQA + i}, v{ACQ + 2 * i}, v{ACQ + 1 + 2 * i}")
        a.wait(lg=0)
        a("s_barrier")
        a(f"ds_read_b128 {vr(vQB, 4)}, v{vA1}", "qb")
        self.stamp("pass2")

    MD, MF = 48, 16
    S0, OA, OB = 64, 96, 112
    KR, VR, PR = 128, 136, 160
    vKVB, vONE, vVA, vVB = 176, 177, 180, 192
    XR = 204
    MLR = 212

    def attn_setup(self):
        out = []
        t0, t1 = 112, 113
        out.append(f"v_and_b32 v{t0}, 31, v{vL}")
        out.append(f"v_lshrrev_b32 v{t1}, 5, v{vL}")
        out.append(f"v_lshlrev_b32 v{t1}, 2, v{t1}")
        out.append(f"v_sub_u32 v{t0}, v{t0}, v{t1}")
        out.append(f"v_mov_b32 v{t1}, {fbits(-1e30)}")
        for r in range(16):
            key = 8 * (r >> 2) + (r & 3)
            out.append(f"v_cmp_le_i32 vcc, {key}, v{t0}")
            out.append(f"v_cndmask_b32 v{self.MD + r}, v{t1}, 0, vcc"
                       .replace("v_cndmask_b32", "v_cndmask_b32_e64"))
            out.append(f"v_sub_f32 v{self.MF + r}, v{t1}, v{self.MD + r}")
        return out

    def attn_addresses(self):
        a = self.a
        t = self.vONE + 1
        a(f"v_add_u32 v{self.vKVB}, {L_KV}, v{vL16}")
        a(f"v_mov_b32 v{self.vONE}, {L_GS - 2048}")
        a(f"v_and_b32 v{t}, 16, v{vL}")
        a(f"v_cmp_eq_u32 vcc, 0, v{t}")
        for i in range(4):
            a(f"v_mov_b32 v{self.PR + i}, 0x3f803f80")
        a(f"ds_write_b128 v{self.vONE}, {vr(self.PR, 4)} offset:2048")
        a(f"ds_write_b128 v{self.vONE}, {vr(self.PR, 4)} offset:3072")
        for b in range(12):
            a(f"v_add_u32 v{t + b % 2}, {b * 4096}, v{self.vKVB}")
            a(f"v_cndmask_b32 v{self.vVA + b}, v{self.vONE}, v{t + b % 2}, vcc")
            a(f"v_cndmask_b32 v{self.vVB + b}, v{t + b % 2}, v{self.vONE}, vcc")

    def attn_items(self, items, first, quota=0):
        a = self.a
        first = set(first)
        n = len(items)
        S = lambda i: self.S0 + 16 * (i % 2)
        P = lambda i: self.PR + 8 * (i % 2)
        K = lambda i: self.KR + 4 * (i % 2)
        V = lambda i: self.VR + 8 * (i % 3)

        def ldk(i):
            u, b, _ = items[i]
            a(f"ds_read_b128 {vr(K(i), 4)}, v{self.vKVB} offset:{b * 4096 + u * 1024}", ("K", i))

        def ldv(i):
            u, b, _ = items[i]
            va = (self.vVB if u else self.vVA) + b
            a(f"ds_read_b128 {vr(V(i), 4)}, v{va} offset:2048", ("V", i))
            a(f"ds_read_b128 {vr(V(i) + 4, 4)}, v{va} offset:3072", ("V", i))

        def qk(i):
            u, _, mask = items[i]
            c = {None: "0", "d": vr(self.MD, 16), "f": vr(self.MF, 16)}[mask]
            a.wait(lg=[("K", i)])
            a(f"v_mfma_f32_32x32x16_bf16 {vr(S(i), 16)}, {vr(K(i), 4)}, {vr(vQB if u else vQA, 4)}, {c}")

        def pv(i, half):
            u = items[i][0]
            o = vr(self.OB if u else self.OA, 16)
            c = o
            if half == 0:
                a.wait(lg=[("V", i)])
                if u in first:
                    first.discard(u)
                    c = "0"
            a(f"v_mfma_f32_32x32x16_bf16 {o}, {vr(V(i) + 4 * half, 4)}, {vr(P(i) + 4 * half, 4)}, {c}")

        ex = lambda i, r: a(f"v_exp_f32 v{S(i) + r}, v{S(i) + r}")
        cv = lambda i, k: a(f"v_cvt_pk_bf16_f32 v{P(i) + k}, v{S(i) + 2 * k}, v{S(i) + 2 * k + 1}")

        ldk(0)
        if n > 1:
            ldk(1)
        ldv(0)
        a.wait(lg="qb")
        qk(0)
        for i in range(n):
            if i + 1 < n:
                qk(i + 1)
            ex(i, 0)
            if i + 2 < n:
                ldk(i + 2)
            ex(i, 1)
            if i + 1 < n:
                ldv(i + 1)
            ex(i, 2)
            ex(i, 3)
            if i:
                pv(i - 1, 0)
            for r in range(4, 16):
                ex(i, r)
                slots = (5, 13, 9, 7, 11)
                if r == 4:
                    per = min(-(-quota // (n - i)), len(slots))
                if r in slots[:per]:
                    self.take(1)
                    quota -= 1
                if r % 2 == 1:
                    cv(i, (r - 5) // 2)
                if r == 8 and i:
                    pv(i - 1, 1)
            cv(i, 6)
            cv(i, 7)
        pv(n - 1, 0)
        pv(n - 1, 1)
        self.take(quota)

    def fallback(self, u):
        a = self.a
        S, P, K, V = self.S0, self.PR, self.KR, self.VR
        O = self.OB if u else self.OA
        Q = vQB if u else vQA
        vM, vKA, vVAd = self.S0 + 16, self.S0 + 17, self.S0 + 18
        sB, sE, sQB = sT, sT + 1, sT + 2
        if u:
            a(f"s_sub_u32 s{sQB}, 3, s{sW}")
        else:
            a(f"s_mov_b32 s{sQB}, s{sW}")
        a(f"s_add_u32 s{sE}, s{sQB}, 8")
        a(f"v_mov_b32 v{vM}, {fbits(-3e38)}")
        for r in range(16):
            a(f"v_mov_b32 v{O + r}, 0")
        a(f"v_and_b32 v{vA0}, 16, v{vL}")
        a(f"v_cmp_{'ne' if u else 'eq'}_u32 s[{sT + 4}:{sT + 5}], 0, v{vA0}")
        for ps in range(2):
            top, nd, nf = a.newlabel("fb"), a.newlabel("fbd"), a.newlabel("fbf")
            a(f"s_lshl_b32 s3, s{sG}, 2")
            a(f"s_sub_i32 s3, 8, s3")
            a(f"s_max_i32 s{sB}, s3, s{sQB}")
            a.L(top)
            a(f"s_lshl_b32 s3, s{sB}, 12")
            a(f"v_add_u32 v{vKA}, s3, v{self.vKVB}")
            a(f"v_cndmask_b32_e64 v{vVAd}, v{self.vONE}, v{vKA}, s[{sT + 4}:{sT + 5}]")
            a(f"ds_read_b128 {vr(K, 4)}, v{vKA} offset:{u * 1024}")
            a(f"ds_read_b128 {vr(V, 4)}, v{vVAd} offset:2048")
            a(f"ds_read_b128 {vr(V + 4, 4)}, v{vVAd} offset:3072")
            a.wait(lg=0)
            a(f"v_mfma_f32_32x32x16_bf16 {vr(S, 16)}, {vr(K, 4)}, {vr(Q, 4)}, 0")
            a("s_nop 11")
            a(f"s_cmp_eq_u32 s{sB}, s{sE}")
            a(f"s_cbranch_scc0 {nd}")
            for r in range(16):
                a(f"v_add_f32 v{S + r}, v{S + r}, v{self.MD + r}")
            a.L(nd)
            a(f"s_cmp_eq_u32 s{sB}, s{sQB}")
            a(f"s_cbranch_scc0 {nf}")
            for r in range(16):
                a(f"v_add_f32 v{S + r}, v{S + r}, v{self.MF + r}")
            a.L(nf)
            if ps == 0:
                for r in range(0, 16, 2):
                    a(f"v_max3_f32 v{vM}, v{S + r}, v{S + r + 1}, v{vM}")
            else:
                for r in range(16):
                    a(f"v_sub_f32 v{S + r}, v{S + r}, v{vM}")
                for r in range(16):
                    a(f"v_exp_f32 v{S + r}, v{S + r}")
                for k in range(8):
                    a(f"v_cvt_pk_bf16_f32 v{P + k}, v{S + 2 * k}, v{S + 2 * k + 1}")
                for half in range(2):
                    a(f"v_mfma_f32_32x32x16_bf16 {vr(O, 16)}, {vr(V + 4 * half, 4)}, {vr(P + 4 * half, 4)}, {vr(O, 16)}")
            a(f"s_add_u32 s{sB}, s{sB}, 1")
            a(f"s_cmp_le_u32 s{sB}, s{sE}")
            a(f"s_cbranch_scc1 {top}")
            if ps == 0:
                a(f"v_mov_b32 v{vKA}, v{vM}")
                a(f"v_permlane32_swap_b32 v{vM}, v{vKA}")
                a(f"v_max_f32 v{vM}, v{vM}, v{vKA}")
        a("s_nop 11")

    def wfrag_loads(self, sreg, dst, n, kind, tag, first=0):
        out = []
        for i in range(n):
            def f(i=i):
                if first + i and i % 4 == 0:
                    self.a(f"s_add_u32 s{sreg}, s{sreg}, 4096")
                self.ld(dst + 4 * i, 4, vL16, SWS, sreg, imm=(i % 4) * 1024, mods="sc1", tag=(tag, first + i), kind=kind)
            out.append(f)
        return out

    def late_loads(self):
        a, LT = self.a, self.MLR
        a(f"v_lshrrev_b32 v{LT + 11}, 1, v{vL}")
        a(f"v_mul_u32_u24 v{LT + 10}, 6144, v{LT + 11}")
        a(f"v_and_b32 v{LT + 12}, 1, v{vL}")
        a(f"v_lshl_add_u32 v{LT + 10}, v{LT + 12}, 4, v{LT + 10}")
        a(f"v_lshlrev_b32 v{LT + 11}, 1, v{LT + 11}")
        a(f"s_and_b32 s{sT + 6}, s{sP}, 7")
        a(f"s_mul_i32 s{sT + 7}, s{sT + 6}, {64 * 6144}")
        a(f"s_lshr_b32 s3, s{sP}, 3")
        a(f"s_lshl_b32 s3, s3, 6")
        a(f"s_lshl_b32 s{sLATE}, s{sW}, 4")
        a(f"s_add_u32 s{sLATE}, s{sLATE}, s3")
        a(f"s_lshl_b32 s3, s{sLATE}, 1")
        a(f"s_add_u32 s{sT + 7}, s{sT + 7}, s3")
        a(f"s_add_u32 s{sT + 7}, s{sT + 7}, 2048")
        a(f"s_add_u32 s{sT + 8}, s{sT + 7}, {32 * 6144}")
        a(f"s_lshl_b32 s{sT + 9}, s{sT + 6}, 7")
        a(f"s_lshl_b32 s{sT + 6}, s{sT + 6}, 11")
        a(f"s_add_u32 s{sLATE}, s{sLATE}, s{sT + 6}")
        a(f"s_lshl_b32 s{sLATE}, s{sLATE}, 2")
        a(f"s_add_u32 s{sLATE}, s{sLATE}, {MODL}")
        return [
            lambda: self.ld(LT, 4, LT + 10, SWM, sT + 7, tag="wl", mods="nt"),
            lambda: self.ld(LT + 4, 4, LT + 10, SWM, sT + 8, tag="wl", mods="nt"),
            lambda: a(f"buffer_load_ushort v{LT + 8}, v{LT + 11}, {sr(SC, 4)}, s{sT + 9} offen", "wl"),
            lambda: a(f"buffer_load_ushort v{LT + 9}, v{LT + 11}, {sr(SC, 4)}, s{sT + 9} offen offset:64", "wl"),
        ]

    def late_partials(self):
        a, LT, T = self.a, self.MLR, 228
        a.wait(vm="wl")
        self.silu_bf16(LT + 10, LT + 8, LT + 12)
        self.silu_bf16(LT + 11, LT + 9, LT + 12)
        self.unpack(T, LT, 4)
        self.unpack(T + 8, LT + 4, 4)
        for i in range(8):
            a(f"v_mul_f32 v{T + i}, v{LT + 10}, v{T + i}")
        for i in range(8):
            a(f"v_fmac_f32 v{T + i}, v{LT + 11}, v{T + 8 + i}")
        self.reduce8(T)
        a(f"v_and_b32 v{LT}, 1, v{vL}")
        a(f"v_lshlrev_b32 v{LT + 1}, 5, v{LT}")
        a(f"v_lshrrev_b32 v{LT}, 5, v{vL}")
        a(f"v_lshl_add_u32 v{LT + 1}, v{LT}, 4, v{LT + 1}")
        a(f"v_bfe_u32 v{LT}, v{vL}, 4, 1")
        a(f"v_lshl_add_u32 v{LT + 1}, v{LT}, 3, v{LT + 1}")
        a(f"s_mov_b32 s{sT + 6}, 0x00030003")
        a(f"s_mov_b32 s{sT + 7}, 0x00030003")
        a(f"s_mov_b64 exec, s[{sT + 6}:{sT + 7}]")
        self.st(T, 2, LT + 1, SWS, sLATE, mods="sc1")
        a("s_mov_b64 exec, -1")

    def variants(self, labels_emit):
        a = self.a
        snap, bg = a.snapshot(), list(self.bg)
        for label, emit, tail in labels_emit:
            a.restore(snap)
            self.bg = list(bg)
            if label:
                a.L(label)
            emit()
            if tail:
                a(f"s_branch {tail}")

    def attention(self):
        a = self.a
        self.bg = [("wl", f) for f in self.late_loads()] + self.bg
        for w in range(1, 4):
            a(f"s_cmp_eq_u32 s{sW}, {w}")
            a(f"s_cbranch_scc1 L_own{w}")

        def own(w):
            ua = [(0, 8 + i, "d" if i == w else None) for i in range(w + 1)]
            ub = [(1, 8 + i, "d" if i == 3 - w else None) for i in range(4 - w)]
            self.attn_items(ua + ub, first=(0, 1), quota=self.o.get("q_own", 15))
        self.variants([(f"L_own{w}" if w else None, lambda w=w: own(w), "L_own_done" if w < 3 else None) for w in range(4)])
        a.L("L_own_done")
        self.stamp("own")
        self.late_partials()
        a(f"s_lshl_b32 s{sT}, s{sP}, 2")
        a(f"s_add_u32 s{sT}, s{sT}, s{sW}")
        a(f"s_sub_u32 s{sT + 1}, s{sT}, 64")
        a(f"s_sub_u32 s{sT + 2}, s{sT}, 128")
        a(f"s_cmp_ge_u32 s{sG}, 1")
        a(f"s_cselect_b32 s{sT + 3}, s{sT + 1}, s{sT}")
        a(f"s_cmp_ge_u32 s{sG}, 2")
        a(f"s_cselect_b32 s{sT + 4}, s{sT + 2}, s{sT}")
        a(f"v_mov_b32 v{vA0}, s{sT + 3}")
        a(f"v_mov_b32 v{vA1}, s{sT + 4}")
        a(f"v_and_b32 v{self.MLR}, 1, v{vL}")
        a(f"v_cmp_eq_u32 vcc, 0, v{self.MLR}")
        a(f"v_cndmask_b32 v{vA0}, v{vA0}, v{vA1}, vcc")
        a(f"v_lshlrev_b32 v{vA0}, 2, v{vA0}")
        a(f"s_mov_b32 s{sT + 5}, {F_KV}")
        for k, (sreg, lim) in enumerate(((sT + 2, 2), (sT + 1, 1))):
            a(f"s_lshl_b32 s{sreg}, s{sreg}, 12")
            a(f"s_add_u32 s{sreg}, s{sreg}, {KV}")
            a(f"s_cmp_ge_u32 s{sG}, {lim}")
            a(f"s_cselect_b32 s{sreg}, s{sreg}, 0x7f000000")
        self.poll_flags(vA0, sT + 5)
        self.stamp("kvok")
        for k, sreg in enumerate((sT + 2, sT + 1)):
            a(f"s_add_u32 m0, s{sW4K}, {L_KV + k * 4 * 4096}")
            for f in range(4):
                self.dma(vL16, SWS, sreg, imm=f * 1024, mods="sc1", tag="rkv")
        a(f"v_and_b32 v{vA0}, 31, v{vL}")
        a(f"v_lshlrev_b32 v{vA0}, 10, v{vA0}")
        a(f"v_lshrrev_b32 v{vA1}, 5, v{vL}")
        a(f"v_lshl_add_u32 v{vA0}, v{vA1}, 4, v{vA0}")
        a(f"s_lshl_b32 s3, s{sG}, 2")
        a(f"s_add_u32 s3, s3, s{sRT}")
        a(f"s_lshl_b32 s3, s3, 15")
        a(f"s_lshl_b32 s{sT}, s{sF0}, 1")
        a(f"s_add_u32 s3, s3, s{sT}")
        self.ld(self.XR, 4, vA0, SX, 3, tag="xr")
        self.ld(self.XR + 4, 4, vA0, SX, 3, imm=32, tag="xr")
        a(f"s_lshl_b32 s{sT}, s{sP}, 2")
        a(f"s_add_u32 s{sT}, s{sT}, {F_LATE}")
        a(f"s_cmp_eq_u32 s{sP}, 0")
        a(f"s_cselect_b32 s3, {WS_E}, 0x7f000000")
        a(f"v_mov_b32 v{vA0}, s{sT}")
        a(f"v_writelane_b32 v{vA0}, s3, 1")
        a(f"s_cmp_eq_u32 s{sW}, 0")
        a(f"s_cselect_b32 s{sT}, 0, 0x7f000000")
        a(f"v_mov_b32 v{vA1}, s{sTAG}")
        self.bg += [("w1", f) for f in self.w1_dmas(range(4))]
        self.w2 = self.wfrag_loads(sW2, 128, 32, "a", "w2") + self.wfrag_loads(sW2, 0, 32, "a", "w2", first=32) \
            + self.wfrag_loads(sW2, 128, 22, "v", "w2", first=64)
        self.bg += [("w2a", f) for f in self.w2[:32]]
        a.wait(vm="rkv")
        a("s_barrier")
        self.flag_store(sT, "sc1", lanes=2)
        self.stamp("kvin")
        a(f"s_cmp_eq_u32 s{sG}, 0")
        a("s_cbranch_scc1 L_rem_g0")
        a(f"s_cmp_eq_u32 s{sG}, 1")
        a("s_cbranch_scc1 L_rem_g1")
        for w in range(1, 4):
            a(f"s_cmp_eq_u32 s{sW}, {w}")
            a(f"s_cbranch_scc1 L_rem{w}")
        q = self.o.get("q_rem", 32)

        def rem(w):
            ua = [(0, b, "f" if b == w else None) for b in range(w, 8)]
            ub = [(1, b, "f" if b == 3 - w else None) for b in range(3 - w, 8)]
            self.attn_items(ua + ub, first=(), quota=q)
        self.variants([(f"L_rem{w}" if w else None, lambda w=w: rem(w), "L_rem_done") for w in range(4)]
                      + [("L_rem_g1", lambda: self.attn_items([(u, b, None) for u in range(2) for b in range(4, 8)],
                                                              first=(), quota=q), "L_rem_done"),
                         ("L_rem_g0", lambda: self.take(q), None)])
        a.L("L_rem_done")
        self.take_until("w1")
        a(f"s_mov_b32 s{sT + 10}, {F_LATE}")
        self.ld(self.MLR, 4, vL16, SWS, sT + 10, mods="sc1")
        self.stamp("attn")
        lo, hi = fbits(2.0 ** -60), fbits(2.0 ** 60)
        for u, (O, lreg) in enumerate(((self.OA, self.OA + 8), (self.OB, self.OB))):
            ok = a.newlabel("ok")
            a(f"v_cmp_lt_f32 vcc, {lo}, v{lreg}")
            a(f"s_mov_b64 s[{sT}:{sT + 1}], vcc")
            a(f"v_cmp_gt_f32 vcc, {hi}, v{lreg}")
            a(f"s_and_b64 s[{sT}:{sT + 1}], s[{sT}:{sT + 1}], vcc")
            if self.o.get("force_fallback"):
                a(f"s_mov_b64 s[{sT}:{sT + 1}], 0")
            a(f"s_cmp_eq_u64 s[{sT}:{sT + 1}], -1")
            a(f"s_cbranch_scc1 {ok}")
            self.fallback(u)
            a.L(ok)
        a(f"v_rcp_f32 v{self.OA + 9}, v{self.OA + 8}")
        a(f"v_rcp_f32 v{self.OB + 1}, v{self.OB}")
        for i in range(8):
            a(f"v_mul_f32 v{self.OA + i}, v{self.OA + i}, v{self.OA + 9}")
        for i in range(4):
            a(f"v_cvt_pk_bf16_f32 v{64 + i}, v{self.OA + 2 * i}, v{self.OA + 2 * i + 1}")
        for i in range(8):
            a(f"v_mul_f32 v{self.OB + 8 + i}, v{self.OB + 8 + i}, v{self.OB + 1}")
        for i in range(4):
            a(f"v_cvt_pk_bf16_f32 v{68 + i}, v{self.OB + 8 + 2 * i}, v{self.OB + 9 + 2 * i}")
        a(f"s_lshl_b32 s{sT}, s{sGW}, 5")
        a(f"s_lshl_b32 s3, s{sM}, 1")
        a(f"s_add_u32 s{sT}, s{sT}, s3")
        a(f"s_lshl_b32 s{sT + 1}, s{sG}, 2")
        a(f"s_add_u32 s{sT + 1}, s{sT + 1}, 3")
        a(f"s_sub_u32 s{sT + 1}, s{sT + 1}, s{sW}")
        a(f"s_lshl_b32 s{sT + 1}, s{sT + 1}, 5")
        a(f"s_add_u32 s{sT + 1}, s{sT + 1}, s3")
        a(f"s_add_u32 s{sT + 1}, s{sT + 1}, 1")
        a(f"s_sub_u32 s3, s{sT + 1}, s{sT}")
        a(f"v_mul_lo_u32 v{vA0}, s3, v{vL}")
        a(f"v_add_lshl_u32 v{vA0}, v{vA0}, s{sT}, 2")
        a(f"v_mov_b32 v{vA1}, s{sTAG}")
        a(f"s_lshl_b32 s{sT}, s{sT}, 10")
        a(f"s_add_u32 s{sT}, s{sT}, {OO}")
        a(f"s_lshl_b32 s{sT + 1}, s{sT + 1}, 10")
        a(f"s_add_u32 s{sT + 1}, s{sT + 1}, {OO}")
        a(f"s_mov_b32 s{sT + 2}, {F_O}")

        def emit(mods):
            self.st(64, 4, vL16, SWS, sT, mods=mods)
            self.st(68, 4, vL16, SWS, sT + 1, mods=mods)
            a.wait(vm=0)
            self.flag_store(sT + 2, mods, lanes=2)
        self.local_stores(emit)
        self.stamp("opub")

    def g2(self):
        a = self.a
        ACC, XR_, GA = 96, 128, 32
        M = self.MLR
        vML = self.vML = 3

        def check():
            a(f"v_xor_b32 v{vA2}, s{sTAG}, v{M}")
            for r in range(1, 4):
                a(f"v_bitop3_b32 v{vA2}, v{vA2}, v{M + r}, s{sTAG} bitop3:0xf6")
            a(f"v_cmp_ne_u32 vcc, 0, v{vA2}")
        check()
        a("s_cbranch_vccz L_late_seen")
        snap = a.snapshot()
        self.poll(lambda: self.ld(M, 4, vL16, SWS, sT + 10, mods="sc1"), check)
        a.restore(snap)
        a.L("L_late_seen")
        a(f"v_and_b32 v{vA0}, 7, v{vL}")
        a(f"v_lshlrev_b32 v{vA0}, 4, v{vA0}")
        a(f"v_bfe_u32 v{vA2}, v{vL}, 3, 2")
        a(f"v_lshl_add_u32 v{vA0}, v{vA2}, 11, v{vA0}")
        a(f"v_lshrrev_b32 v{vA1}, 5, v{vL}")
        a(f"v_lshl_add_u32 v{vA0}, v{vA1}, 15, v{vA0}")
        a(f"s_lshl_b32 s3, s{sF0}, 2")
        a(f"s_add_u32 s3, s3, {MODL}")
        for k in range(4):
            self.ld(M + 4 * k, 4, vA0, SWS, 3, mods="sc1", tag="ml")
            if k < 3:
                a(f"s_add_u32 s3, s3, 8192")
        a(f"v_permlane32_swap_b32 v{self.XR}, v{self.XR + 2}")
        a(f"v_permlane32_swap_b32 v{self.XR + 1}, v{self.XR + 3}")
        a(f"v_permlane32_swap_b32 v{self.XR + 4}, v{self.XR + 6}")
        a(f"v_permlane32_swap_b32 v{self.XR + 5}, v{self.XR + 7}")
        self.unpack(vX1, self.XR, 8)
        a(f"s_lshl_b32 s3, s{sW}, 9")
        a(f"s_add_u32 s3, s3, {L_ML}")
        a(f"v_lshlrev_b32 v{vML}, 4, v{vA1}")
        a(f"v_add_u32 v{vML}, s3, v{vML}")
        vMW = M + 16
        a(f"v_and_b32 v{vMW}, 31, v{vL}")
        a(f"v_lshlrev_b32 v{vMW}, 4, v{vMW}")
        a(f"v_lshl_add_u32 v{vMW}, v{vA1}, 2, v{vMW}")
        a(f"v_add_u32 v{vMW}, s3, v{vMW}")
        a(f"v_bfe_u32 v{vA0}, v{vL}, 3, 2")
        a(f"v_cmp_eq_u32 vcc, 2, v{vA0}")
        a(f"v_cndmask_b32_e64 v{vMW + 1}, 0, 1.0, vcc")
        a(f"s_lshl_b32 s{sT}, s{sG}, 2")
        a(f"s_add_u32 s{sT}, s{sT}, s{sRT}")
        a(f"s_lshl_b32 s{sT}, s{sT}, 5")
        a(f"s_lshl_b32 s3, s{sW}, 3")
        a(f"s_add_u32 s{sT}, s{sT}, s3")
        a(f"s_lshl_b32 s{sT + 1}, s{sT}, 2")
        a(f"s_add_u32 s{sT + 1}, s{sT + 1}, {F_O}")
        a(f"s_lshl_b32 s{sT}, s{sT}, 10")
        a(f"s_add_u32 s{sT}, s{sT}, {OO}")
        a(f"v_and_b32 v{vA0}, 7, v{vL}")
        a(f"v_lshlrev_b32 v{vA0}, 2, v{vA0}")
        a(f"s_lshl_b32 s{sT + 2}, s{sW}, 13")
        a("s_barrier")
        self.poll_flags(vA0, sT + 1)
        self.stamp("ook")
        for k in range(2):
            a(f"s_add_u32 m0, s{sT + 2}, {L_OX + k * 4096}")
            for f in range(4):
                self.dma(vL16, SWS, sT, imm=f * 1024, mods="sc1", tag="ox")
            if k == 0:
                a(f"s_add_u32 s{sT}, s{sT}, 4096")
        a(f"v_add_u32 v{vA0}, {L_OX}, v{vL16}")
        for k in range(1, 4):
            for i in range(4):
                a(f"v_add_f32 v{M + i}, v{M + i}, v{M + 4 * k + i}")
        a(f"v_permlane32_swap_b32 v{M}, v{M + 1}")
        a(f"v_permlane32_swap_b32 v{M + 2}, v{M + 3}")
        a(f"v_add_f32 v{M}, v{M}, v{M + 1}")
        a(f"v_add_f32 v{M + 2}, v{M + 2}, v{M + 3}")
        for r in (M, M + 2):
            self.bf16r(r, r)
            a(f"v_add_f32 v{r}, v{r}, v{vMW + 1}")
            self.bf16r(r, r)
        a(f"ds_write_b32 v{vMW}, v{M}")
        a(f"ds_write_b32 v{vMW}, v{M + 2} offset:8")
        for i in range(4):
            a(f"ds_read_b128 {vr(GA + 4 * i, 4)}, v{vML} offset:{32 * i}")
        a.wait(vm="ox")
        a("s_barrier")
        xr = lambda s: XR_ + 4 * (s % 8)
        rd = lambda s: a(f"ds_read_b128 {vr(xr(s), 4)}, v{vA0} offset:{s * 1024}", ("o", s))
        for s in range(6):
            rd(s)
        q = self.o.get("q_g2", 12)
        for s in range(32):
            a.wait(lg=[("o", s)])
            c = "0" if s == 0 else vr(ACC, 16)
            a(f"v_mfma_f32_32x32x16_bf16 {vr(ACC, 16)}, {ar(4 * s, 4)}, {vr(xr(s), 4)}, {c}")
            if s + 6 < 32:
                rd(s + 6)
            if s % 2 == 0 and q > 0:
                self.take(1)
                q -= 1
        self.bg += [("w2b", f) for f in self.w2[32:64]]
        self.stamp("g2")
        for i in range(4):
            a(f"ds_read_b128 {vr(48 + 4 * i, 4)}, v{vML} offset:{128 + 32 * i}")
            a(f"ds_read_b128 {vr(64 + 4 * i, 4)}, v{vML} offset:{256 + 32 * i}")
        a(f"s_lshl_b32 s{sT}, s{sG}, 2")
        a(f"s_add_u32 s{sT}, s{sT}, s{sRT}")
        a(f"s_lshl_b32 s{sT + 1}, s{sT}, 13")
        a(f"s_add_u32 s{sT + 1}, s{sT + 1}, {ST2}")
        a(f"s_lshr_b32 s3, s{sF0}, 6")
        a(f"s_lshl_b32 s3, s3, 10")
        a(f"s_add_u32 s{sT + 3}, s{sT + 1}, s3")
        a(f"s_and_b32 s3, s{sW}, 1")
        a(f"s_lshl_b32 s3, s3, 3")
        a(f"s_add_u32 s{sT + 3}, s{sT + 3}, s3")
        for r in range(16):
            a(f"v_fmac_f32 v{vX1 + r}, v{GA + r}, v{ACC + r}")
        for k in range(8):
            a(f"v_cvt_pk_bf16_f32 v{80 + k}, v{vX1 + 2 * k}, v{vX1 + 2 * k + 1}")
        a(f"s_mov_b32 s3, 0x3f803f80")
        a(f"v_dot2_f32_bf16 v88, v80, s3, 0")
        a(f"v_dot2_f32_bf16 v90, v80, v80, 0")
        for k in range(1, 8):
            a(f"v_dot2_f32_bf16 v88, v{80 + k}, s3, v88")
            a(f"v_dot2_f32_bf16 v90, v{80 + k}, v{80 + k}, v90")
        a(f"v_mov_b32 v89, s{sTAG}")
        a("v_permlane32_swap_b32 v88, v90")
        a("v_add_f32 v88, v88, v90")
        self.local_stores(lambda mods: self.st(88, 2, vL16, SWS, sT + 3, mods=mods))
        self.take(self.o.get("q_st", 0))
        self.unpack(vX1, 80, 8)
        a(f"s_add_u32 s{sT + 4}, s{sT + 1}, 4096")

        def loads():
            for k in range(8):
                self.ld(128 + 4 * k, 4, vL16, SWS, sT + 1 if k < 4 else sT + 4, imm=(k % 4) * 1024, mods="sc1")

        def check():
            a(f"v_xor_b32 v{vA2}, s{sTAG}, v129")
            for r in range(131, 160, 2):
                a(f"v_bitop3_b32 v{vA2}, v{vA2}, v{r}, s{sTAG} bitop3:0xf6")
            a(f"v_cmp_ne_u32 vcc, 0, v{vA2}")
        self.poll(loads, check)
        self.stamp("st2ok")
        for step in (16, 8, 4, 2):
            for r in range(128, 128 + step, 2):
                a(f"v_add_f32 v{r}, v{r}, v{r + step}")
        a("v_mov_b32 v130, v128")
        a("v_permlane32_swap_b32 v128, v130")
        self.ln_finish(128, 130, 129)
        a("v_mul_f32 v128, v128, v130")
        a.wait(lg=0)
        for r in range(16):
            a(f"v_fma_f32 v{80 + r}, v{vX1 + r}, v130, -v128")
        for r in range(16):
            a(f"v_fma_f32 v{80 + r}, v{80 + r}, v{64 + r}, v{48 + r}")
        for k in range(8):
            a(f"v_cvt_pk_bf16_f32 v{64 + k}, v{80 + 2 * k}, v{81 + 2 * k}")
        a(f"s_lshl_b32 s{sT}, s{sT}, 15")
        a(f"s_lshl_b32 s3, s{sF0}, 6")
        a(f"s_add_u32 s{sT}, s{sT}, s3")
        a(f"s_add_u32 s{sT}, s{sT}, s{sH2}")
        a(f"s_lshl_b32 s{sT + 1}, s{sP}, 2")
        a(f"s_add_u32 s{sT + 1}, s{sT + 1}, s{sW}")
        a(f"s_lshl_b32 s{sT + 1}, s{sT + 1}, 2")
        a(f"s_add_u32 s{sT + 1}, s{sT + 1}, {F_H2}")
        a(f"v_mov_b32 v{vA1}, s{sTAG}")
        a(f"v_mov_b32 v{vA0}, 0")

        def emit(mods):
            self.st(64, 4, vL16, SWS, sT, mods=mods)
            self.st(68, 4, vL16, SWS, sT, imm=1024, mods=mods)
            a.wait(vm=0)
            self.flag_store(sT + 1, mods)
        self.local_stores(emit)
        self.stamp("h2pub")

    def silu_ops(self, acc, dst, t):
        out = []
        c = fbits(-LOG2E)
        for k in range(0, 16, 4):
            rr = range(k, k + 4)
            out += [f"v_mul_f32 v{t + r % 4}, {c}, v{acc + r}" for r in rr]
            out += [f"v_exp_f32 v{t + r % 4}, v{t + r % 4}" for r in rr]
            out += [f"v_add_f32 v{t + r % 4}, 1.0, v{t + r % 4}" for r in rr]
            out += [f"v_rcp_f32 v{t + r % 4}, v{t + r % 4}" for r in rr]
            out += [f"v_mul_f32 v{acc + r}, v{acc + r}, v{t + r % 4}" for r in rr]
            out += [f"v_cvt_pk_bf16_f32 v{dst + r // 2}, v{acc + r}, v{acc + r + 1}" for r in (k, k + 2)]
        return out

    def g3(self):
        a = self.a
        X, WR, ACC, T, HP = 128, 32, 64, 112, 116
        vB2 = vTR
        w1c = self.w1_dmas(range(4, 6))
        for _ in range(self.o.get("q_w1c", 8)):
            w1c.pop(0)()
        a(f"s_lshl_b32 s{sT}, s{sGW}, 6")
        a(f"s_add_u32 s{sT}, s{sT}, {F_H2}")
        a(f"v_and_b32 v{vA0}, 15, v{vL}")
        a(f"v_lshlrev_b32 v{vA0}, 2, v{vA0}")
        a(f"v_add_u32 v{vB2}, 0x10000, v{vL16}")
        a(f"s_lshl_b32 s{sT + 1}, s{sGW}, 15")
        a(f"s_add_u32 s{sT + 1}, s{sT + 1}, s{sH2}")
        a(f"s_cmp_ge_u32 s{sM}, 11")
        a(f"s_cselect_b32 s3, 31, 47")
        a(f"v_min_u32 v{vA1}, s3, v{vL}")
        a(f"v_lshlrev_b32 v{vA1}, 7, v{vA1}")

        def rd(t, s, dst):
            off = L_W1 + (t * 32 + s) * 1024
            v, off = (vL16, off) if off < 65536 else (vB2, off - 65536)
            a(f"ds_read_b128 {vr(dst, 4)}, v{v} offset:{off}", ("w", t, s))

        wr = lambda t, s: WR + 8 * (s % 4) + 4 * t
        for s in range(3):
            rd(0, s, wr(0, s))
            rd(1, s, wr(1, s))
        self.poll_flags(vA0, sT)
        self.stamp("h2ok")
        xl = self.xloads(X, sT + 1)
        for _ in range(self.o.get("xahead", 6)):
            xl.pop(0)()
        extra = [lambda: self.ld(vA2, 1, vA1, SWS, sHID, mods="sc1")] + w1c
        for s in range(32):
            for t in range(2):
                a.wait(vm=[("x", s)] if t == 0 else None, lg=[("w", t, s)])
                c = "0" if s == 0 else vr(ACC + 16 * t, 16)
                a(f"v_mfma_f32_32x32x16_bf16 {vr(ACC + 16 * t, 16)}, {vr(wr(t, s), 4)}, {vr(X + 4 * s, 4)}, {c}")
                if t == 0:
                    if xl:
                        xl.pop(0)()
                    else:
                        self.take(1)
                elif extra and s >= self.o.get("s_hidpt", 20):
                    extra.pop(0)()
                if s + 3 < 32:
                    rd(t, s + 3, wr(t, s + 3))
        assert not extra
        a.wait(vm="w1")
        a("s_barrier")
        self.stamp("passA")

        def stores(t):
            def emit(mods):
                so = sHID if t < 2 else sT + 3
                self.st(HP, 4, vL16, SWS, so, imm=(2 * t % 4) * 1024, mods=mods)
                self.st(HP + 4, 4, vL16, SWS, so, imm=(2 * t % 4 + 1) * 1024, mods=mods)
            return lambda: self.local_stores(emit)

        a(f"s_add_u32 s{sT + 3}, s{sHID}, 4096")
        a(f"s_cmp_ge_u32 s{sM}, 11")
        a("s_cbranch_scc1 L_g3_two")
        snap, bg = a.snapshot(), list(self.bg)
        fill = self.silu_ops(ACC, HP, T) + [stores(0)] + self.silu_ops(ACC + 16, HP, T) + [stores(1)]
        w3 = lambda s: WR + 4 * (s % 8)
        for s in range(5):
            rd(2, s, w3(s))
        for s in range(32):
            a.wait(lg=[("w", 2, s)])
            c = "0" if s == 0 else vr(ACC + 32, 16)
            a(f"v_mfma_f32_32x32x16_bf16 {vr(ACC + 32, 16)}, {vr(w3(s), 4)}, {vr(X + 4 * s, 4)}, {c}")
            if s + 5 < 32:
                rd(2, s + 5, w3(s + 5))
            if s % 2 == 0 or len(self.bg) > 32 - s:
                self.take(1)
            if s >= 1:
                per = -(-len(fill) // (32 - s))
                for _ in range(per):
                    f = fill.pop(0)
                    a(f) if isinstance(f, str) else f()
        assert not fill
        for i, f in enumerate(self.silu_ops(ACC + 32, HP, T)):
            a(f)
            if i % 10 == 0:
                self.take(1)
        self.take(99)
        stores(2)()
        a("s_branch L_g3_done")
        a.L("L_g3_two")
        a.restore(snap)
        self.bg = bg
        for t in range(2):
            for i, f in enumerate(self.silu_ops(ACC + 16 * t, HP, T)):
                a(f)
                if i % 6 == 0:
                    self.take(1)
            if t:
                self.take(99)
            stores(t)()
        a.L("L_g3_done")
        self.stamp("g3")
        a(f"s_lshl_b32 s{sT}, s{sGW}, 4")
        a(f"s_add_u32 s{sT}, s{sT}, s{sM}")
        a(f"s_lshl_b32 s{sT}, s{sT}, 2")
        a(f"s_add_u32 s{sT}, s{sT}, {F_HID}")
        a(f"v_mov_b32 v{vA1}, s{sTAG}")
        a(f"v_mov_b32 v{vA0}, 0")
        a.wait(vm=0)
        self.local_stores(lambda mods: self.flag_store(sT, mods))
        self.bg = [("w2c", f) for f in self.w2[64:]]
        self.take(self.o.get("q_hid", 4))
        a("s_barrier")
        self.stamp("hidpub")

    def g4(self):
        a = self.a
        ACC, XR_, GB = 96, 32, 64
        vB2 = vTR
        a(f"s_lshl_b32 s{sT}, s{sG}, 2")
        a(f"s_add_u32 s{sT}, s{sT}, s{sRT}")
        a(f"s_lshl_b32 s{sT + 1}, s{sT}, 6")
        a(f"s_add_u32 s{sT + 1}, s{sT + 1}, {F_HID}")
        a(f"s_mul_i32 s{sT + 2}, s{sT}, {86 * 1024}")
        a(f"s_add_u32 s{sT + 2}, s{sT + 2}, {HID}")
        a(f"s_lshl_b32 s{sT + 3}, s{sW}, 12")
        a(f"v_and_b32 v{vA0}, 15, v{vL}")
        a(f"v_lshlrev_b32 v{vA0}, 2, v{vA0}")
        for i in range(4):
            a(f"ds_read_b128 {vr(GB + 4 * i, 4)}, v{self.vML} offset:{384 + 32 * i}")
        self.poll_flags(vA0, sT + 1)
        self.stamp("hidok")
        a(f"s_add_u32 s{sT + 4}, s{sT + 2}, s{sT + 3}")
        hx = []
        for u in range(5):
            for f in range(4):
                def g(u=u, f=f):
                    if f == 0:
                        a(f"s_add_u32 m0, s{sT + 3}, {L_HX + u * 16384}")
                    self.dma(vL16, SWS, sT + 4, imm=f * 1024, mods="sc1", tag=("hx", u))
                    if f == 3:
                        a(f"s_add_u32 s{sT + 4}, s{sT + 4}, 16384")
                hx.append(g)
        for f in range(2):
            def g(f=f):
                if f == 0:
                    a(f"s_lshl_b32 s3, s{sW}, 11")
                    a(f"s_add_u32 s3, s3, {80 * 1024}")
                    a(f"s_add_u32 m0, s3, {L_HX}")
                    a(f"s_add_u32 s{sT + 4}, s{sT + 2}, s3")
                self.dma(vL16, SWS, sT + 4, imm=f * 1024, mods="sc1", tag=("hx", 5))
            hx.append(g)
        self.bg = [("hx", f) for f in hx] + self.bg
        self.take(self.o.get("hxahead", 8))
        a(f"v_and_b32 v{vA0}, 31, v{vL}")
        a(f"v_lshlrev_b32 v{vA0}, 10, v{vA0}")
        a(f"v_lshrrev_b32 v{vA1}, 5, v{vL}")
        a(f"v_lshl_add_u32 v{vA0}, v{vA1}, 4, v{vA0}")
        a(f"s_lshl_b32 s{sT}, s{sT}, 15")
        a(f"s_lshl_b32 s3, s{sF0}, 1")
        a(f"s_add_u32 s{sT}, s{sT}, s3")

        xr = lambda s: XR_ + 4 * (s % 8)

        def rd(s):
            if s % 16 == 0:
                a.wait(vm=[("hx", s // 16)])
                a("s_barrier")
            off = L_HX + s * 1024
            v, off = (vL16, off) if off < 65536 else (vB2, off - 65536)
            a(f"ds_read_b128 {vr(xr(s), 4)}, v{v} offset:{off}", ("h", s))

        def w2(s):
            if s < 32:
                return ar(128 + 4 * s, 4)
            if s < 64:
                return ar(4 * (s - 32), 4)
            return vr(128 + 4 * (s - 64), 4)
        for s in range(6):
            rd(s)
        for s in range(86):
            a.wait(vm=[("w2", s)], lg=[("h", s)])
            c = "0" if s == 0 else vr(ACC, 16)
            a(f"v_mfma_f32_32x32x16_bf16 {vr(ACC, 16)}, {w2(s)}, {vr(xr(s), 4)}, {c}")
            if s % 2 == 0:
                self.take(1)
            if s + 6 < 86:
                rd(s + 6)
        assert not self.bg
        self.stamp("g4")
        for r in range(16):
            a(f"v_fmac_f32 v{vX1 + r}, v{GB + r}, v{ACC + r}")
        for k in range(8):
            a(f"v_cvt_pk_bf16_f32 v{80 + k}, v{vX1 + 2 * k}, v{vX1 + 2 * k + 1}")
        for p in (80, 84):
            a(f"v_permlane32_swap_b32 v{p}, v{p + 2}")
            a(f"v_permlane32_swap_b32 v{p + 1}, v{p + 3}")
        om = self.o.get("out_mods", "")
        self.st(80, 4, vA0, SOUT, sT, mods=om)
        self.st(84, 4, vA0, SOUT, sT, imm=32, mods=om)
        if self.stamps:
            a.wait(vm=0)
            self.stamp("end")
            a("s_memtime s[100:101]")
            a.wait(lg=0)
            a("s_sub_u32 s100, s100, s98")
            a("v_writelane_b32 v0, s100, 63")
            a(f"s_lshl_b32 s3, s2, 2")
            a(f"s_add_u32 s3, s3, s{sW}")
            a(f"s_lshl_b32 s3, s3, 8")
            a(f"s_add_u32 s3, s3, {STAMP}")
            a(f"v_lshlrev_b32 v{vA0}, 2, v{vL}")
            self.st(0, 1, vA0, SWS, 3)

    def build(self):
        a = self.a
        self.startup()
        self.g1()
        self.attention()
        self.g2()
        self.g3()
        self.g4()
        a.L("L_end")
        a("s_endpgm")
        a.L("L_code_end")
        nops = a.pad()
        head = open(os.path.join(os.path.dirname(os.path.abspath(__file__)), "..", "cdna_kernels", NAME + ".s.ref")).read()
        head = [l for l in head.split("\n") if l.startswith(";") and "@launch" not in l and "Override" not in l
                and "grid=ceil" not in l]
        out = "\n".join(head) + "\n"
        out += f"; @launch grid=(256,1,1) block=(256,1,1) lds={LDS_SIZE}\n"
        out += "; One persistent workgroup per CU; 16 workgroups share a block of 128 tokens and hand their\n"
        out += "; tiles to each other through tagged words in the workspace.\n"
        out += '.amdgcn_target "amdgcn-amd-amdhsa--gfx950"\n.text\n'
        out += f".globl {KERNEL}\n.p2align 8\n.type {KERNEL},@function\n{KERNEL}:\n"
        out += a.text()
        out += f""".section .rodata,"a"
.p2align 6
.amdhsa_kernel {KERNEL}
  .amdhsa_next_free_vgpr 512
  .amdhsa_next_free_sgpr 102
  .amdhsa_accum_offset 256
  .amdhsa_group_segment_fixed_size 0
  .amdhsa_kernarg_size 88
  .amdhsa_user_sgpr_count 2
  .amdhsa_user_sgpr_kernarg_segment_ptr 1
  .amdhsa_system_sgpr_workgroup_id_x 1
  .amdhsa_float_denorm_mode_32 3
.end_amdhsa_kernel
"""
        return out, nops


def main():
    import argparse
    ap = argparse.ArgumentParser()
    ap.add_argument("-o", default=None)
    ap.add_argument("--stamps", action="store_true")
    ap.add_argument("--opt", action="append", default=[])
    args = ap.parse_args()
    opts = {}
    for kv in args.opt:
        k, _, v = kv.partition("=")
        try:
            opts[k] = int(v) if v else 1
        except ValueError:
            opts[k] = v
    g = Gen(stamps=args.stamps, opts=opts)
    text, nops = g.build()
    path = args.o or os.path.join(os.path.dirname(os.path.abspath(__file__)), "..", "cdna_kernels", NAME + ".s")
    open(path, "w").write(text)
    if args.stamps:
        open(path + ".stamps", "w").write("\n".join(g.stamp_names))
    n = sum(1 for x in g.a.ins if x.kind not in ("label", "comment"))
    print(f"wrote {path}: {n} instructions, {nops} pad states, {len(text)} bytes of text")


if __name__ == "__main__":
    main()
```

```python
import os
import struct
import sys

sys.path.insert(0, os.path.dirname(os.path.abspath(__file__)))
from asmlib import Asm, vr, ar, sr
from layout import *

NAME = "adaLN_cond__sliding_block__dense_activation_silu__prompt"
KERNEL = NAME + "_kernel"


def fbits(x):
    return "0x%08x" % struct.unpack("<I", struct.pack("<f", x))[0]


LOG2E = 1.4426950408889634

SX, SWQ, SWM, SC, SOUT, SWS, SPR = 28, 32, 36, 40, 44, 48, 52
sG, sM, sW, sTAG, sFAST, sTO, sXCC, sP = 56, 57, 58, 59, 60, 61, 62, 63
sT = 64
sRT, sF0, sH2, sFT0 = 76, 77, 78, 79
sWQO, sWQL, sLATE, sWO, sW2, sW1, sW1C, sW4K, sHID, sBG = 80, 81, 82, 83, 84, 85, 86, 87, 88, 89
sHI = 26
sGW = 27

vL16, vTR, vTR2, vQA, vQB, vL = 1, 2, 3, 4, 8, 12
vA0, vA1, vA2 = 13, 14, 15
vX1 = 16


class Gen:
    def __init__(self, stamps=False, opts=None):
        self.a = Asm()
        self.stamps = stamps
        self.nstamp = 0
        self.stamp_names = []
        self.o = dict(opts or {})

    def stamp(self, name):
        if not self.stamps:
            return
        a = self.a
        a("s_memrealtime s[100:101]")
        a.wait(lg=0)
        a(f"v_writelane_b32 v0, s100, {self.nstamp}")
        self.nstamp += 1
        self.stamp_names.append(name)
        assert self.nstamp <= 60

    def srd(self, base, ptr, size):
        a = self.a
        a(f"s_mov_b32 s{base}, s{ptr}")
        a(f"s_and_b32 s{base + 1}, s{ptr + 1}, 0xffff")
        a(f"s_mov_b32 s{base + 2}, {size}")
        a(f"s_mov_b32 s{base + 3}, 0x20000")

    def ld(self, dst, n, voff, srd, soff, imm=0, mods="", tag=None, kind="v"):
        suf = {1: "dword", 2: "dwordx2", 4: "dwordx4"}[n]
        off = f" offset:{imm}" if imm else ""
        so = f"s{soff}" if isinstance(soff, int) else soff
        self.a(f"buffer_load_{suf} {vr(dst, n, kind)}, v{voff}, {sr(srd, 4)}, {so} offen{off} {mods}".rstrip(), tag)

    def st(self, src, n, voff, srd, soff, imm=0, mods="", tag=None):
        suf = {1: "dword", 2: "dwordx2", 4: "dwordx4"}[n]
        off = f" offset:{imm}" if imm else ""
        so = f"s{soff}" if isinstance(soff, int) else soff
        self.a(f"buffer_store_{suf} {vr(src, n)}, v{voff}, {sr(srd, 4)}, {so} offen{off} {mods}".rstrip(), tag)

    def dma(self, voff, srd, soff, imm=0, mods="", tag=None):
        off = f" offset:{imm}" if imm else ""
        self.a(f"buffer_load_dwordx4 v{voff}, {sr(srd, 4)}, s{soff} offen{off} {mods} lds".replace("  ", " "), tag)

    def local_stores(self, emit):
        a = self.a
        slow, done = a.newlabel("slow"), a.newlabel("stored")
        a(f"s_cmp_lg_u32 s{sFAST}, 0")
        a(f"s_cbranch_scc0 {slow}")
        snap = a.snapshot()
        emit("")
        a(f"s_branch {done}")
        a.L(slow)
        a.restore(snap)
        emit("sc1")
        a.L(done)

    def poll(self, loads, check):
        a = self.a
        top, done = a.newlabel("poll"), a.newlabel("polled")
        a.L(top)
        loads()
        a.wait(vm=0)
        check()
        a(f"s_cbranch_vccz {done}")
        a(f"s_cmp_eq_u32 s{sTO}, 0")
        a(f"s_cbranch_scc1 {done}")
        a(f"s_sub_u32 s{sTO}, s{sTO}, 1")
        a(f"s_branch {top}")
        a.L(done)

    def poll_flags(self, voff, soff):
        self.poll(lambda: self.ld(vA2, 1, voff, SWS, soff, mods="sc1"),
                  lambda: self.a(f"v_cmp_ne_u32 vcc, s{sTAG}, v{vA2}"))

    def flag_store(self, soff, mods, lanes=1, voff=None):
        a = self.a
        a(f"s_mov_b64 exec, {(1 << lanes) - 1}")
        self.st(vA1, 1, vA0 if voff is None else voff, SWS, soff, mods=mods)
        a("s_mov_b64 exec, -1")

    def csel(self, dst, yes, no):
        self.a(f"s_mov_b32 s{dst}, {no}")
        self.a(f"s_cmov_b32 s{dst}, {yes}")

    def bf16r(self, dst, src):
        self.a(f"v_cvt_pk_bf16_f32 v{dst}, v{src}, v{src}")
        self.a(f"v_and_b32 v{dst}, s{sHI}, v{dst}")

    def unpack(self, dst, src, n):
        for i in range(n):
            self.a(f"v_lshlrev_b32 v{dst + 2 * i}, 16, v{src + i}")
            self.a(f"v_and_b32 v{dst + 2 * i + 1}, s{sHI}, v{src + i}")

    def silu_bf16(self, dst, src_u16, t):
        a = self.a
        a(f"v_lshlrev_b32 v{dst}, 16, v{src_u16}")
        a(f"v_mul_f32 v{t}, {fbits(-LOG2E)}, v{dst}")
        a(f"v_exp_f32 v{t}, v{t}")
        a(f"v_add_f32 v{t}, 1.0, v{t}")
        a(f"v_rcp_f32 v{t}, v{t}")
        a(f"v_mul_f32 v{dst}, v{dst}, v{t}")
        self.bf16r(dst, dst)

    def ror_add(self, regs, steps):
        for n in steps:
            for r in regs:
                self.a(f"v_add_f32_dpp v{r}, v{r}, v{r} row_ror:{n} row_mask:0xf bank_mask:0xf")

    def reduce8(self, p):
        a = self.a
        for i in range(4):
            a(f"v_permlane32_swap_b32 v{p + i}, v{p + 4 + i}")
        for i in range(4):
            a(f"v_add_f32 v{p + i}, v{p + i}, v{p + 4 + i}")
        for i in range(2):
            a(f"v_permlane16_swap_b32 v{p + i}, v{p + 2 + i}")
        for i in range(2):
            a(f"v_add_f32 v{p + i}, v{p + i}, v{p + 2 + i}")
        self.ror_add([p, p + 1], [8, 4, 2])

    def ln_finish(self, vsum, vsq, t):
        a = self.a
        a(f"v_mul_f32 v{vsum}, {fbits(1 / 512)}, v{vsum}")
        a(f"v_mul_f32 v{t}, v{vsum}, v{vsum}")
        a(f"s_mov_b32 s{sT + 11}, {fbits(1 / 512)}")
        a(f"v_fma_f32 v{vsq}, v{vsq}, s{sT + 11}, -v{t}")
        a(f"v_max_f32 v{vsq}, 0, v{vsq}")
        self.bf16r(vsum, vsum)
        self.bf16r(vsq, vsq)
        a(f"v_add_f32 v{vsq}, {fbits(1e-5)}, v{vsq}")
        self.bf16r(vsq, vsq)
        a(f"v_sqrt_f32 v{vsq}, v{vsq}")
        self.bf16r(vsq, vsq)
        a(f"v_rcp_f32 v{vsq}, v{vsq}")

    def startup(self):
        a = self.a
        a("s_cmp_ge_u32 s2, 256")
        a("s_cbranch_scc1 L_end")
        a("s_load_dwordx16 s[4:19], s[0:1], 0")
        a("s_load_dwordx4 s[20:23], s[0:1], 64")
        a("s_load_dwordx2 s[24:25], s[0:1], 80")
        if self.stamps:
            a("s_memrealtime s[100:101]")
            a("s_memtime s[98:99]")
        a(f"v_lshrrev_b32 v{vA0}, 6, v0")
        a(f"v_and_b32 v{vL}, 63, v0")
        a(f"v_readfirstlane_b32 s{sW}, v{vA0}")
        a("s_and_b32 s3, s2, 7")
        a(f"s_lshr_b32 s{sT}, s2, 3")
        a(f"s_lshr_b32 s{sT + 1}, s{sT}, 4")
        a(f"s_lshl_b32 s{sG}, s3, 1")
        a(f"s_add_u32 s{sG}, s{sG}, s{sT + 1}")
        a(f"s_and_b32 s{sM}, s{sT}, 15")
        a(f"s_lshl_b32 s{sP}, s{sG}, 4")
        a(f"s_add_u32 s{sP}, s{sP}, s{sM}")
        a(f"s_lshl_b32 s{sGW}, s{sG}, 2")
        a(f"s_add_u32 s{sGW}, s{sGW}, s{sW}")
        a(f"s_getreg_b32 s{sXCC}, hwreg(HW_REG_XCC_ID, 0, 4)")
        a(f"s_mov_b32 s{sHI}, 0xffff0000")
        a(f"s_mov_b32 s{sTO}, 0x80000")
        a(f"s_lshr_b32 s{sRT}, s{sM}, 2")
        a(f"s_and_b32 s{sF0}, s{sM}, 3")
        a(f"s_lshl_b32 s{sF0}, s{sF0}, 7")
        a(f"s_lshl_b32 s3, s{sW}, 5")
        a(f"s_add_u32 s{sF0}, s{sF0}, s3")
        a(f"v_lshlrev_b32 v{vL16}, 4, v{vL}")
        vWM, vCO, vXS, vWR, vPT, vCT = 84, 85, 86, 87, 88, 90
        a(f"v_lshrrev_b32 v92, 1, v{vL}")
        a(f"v_mul_u32_u24 v{vWM}, 6144, v92")
        a(f"v_and_b32 v93, 1, v{vL}")
        a(f"v_lshl_add_u32 v{vWM}, v93, 4, v{vWM}")
        a(f"v_lshlrev_b32 v{vCO}, 1, v92")
        a(f"v_and_b32 v92, 31, v{vL}")
        a(f"v_lshlrev_b32 v{vXS}, 10, v92")
        a(f"v_lshrrev_b32 v93, 5, v{vL}")
        a(f"v_lshl_add_u32 v{vXS}, v93, 4, v{vXS}")
        a(f"v_lshrrev_b32 v92, 2, v{vL}")
        a(f"v_and_b32 v93, 3, v{vL}")
        a(f"v_lshlrev_b32 v94, 4, v93")
        a(f"v_mul_u32_u24 v{vWR}, 3072, v92")
        a(f"v_add_u32 v{vWR}, v{vWR}, v94")
        a(f"s_lshl_b32 s3, s{sT}, 2")
        a(f"s_add_u32 s3, s3, s{sW}")
        a(f"s_lshl_b32 s3, s3, 9")
        a(f"v_lshl_add_u32 v{vCT}, v93, 7, s3")
        a(f"v_min_u32 v{vCT}, (L_code_end-{KERNEL}-4), v{vCT}")
        a(f"s_getpc_b64 s[{sT + 2}:{sT + 3}]")
        a.L("L_pc")
        a(f"s_sub_u32 s{sT + 2}, s{sT + 2}, (L_pc-{KERNEL})")
        a(f"s_subb_u32 s{sT + 3}, s{sT + 3}, 0")
        a(f"v_mov_b32 v{vCT + 1}, s{sT + 3}")
        a(f"v_add_co_u32 v{vCT}, vcc, s{sT + 2}, v{vCT}")
        a(f"v_addc_co_u32 v{vCT + 1}, vcc, 0, v{vCT + 1}, vcc")
        a(f"v_and_b32 v96, 15, v{vL}")
        a(f"v_lshrrev_b32 v97, 2, v96")
        a(f"v_lshlrev_b32 v97, 6, v97")
        a(f"v_lshl_add_u32 v97, v93, 3, v97")
        a(f"v_bfe_u32 v96, v{vL}, 4, 1")
        a(f"v_lshl_add_u32 v97, v96, 5, v97")
        a(f"v_lshrrev_b32 v96, 5, v{vL}")
        a(f"v_lshl_add_u32 v{vTR}, v96, 9, v97")
        a(f"v_add_u32 v{vTR2}, 0x10000, v{vTR}")
        a(f"v_lshl_add_u32 v95, v96, 8, v97")
        a(f"s_lshl_b32 s3, s{sW}, 12")
        a(f"s_add_u32 s3, s3, {L_PREP}")
        a(f"v_add_u32 v95, s3, v95")
        a.wait(lg=0)
        if self.stamps:
            a(f"v_writelane_b32 v0, s100, 0")
            self.nstamp = 1
            self.stamp_names.append("entry")
        self.stamp("karg")
        a(f"s_load_dword s{sTAG}, s[24:25], 0")
        if self.o.get("fine"):
            self.stamp("E")
        self.srd(SWM, 18, 512 * 6144)
        self.srd(SC, 16, 1024)
        self.srd(SX, 4, 2048 * 1024)
        if self.o.get("probe"):
            kind = self.o["probe"]
            ptr, size, base = {"bx": (10, 2 << 20, 0), "wslo": (24, 256 << 20, 32 << 20), "wshi": (24, 256 << 20, 250 << 20),
                               "wsmid": (24, 256 << 20, 128 << 20), "out": (20, 2 << 20, 0), "none": (10, 2 << 20, 0)}[kind]
            self.srd(SPR, ptr, size)
            a(f"s_lshl_b32 s3, s2, 13")
            a(f"s_add_u32 s3, s3, {base}")
            a(f"v_mov_b32 v100, 0")
            for i in range(16 if kind != "none" else 0):
                self.ld(101, 1, 100, SPR, 3, imm=i * 256)
                a.wait(vm=0)
        a(f"s_mul_i32 s{sT}, s{sG}, {32 * 6144}")
        a(f"s_and_b32 s3, s{sM}, 1")
        a(f"s_lshl_b32 s3, s3, 10")
        a(f"s_add_u32 s{sT}, s{sT}, s3")
        a(f"s_lshr_b32 s3, s{sM}, 1")
        a(f"s_lshl_b32 s3, s3, 7")
        a(f"s_add_u32 s{sT}, s{sT}, s3")
        a(f"s_lshl_b32 s3, s{sW}, 5")
        a(f"s_add_u32 s{sT}, s{sT}, s3")
        self.ld(32, 4, vWM, SWM, sT, tag="we", mods="nt")
        a(f"s_lshl_b32 s{sT + 1}, s{sG}, 6")
        a(f"buffer_load_ushort v36, v{vCO}, {sr(SC, 4)}, s{sT + 1} offen", "we")
        if self.o.get("fine"):
            self.stamp("i_we")
        a(f"s_lshl_b32 s{sT + 2}, s{sP}, 3")
        a(f"s_lshl_b32 s3, s{sW}, 1")
        a(f"s_add_u32 s{sT + 2}, s{sT + 2}, s3")
        a(f"s_lshl_b32 s{sT + 3}, s{sT + 2}, 10")
        self.ld(40, 4, vL16, SX, sT + 3, tag="rows")
        self.ld(44, 4, vL16, SX, sT + 3, imm=1024, tag="rows")
        a(f"s_lshl_b32 s{sT + 3}, s{sGW}, 15")
        a(f"s_lshl_b32 s3, s{sM}, 6")
        a(f"s_add_u32 s{sT + 3}, s{sT + 3}, s3")
        self.ld(48, 4, vXS, SX, sT + 3, tag="xs")
        self.ld(52, 4, vXS, SX, sT + 3, imm=32, tag="xs")
        if self.o.get("fine"):
            self.stamp("i_x")
        self.srd(SWS, 24, WS_SIZE)
        self.srd(SWQ, 6, 512 * 3072)
        self.srd(SOUT, 20, 2048 * 1024)
        a(f"s_lshl_b32 s{sT + 4}, s{sGW}, 15")
        a(f"s_lshl_b32 s3, s{sM}, 11")
        a(f"s_add_u32 s{sT + 4}, s{sT + 4}, s3")
        a(f"s_add_u32 s{sT + 4}, s{sT + 4}, {H1}")
        a(f"s_lshl_b32 s{sT + 5}, s{sGW}, 6")
        a(f"s_add_u32 s{sT + 5}, s{sT + 5}, {F_H1}")
        a(f"v_lshl_add_u32 v{vPT}, v{vL}, 7, s{sT + 4}")
        a(f"v_mov_b32 v92, s{sT + 5}")
        a(f"v_cmp_gt_u32 vcc, 16, v{vL}")
        a(f"v_cndmask_b32 v{vPT}, v92, v{vPT}, vcc")
        self.ld(37, 1, vPT, SWS, "0", mods="sc1")
        a(f"global_load_dword v38, v[{vCT}:{vCT + 1}], off")
        if self.o.get("fine"):
            self.stamp("i_pt")
        sU, sRS, sS0, sS1, sS2, sD0, sD2 = sT + 6, sT + 7, sT + 8, sT + 9, sT + 10, 90, 91
        a(f"s_lshl_b32 s{sU}, s{sP}, 2")
        a(f"s_add_u32 s{sU}, s{sU}, s{sW}")
        a(f"s_mov_b32 s{SPR + 3}, 0x20000")
        a(f"s_cmp_ge_u32 s{sU}, 472")
        a("s_cbranch_scc1 L_prep_w1")
        a(f"s_cmp_ge_u32 s{sU}, 128")
        a(f"s_cselect_b32 s{SPR}, s14, s8")
        a(f"s_cselect_b32 s{SPR + 1}, s15, s9")
        self.csel(SPR + 2, 1376 * 1024, 512 * 1024)
        self.csel(sD2, 86 * 1024, 32 * 1024)
        self.csel(sD0, W2F, WOF)
        a(f"s_cselect_b32 s3, 128, 0")
        a(f"s_and_b32 s{SPR + 1}, s{SPR + 1}, 0xffff")
        a(f"s_sub_u32 s{sU}, s{sU}, s3")
        a(f"s_movk_i32 s{sRS}, 1024")
        a(f"s_movk_i32 s{sS1}, 16384")
        a(f"s_movk_i32 s{sS2}, 64")
        a(f"s_lshr_b32 s3, s{sU}, 3")
        a(f"s_and_b32 s{sU}, s{sU}, 7")
        a(f"s_lshl_b32 s{sS0}, s3, 15")
        a(f"s_lshl_b32 s3, s3, 11")
        a(f"s_add_u32 s{sD0}, s{sD0}, s3")
        a(f"s_lshl_b32 s3, s{sU}, 7")
        a(f"s_add_u32 s{sS0}, s{sS0}, s3")
        a(f"s_mul_i32 s3, s{sU}, s{sD2}")
        a(f"s_lshl_b32 s3, s3, 1")
        a(f"s_add_u32 s{sD0}, s{sD0}, s3")
        a("s_branch L_prep_go")
        a.L("L_prep_w1")
        a(f"s_mov_b32 s{SPR}, s12")
        a(f"s_and_b32 s{SPR + 1}, s13, 0xffff")
        a(f"s_mov_b32 s{SPR + 2}, {512 * 2752}")
        a(f"s_movk_i32 s{sRS}, 2752")
        a(f"s_mov_b32 s{sS1}, {16 * 2752}")
        a(f"s_mov_b32 s{sS2}, {32 * 2752}")
        a(f"s_movk_i32 s{sD2}, 2048")
        a(f"s_sub_u32 s{sU}, s{sU}, 472")
        a(f"s_and_b32 s3, s{sU}, 7")
        a(f"s_lshr_b32 s{sU}, s{sU}, 3")
        a(f"s_mul_i32 s{sS0}, s3, {64 * 2752}")
        a(f"s_lshl_b32 s3, s3, 12")
        a(f"s_add_u32 s{sD0}, s3, {W1F}")
        a(f"s_lshl_b32 s3, s{sU}, 6")
        a(f"s_add_u32 s{sS0}, s{sS0}, s3")
        a(f"s_lshl_b32 s3, s{sU}, 15")
        a(f"s_add_u32 s{sD0}, s{sD0}, s3")
        a(f"s_cmp_ge_u32 s{sU}, 43")
        a(f"s_cselect_b32 s{sS0}, 0x7f000000, s{sS0}")
        a(f"s_cselect_b32 s{sD0}, 0x7f000000, s{sD0}")
        a.L("L_prep_go")
        a(f"v_lshrrev_b32 v92, 2, v{vL}")
        a(f"v_mul_lo_u32 v92, v92, s{sRS}")
        a(f"v_add_u32 v92, v92, v94")
        a(f"s_lshl_b32 s3, s{sW}, 12")
        a(f"s_add_u32 m0, s3, {L_PREP}")
        self.dma(92, SPR, sS0, tag="prep", mods="nt")
        a(f"s_add_u32 s{sU}, s{sS0}, s{sS1}")
        a("s_add_u32 m0, m0, 1024")
        self.dma(92, SPR, sU, tag="prep", mods="nt")
        a(f"s_add_u32 s{sS0}, s{sS0}, s{sS2}")
        a("s_add_u32 m0, m0, 1024")
        self.dma(92, SPR, sS0, tag="prep", mods="nt")
        a(f"s_add_u32 s{sU}, s{sS0}, s{sS1}")
        a("s_add_u32 m0, m0, 1024")
        self.dma(92, SPR, sU, tag="prep", mods="nt")
        if self.o.get("fine"):
            self.stamp("i_prep")
        self.vWR = vWR
        a(f"s_mul_i32 s{sWQO}, s{sW}, {16 * 3072}")
        a(f"s_lshl_b32 s3, s{sM}, 6")
        a(f"s_add_u32 s{sWQO}, s{sWQO}, s3")
        a(f"s_lshl_b32 s{sWQL}, s{sW}, 10")
        self.keep = (vWM, vCO)
        self.stamp("issued")
        a.wait(lg=0)
        a(f"s_add_u32 s{sTAG}, s{sTAG}, {TAG_STEP}")
        a(f"s_and_b32 s{sTAG}, s{sTAG}, 0xfffffff0")
        vC16 = 93
        a(f"v_and_b32 v96, 1, v{vL}")
        a(f"v_lshlrev_b32 v{vC16}, 3, v96")
        a(f"v_lshrrev_b32 v96, 5, v{vL}")
        a(f"v_lshl_add_u32 v{vC16}, v96, 2, v{vC16}")
        a(f"v_bfe_u32 v96, v{vL}, 4, 1")
        a(f"v_lshl_add_u32 v{vC16}, v96, 1, v{vC16}")
        a.wait(vm="we")
        self.stamp("we")
        self.silu_bf16(96, 36, 97)
        self.unpack(100, 32, 4)
        for i in range(8):
            a(f"v_mul_f32 v{100 + i}, v96, v{100 + i}")
        self.reduce8(100)
        a(f"v_mov_b32 v102, v101")
        a(f"v_mov_b32 v101, s{sTAG}")
        a(f"v_mov_b32 v103, s{sTAG}")
        a(f"v_lshlrev_b32 v96, 3, v{vC16}")
        a(f"s_and_b32 s3, s{sM}, 1")
        a(f"s_lshl_b32 s{sT}, s3, 5")
        a(f"s_lshr_b32 s3, s{sM}, 1")
        a(f"s_lshl_b32 s3, s3, 2")
        a(f"s_add_u32 s{sT}, s{sT}, s3")
        a(f"s_add_u32 s{sT}, s{sT}, s{sW}")
        a(f"s_lshl_b32 s{sT}, s{sT}, 4")
        a(f"s_add_u32 s{sT}, s{sT}, s{sG}")
        a(f"s_lshl_b32 s{sT}, s{sT}, 7")
        a(f"s_add_u32 s{sT}, s{sT}, {MODE}")
        a(f"s_mov_b32 s{sT + 6}, 0x00030003")
        a(f"s_mov_b32 s{sT + 7}, 0x00030003")
        a(f"s_mov_b64 exec, s[{sT + 6}:{sT + 7}]")
        self.st(100, 4, 96, SWS, sT, mods="sc1")
        a("s_mov_b64 exec, -1")
        a.wait(vm="rows")
        a(f"s_mov_b32 s3, 0x3f803f80")
        for r, base in ((0, 40), (1, 44)):
            a(f"v_dot2_f32_bf16 v{104 + 2 * r}, v{base}, s3, 0")
            a(f"v_dot2_f32_bf16 v{105 + 2 * r}, v{base}, v{base}, 0")
        for i in range(1, 4):
            for r, base in ((0, 40), (1, 44)):
                a(f"v_dot2_f32_bf16 v{104 + 2 * r}, v{base + i}, s3, v{104 + 2 * r}")
                a(f"v_dot2_f32_bf16 v{105 + 2 * r}, v{base + i}, v{base + i}, v{105 + 2 * r}")
        a("v_permlane32_swap_b32 v104, v106")
        a("v_permlane32_swap_b32 v105, v107")
        a("v_add_f32 v104, v104, v106")
        a("v_add_f32 v105, v105, v107")
        a("v_permlane16_swap_b32 v104, v105")
        a("v_add_f32 v104, v104, v105")
        self.ror_add([104], [8, 4, 2, 1])
        a("v_mov_b32 v106, v104")
        a("v_permlane16_swap_b32 v104, v106")
        self.ln_finish(104, 106, 105)
        a(f"s_or_b32 s3, s{sTAG}, s{sXCC}")
        a(f"v_mov_b32 v105, s3")
        a(f"v_mov_b32 v107, s{sTAG}")
        a(f"v_lshrrev_b32 v96, 1, v{vL}")
        a(f"s_lshl_b32 s{sT + 2}, s{sT + 2}, 4")
        a(f"s_add_u32 s{sT + 2}, s{sT + 2}, {ST1}")
        a(f"s_mov_b32 s{sT + 6}, 1")
        a(f"s_mov_b32 s{sT + 7}, 1")
        a(f"s_mov_b64 exec, s[{sT + 6}:{sT + 7}]")
        self.st(104, 4, 96, SWS, sT + 2, mods="sc1")
        a("s_mov_b64 exec, -1")
        self.stamp("pub1")
        for f in self.wtile_dmas(range(self.o.get("nu", 4)), "kv", "wkv0"):
            f()
        a.wait(vm="prep")
        for i in range(4):
            a(f"ds_read_b64_tr_b16 v[{68 + 4 * i}:{69 + 4 * i}], v95 offset:{i * 1024}", i)
            a(f"ds_read_b64_tr_b16 v[{70 + 4 * i}:{71 + 4 * i}], v95 offset:{i * 1024 + 512}", i)
        a(f"s_add_u32 s3, s{sD0}, s{sD2}")
        for i in range(4):
            a.wait(lg=i)
            self.st(68 + 4 * i, 4, vL16, SWS, sD0 if i < 2 else 3, imm=(i & 1) * 1024, mods="sc1")
        a.wait(vm="xs")
        self.unpack(112, 48, 8)
        a(f"s_and_b32 s3, s{sW}, 1")
        a(f"s_lshl_b32 s{sT}, s3, 5")
        a(f"s_lshl_b32 s3, s{sM}, 1")
        a(f"s_add_u32 s{sT}, s{sT}, s3")
        a(f"s_lshr_b32 s3, s{sW}, 1")
        a(f"s_add_u32 s{sT}, s{sT}, s3")
        a(f"s_lshl_b32 s{sT}, s{sT}, 11")
        a(f"s_add_u32 s{sT}, s{sT}, {MODE}")
        a(f"v_lshlrev_b32 v84, 5, v{vL}")
        a(f"v_and_b32 v85, 31, v{vL}")
        a(f"v_lshlrev_b32 v85, 4, v85")
        a(f"s_lshl_b32 s{sT + 1}, s{sGW}, 9")
        a(f"s_add_u32 s{sT + 1}, s{sT + 1}, {ST1}")
        a(f"v_and_b32 v86, 15, v{vL}")
        a(f"v_lshlrev_b32 v86, 7, v86")
        a(f"s_lshl_b32 s{sT + 2}, s{sG}, 11")
        a(f"s_add_u32 s{sT + 2}, s{sT + 2}, {ST1}")
        self.stamp("prepoll")

        def loads():
            self.ld(96, 4, 84, SWS, sT, mods="sc1")
            self.ld(100, 4, 84, SWS, sT, imm=16, mods="sc1")
            self.ld(104, 4, 85, SWS, sT + 1, mods="sc1")
            self.ld(108, 1, 86, SWS, sT + 2, imm=4, mods="sc1")

        def check():
            a(f"v_and_b32 v109, -16, v108")
            a(f"v_and_b32 v105, -16, v105")
            a(f"v_xor_b32 v109, s{sTAG}, v109")
            for r in (97, 99, 101, 103, 105, 107):
                a(f"v_bitop3_b32 v109, v109, v{r}, s{sTAG} bitop3:0xf6")
            a("v_cmp_ne_u32 vcc, 0, v109")
        self.poll(loads, check)
        self.stamp("modok")
        a(f"v_and_b32 v108, 15, v108")
        a(f"v_cmp_ne_u32 vcc, s{sXCC}, v108")
        a("s_cmp_eq_u64 vcc, 0")
        a(f"s_cselect_b32 s{sFAST}, 1, 0")
        if self.o.get("force_slow"):
            a(f"s_mov_b32 s{sFAST}, 0")
        a(f"s_cmp_lg_u32 s{sFAST}, 0")
        self.csel(sH2, H1, H2X)
        a("v_permlane32_swap_b32 v96, v100")
        a("v_permlane32_swap_b32 v98, v102")
        a("v_add_f32 v96, v96, v100")
        a("v_add_f32 v98, v98, v102")
        a("v_permlane16_swap_b32 v96, v98")
        a("v_add_f32 v96, v96, v98")
        self.ror_add([96], [8, 4])
        self.bf16r(96, 96)
        a(f"s_and_b32 s3, s{sW}, 1")
        a(f"v_cvt_f32_u32 v97, s3")
        a(f"v_add_f32 v96, v96, v97")
        self.bf16r(96, 96)
        a(f"v_and_b32 v97, 3, v{vL}")
        a(f"v_lshlrev_b32 v97, 2, v97")
        a(f"v_lshrrev_b32 v98, 5, v{vL}")
        a(f"v_lshl_add_u32 v97, v98, 1, v97")
        a(f"v_bfe_u32 v99, v{vL}, 4, 1")
        a(f"v_add_u32 v97, v97, v99")
        a(f"s_lshl_b32 s3, s3, 5")
        a(f"s_lshr_b32 s{sT}, s{sW}, 1")
        a(f"s_lshl_b32 s{sT}, s{sT}, 4")
        a(f"s_add_u32 s3, s3, s{sT}")
        a(f"v_add_u32 v97, s3, v97")
        a(f"v_lshlrev_b32 v97, 2, v97")
        a(f"v_add_u32 v97, {L_GS}, v97")
        a(f"ds_write_b32 v97, v96")
        a(f"v_lshlrev_b32 v98, 5, v98")
        a(f"v_add_u32 v98, {L_GS}, v98")
        a("v_mul_f32 v104, v104, v106")
        for i in range(16):
            a(f"v_fma_f32 v{112 + i}, v{112 + i}, v106, -v104")
        a.wait(lg=0)
        a("s_barrier")
        for s in range(2):
            for q in range(2):
                a(f"ds_read_b128 v[{32 + 8 * s + 4 * q}:{35 + 8 * s + 4 * q}], v98 offset:{128 + s * 64 + q * 16}", ("g", s))
                a(f"ds_read_b128 v[{48 + 8 * s + 4 * q}:{51 + 8 * s + 4 * q}], v98 offset:{s * 64 + q * 16}", ("g", s))
        a(f"v_mov_b32 v{vA1}, s{sTAG}")
        a(f"v_mov_b32 v{vA0}, 0")
        a(f"s_lshl_b32 s3, s{sP}, 2")
        a(f"s_add_u32 s3, s3, {F_PREP}")
        a(f"s_cmp_eq_u32 s{sW}, 0")
        a(f"s_cselect_b32 s3, s3, 0x7f000000")
        self.flag_store(3, "sc1")
        for s in range(2):
            a.wait(lg=[("g", s)])
            for i in range(8):
                a(f"v_fma_f32 v{112 + 8 * s + i}, v{112 + 8 * s + i}, v{32 + 8 * s + i}, v{48 + 8 * s + i}")
            for i in range(4):
                a(f"v_cvt_pk_bf16_f32 v{64 + 4 * s + i}, v{112 + 8 * s + 2 * i}, v{113 + 8 * s + 2 * i}")
        a(f"s_lshl_b32 s3, s{sM}, 2")
        a(f"s_add_u32 s3, s3, s{sT + 5}")

        def emit(mods):
            self.st(64, 4, vL16, SWS, sT + 4, mods=mods)
            self.st(68, 4, vL16, SWS, sT + 4, imm=1024, mods=mods)
            a.wait(vm=0)
            self.flag_store(3, mods)
        self.local_stores(emit)
        self.stamp("h1pub")

    def wtile_dmas(self, us, which, tag):
        a, out = self.a, []
        tiles = {"kv": ((L_WK, 1024), (L_WV, 2048)), "q": ((L_WQ, 0),)}[which]
        for u in us:
            for base, col in tiles:
                def f(u=u, base=base, col=col):
                    a(f"s_add_u32 s3, s{sWQO}, {u * 64 * 3072 + col}")
                    a(f"s_add_u32 m0, s{sWQL}, {base + u * 4096}")
                    self.dma(self.vWR, SWQ, 3, tag=tag)
                out.append(f)
        return out

    def xloads(self, X, sreg):
        out = []
        self.a.seen -= {("x", s) for s in range(32)}
        for s in range(32):
            def f(s=s):
                if s and s % 4 == 0:
                    self.a(f"s_add_u32 s{sreg}, s{sreg}, 4096")
                self.ld(X + 4 * s, 4, vL16, SWS, sreg, imm=(s % 4) * 1024, mods="sc1", tag=("x", s))
            out.append(f)
        return out

    def take(self, n):
        for _ in range(n):
            if self.bg:
                self.bg.pop(0)[1]()

    def take_until(self, name):
        while any(k == name for k, _ in self.bg):
            self.bg.pop(0)[1]()

    def touch_addr_ops(self, dst):
        o = []
        o.append(f"s_lshl_b32 s{sT}, s{sGW}, 15")
        o.append(f"s_lshl_b32 s{sT + 6}, s{sM}, 11")
        o.append(f"s_add_u32 s{sT}, s{sT}, s{sT + 6}")
        o.append(f"s_add_u32 s{sT}, s{sT}, {OO}")
        o.append(f"s_lshl_b32 s{sT + 1}, s{sG}, 2")
        o.append(f"s_add_u32 s{sT + 1}, s{sT + 1}, 3")
        o.append(f"s_sub_u32 s{sT + 1}, s{sT + 1}, s{sW}")
        o.append(f"s_lshl_b32 s{sT + 1}, s{sT + 1}, 15")
        o.append(f"s_add_u32 s{sT + 1}, s{sT + 1}, s{sT + 6}")
        o.append(f"s_add_u32 s{sT + 1}, s{sT + 1}, {OO + 1024 - 8 * 128}")
        o.append(f"s_lshl_b32 s{sT + 2}, s{sG}, 2")
        o.append(f"s_add_u32 s{sT + 2}, s{sT + 2}, s{sRT}")
        o.append(f"s_lshl_b32 s{sT + 2}, s{sT + 2}, 13")
        o.append(f"s_lshr_b32 s{sT + 6}, s{sF0}, 6")
        o.append(f"s_lshl_b32 s{sT + 6}, s{sT + 6}, 10")
        o.append(f"s_add_u32 s{sT + 2}, s{sT + 2}, s{sT + 6}")
        o.append(f"s_add_u32 s{sT + 2}, s{sT + 2}, {ST2 - 16 * 128}")
        o.append(f"s_lshl_b32 s{sT + 3}, s{sG}, 9")
        o.append(f"s_add_u32 s{sT + 3}, s{sT + 3}, {F_O - 24 * 128}")
        o.append(f"s_lshl_b32 s{sT + 4}, s{sG}, 8")
        o.append(f"s_add_u32 s{sT + 5}, s{sT + 4}, {F_HID - 30 * 128}")
        o.append(f"s_add_u32 s{sT + 4}, s{sT + 4}, {F_H2 - 28 * 128}")
        o.append(f"v_mov_b32 v{dst}, s{sT + 5}")
        o.append(f"v_and_b32 v{vA0}, 31, v{vL}")
        for lim, sreg in ((30, sT + 4), (28, sT + 3), (24, sT + 2), (16, sT + 1), (8, sT)):
            o.append(f"v_cmp_gt_u32 vcc, {lim}, v{vA0}")
            o.append(f"v_mov_b32 v{vA2}, s{sreg}")
            o.append("s_nop 0")
            o.append(f"v_cndmask_b32 v{dst}, v{dst}, v{vA2}, vcc")
        o.append(f"v_lshl_add_u32 v{dst}, v{vA0}, 7, v{dst}")
        return o

    def setup_background(self):
        o = []
        o.append(f"s_lshl_b32 s{sWO}, s{sF0}, 10")
        o.append(f"s_add_u32 s{sWO}, s{sWO}, {WOF}")
        o.append(f"s_lshr_b32 s{sW2}, s{sF0}, 5")
        o.append(f"s_mul_i32 s{sW2}, s{sW2}, {86 * 1024}")
        o.append(f"s_add_u32 s{sW2}, s{sW2}, {W2F}")
        o.append(f"s_mul_i32 s{sFT0}, s{sM}, 3")
        o.append(f"s_lshl_b32 s{sW1}, s{sM}, 1")
        o.append(f"s_add_u32 s{sW1}, s{sW1}, 11")
        o.append(f"s_min_u32 s{sFT0}, s{sFT0}, s{sW1}")
        o.append(f"s_lshl_b32 s{sW1}, s{sFT0}, 15")
        o.append(f"s_lshl_b32 s{sW4K}, s{sW}, 12")
        o.append(f"s_add_u32 s{sW1}, s{sW1}, s{sW4K}")
        o.append(f"s_add_u32 s{sW1}, s{sW1}, {W1F}")
        o.append(f"s_add_u32 s{sW1C}, s{sW1}, 65536")
        o.append(f"s_cmp_ge_u32 s{sM}, 11\ns_cselect_b32 s{sW1C}, 0x7f000000, s{sW1C}")
        o.append(f"s_mul_i32 s{sHID}, s{sGW}, {86 * 1024}")
        o.append(f"s_lshl_b32 s{sLATE}, s{sFT0}, 11")
        o.append(f"s_add_u32 s{sHID}, s{sHID}, s{sLATE}")
        o.append(f"s_add_u32 s{sHID}, s{sHID}, {HID}")
        return o

    def w1_dmas(self, us):
        a, out = self.a, []
        for u in us:
            for f in range(4):
                def g(u=u, f=f):
                    if f == 0:
                        a(f"s_add_u32 s{sBG}, s{sW1 if u < 4 else sW1C}, {(u % 4) * 16384}")
                    a(f"s_add_u32 m0, s{sW4K}, {L_W1 + u * 16384}")
                    self.dma(vL16, SWS, sBG, imm=f * 1024, mods="sc1", tag="w1")
                out.append(g)
        return out

    def g1(self):
        a = self.a
        X, WR, ACK, ACV, ACQ = 128, 32, 96, 112, 80
        nu = self.o.get("nu", 4)
        a(f"v_and_b32 v{vA0}, 15, v{vL}")
        a(f"v_lshlrev_b32 v{vA0}, 2, v{vA0}")
        a(f"s_lshl_b32 s{sT + 8}, s{sGW}, 15")
        a(f"s_add_u32 s{sT + 8}, s{sT + 8}, {H1}")

        def rd(tile_base, s, dst, tag):
            v, off = (vTR, tile_base) if tile_base < 65536 else (vTR2, tile_base - 65536)
            a(f"ds_read_b64_tr_b16 v[{dst}:{dst + 1}], v{v} offset:{off + s * 1024}", tag)
            a(f"ds_read_b64_tr_b16 v[{dst + 2}:{dst + 3}], v{v} offset:{off + s * 1024 + 256}", tag)

        wk = lambda s: WR + 8 * (s % 4)
        wv = lambda s: WR + 8 * (s % 4) + 4
        for s in range(2):
            rd(L_WK, s, wk(s), ("k", s))
            rd(L_WV, s, wv(s), ("v", s))
        self.poll_flags(vA0, sT + 5)
        self.stamp("h1ok")
        xl = self.xloads(X, sT + 8)
        ahead = self.o.get("xahead", 6)
        for _ in range(ahead):
            xl.pop(0)()
        rest = self.wtile_dmas(range(nu, 8), "kv", "wkv1") + self.wtile_dmas(range(8), "q", "wq")
        fill = self.touch_addr_ops(vA1) + self.setup_background()
        for s in range(32):
            a.wait(vm=[("x", s)], lg=[("k", s)])
            c = "0" if s == 0 else vr(ACK, 16)
            a(f"v_mfma_f32_32x32x16_bf16 {vr(ACK, 16)}, {vr(wk(s), 4)}, {vr(X + 4 * s, 4)}, {c}")
            if s + 2 == 4 * nu and nu < 8:
                a.wait(vm="wkv1")
                a("s_barrier")
            if xl:
                xl.pop(0)()
            if s + 2 < 32:
                rd(L_WK, s + 2, wk(s + 2), ("k", s + 2))
            a.wait(lg=[("v", s)])
            c = "0" if s == 0 else vr(ACV, 16)
            a(f"v_mfma_f32_32x32x16_bf16 {vr(ACV, 16)}, {vr(X + 4 * s, 4)}, {vr(wv(s), 4)}, {c}")
            if rest:
                rest.pop(0)()
            else:
                for _ in range(4):
                    if fill:
                        a(fill.pop(0))
            if s + 2 < 32:
                rd(L_WV, s + 2, wv(s + 2), ("v", s + 2))
        assert not rest
        while fill:
            a(fill.pop(0))
        self.stamp("pass1")
        a(f"s_lshl_b32 s{sT}, s{sP}, 2")
        a(f"s_add_u32 s{sT}, s{sT}, s{sW}")
        a(f"s_lshl_b32 s{sT + 1}, s{sT}, 2")
        a(f"s_add_u32 s{sT + 1}, s{sT + 1}, {F_KV}")
        a(f"s_lshl_b32 s{sT}, s{sT}, 12")
        a(f"s_add_u32 s{sT}, s{sT}, {KV}")
        a(f"s_lshl_b32 s3, s{sW}, 12")
        a(f"s_add_u32 s3, s3, {L_KV + 8 * 4096}")
        a(f"v_add_u32 v{vA0}, s3, v{vL16}")
        a(f"s_mov_b32 s{sT + 2}, {F_PREP}")
        a.wait(vm="wq")
        a("s_barrier")
        wq = lambda s: WR + 4 * (s % 4)
        for s in range(3):
            rd(L_WQ, s, wq(s), ("q", s))
        fill = []
        for f in range(4):
            src = ACK + 8 * f
            fill += [f"v_cvt_pk_bf16_f32 v{64 + 4 * f + i}, v{src + 2 * i}, v{src + 2 * i + 1}" for i in range(4)]
            fill.append(lambda f=f: self.st(64 + 4 * f, 4, vL16, SWS, sT, imm=f * 1024, mods="sc1", tag="kv"))
        fill.append(lambda: self.ld(vQA, 4, vL16, SWS, sT + 2, mods="sc1", tag="prepf"))
        fill.append(lambda: self.ld(vA2, 1, vA1, SWS, "0", mods="sc1", tag="opt"))
        fill += [f"ds_write_b128 v{vA0}, {vr(64 + 4 * f, 4)} offset:{f * 1024}" for f in range(4)]
        fill += self.attn_setup()
        self.bg = [("wo", f) for f in self.wfrag_loads(sWO, 0, 32, "a", "wo")]
        sflag = self.o.get("sflag", 16)
        for s in range(32):
            a.wait(lg=[("q", s)])
            c = "0" if s == 0 else vr(ACQ, 16)
            a(f"v_mfma_f32_32x32x16_bf16 {vr(ACQ, 16)}, {vr(wq(s), 4)}, {vr(X + 4 * s, 4)}, {c}")
            if s + 3 < 32:
                rd(L_WQ, s + 3, wq(s + 3), ("q", s + 3))
            for _ in range(5 if s < 6 else 3):
                if fill:
                    f = fill.pop(0)
                    a(f) if isinstance(f, str) else f()
            if s == sflag:
                a(f"v_mov_b32 v{vQB}, s{sTAG}")
                a(f"v_mov_b32 v{vQB + 1}, 0")
                a.wait(vm="prepf")
                a("s_mov_b64 exec, 1")
                self.st(vQB, 1, vQB + 1, SWS, sT + 1, mods="sc1")
                a("s_mov_b64 exec, -1")

                def check():
                    a(f"v_xor_b32 v{vQB + 2}, s{sTAG}, v{vQA}")
                    for r in range(1, 4):
                        a(f"v_bitop3_b32 v{vQB + 2}, v{vQB + 2}, v{vQA + r}, s{sTAG} bitop3:0xf6")
                    a(f"v_cmp_ne_u32 s[{sT + 4}:{sT + 5}], 0, v{vQB + 2}")
                check()
                a(f"s_cmp_eq_u64 s[{sT + 4}:{sT + 5}], 0")
                a("s_cbranch_scc1 L_prep_seen")
                snap = a.snapshot()

                def check2():
                    a(f"s_mov_b64 s[{sT + 6}:{sT + 7}], vcc")
                    check()
                    a(f"s_mov_b64 vcc, s[{sT + 4}:{sT + 5}]")
                a(f"s_mov_b64 s[{sT + 8}:{sT + 9}], vcc")
                self.poll(lambda: self.ld(vQA, 4, vL16, SWS, sT + 2, mods="sc1"), check2)
                a(f"s_mov_b64 vcc, s[{sT + 8}:{sT + 9}]")
                a.restore(snap)
                a.L("L_prep_seen")
            if s > sflag and s % 2 == 1:
                self.take(1)
        while fill:
            f = fill.pop(0)
            a(f) if isinstance(f, str) else f()
        a(f"s_sub_u32 s3, 3, s{sW}")
        a(f"s_lshl_b32 s3, s3, 10")
        a(f"s_add_u32 s3, s3, {L_QX}")
        a(f"v_add_u32 v{vA0}, s3, v{vL16}")
        a(f"s_lshl_b32 s3, s{sW}, 10")
        a(f"s_add_u32 s3, s3, {L_QX}")
        a(f"v_add_u32 v{vA1}, s3, v{vL16}")
        self.attn_addresses()
        sc = fbits(0.25 * LOG2E)
        for i in list(range(8, 16)) + list(range(8)):
            a(f"v_mul_f32 v{ACQ + i}, {sc}, v{ACQ + i}")
        for i in range(4):
            a(f"v_cvt_pk_bf16_f32 v{vQB + i}, v{ACQ + 8 + 2 * i}, v{ACQ + 9 + 2 * i}")
        a(f"ds_write_b128 v{vA0}, {vr(vQB, 4)}")
        for i in range(4):
            a(f"v_cvt_pk_bf16_f32 v{vQA + i}, v{ACQ + 2 * i}, v{ACQ + 1 + 2 * i}")
        a.wait(lg=0)
        a("s_barrier")
        a(f"ds_read_b128 {vr(vQB, 4)}, v{vA1}", "qb")
        self.stamp("pass2")

    MD, MF = 48, 16
    S0, OA, OB = 64, 96, 112
    KR, VR, PR = 128, 136, 160
    vKVB, vONE, vVA, vVB = 176, 177, 180, 192
    XR = 204
    MLR = 212

    def attn_setup(self):
        out = []
        t0, t1 = 112, 113
        out.append(f"v_and_b32 v{t0}, 31, v{vL}")
        out.append(f"v_lshrrev_b32 v{t1}, 5, v{vL}")
        out.append(f"v_lshlrev_b32 v{t1}, 2, v{t1}")
        out.append(f"v_sub_u32 v{t0}, v{t0}, v{t1}")
        out.append(f"v_mov_b32 v{t1}, {fbits(-1e30)}")
        for r in range(16):
            key = 8 * (r >> 2) + (r & 3)
            out.append(f"v_cmp_le_i32 vcc, {key}, v{t0}")
            out.append(f"v_cndmask_b32 v{self.MD + r}, v{t1}, 0, vcc"
                       .replace("v_cndmask_b32", "v_cndmask_b32_e64"))
            out.append(f"v_sub_f32 v{self.MF + r}, v{t1}, v{self.MD + r}")
        return out

    def attn_addresses(self):
        a = self.a
        t = self.vONE + 1
        a(f"v_add_u32 v{self.vKVB}, {L_KV}, v{vL16}")
        a(f"v_mov_b32 v{self.vONE}, {L_GS - 2048}")
        a(f"v_and_b32 v{t}, 16, v{vL}")
        a(f"v_cmp_eq_u32 vcc, 0, v{t}")
        for i in range(4):
            a(f"v_mov_b32 v{self.PR + i}, 0x3f803f80")
        a(f"ds_write_b128 v{self.vONE}, {vr(self.PR, 4)} offset:2048")
        a(f"ds_write_b128 v{self.vONE}, {vr(self.PR, 4)} offset:3072")
        for b in range(12):
            a(f"v_add_u32 v{t + b % 2}, {b * 4096}, v{self.vKVB}")
            a(f"v_cndmask_b32 v{self.vVA + b}, v{self.vONE}, v{t + b % 2}, vcc")
            a(f"v_cndmask_b32 v{self.vVB + b}, v{t + b % 2}, v{self.vONE}, vcc")

    def attn_items(self, items, first, quota=0):
        a = self.a
        first = set(first)
        n = len(items)
        S = lambda i: self.S0 + 16 * (i % 2)
        P = lambda i: self.PR + 8 * (i % 2)
        K = lambda i: self.KR + 4 * (i % 2)
        V = lambda i: self.VR + 8 * (i % 3)

        def ldk(i):
            u, b, _ = items[i]
            a(f"ds_read_b128 {vr(K(i), 4)}, v{self.vKVB} offset:{b * 4096 + u * 1024}", ("K", i))

        def ldv(i):
            u, b, _ = items[i]
            va = (self.vVB if u else self.vVA) + b
            a(f"ds_read_b128 {vr(V(i), 4)}, v{va} offset:2048", ("V", i))
            a(f"ds_read_b128 {vr(V(i) + 4, 4)}, v{va} offset:3072", ("V", i))

        def qk(i):
            u, _, mask = items[i]
            c = {None: "0", "d": vr(self.MD, 16), "f": vr(self.MF, 16)}[mask]
            a.wait(lg=[("K", i)])
            a(f"v_mfma_f32_32x32x16_bf16 {vr(S(i), 16)}, {vr(K(i), 4)}, {vr(vQB if u else vQA, 4)}, {c}")

        def pv(i, half):
            u = items[i][0]
            o = vr(self.OB if u else self.OA, 16)
            c = o
            if half == 0:
                a.wait(lg=[("V", i)])
                if u in first:
                    first.discard(u)
                    c = "0"
            a(f"v_mfma_f32_32x32x16_bf16 {o}, {vr(V(i) + 4 * half, 4)}, {vr(P(i) + 4 * half, 4)}, {c}")

        ex = lambda i, r: a(f"v_exp_f32 v{S(i) + r}, v{S(i) + r}")
        cv = lambda i, k: a(f"v_cvt_pk_bf16_f32 v{P(i) + k}, v{S(i) + 2 * k}, v{S(i) + 2 * k + 1}")

        ldk(0)
        if n > 1:
            ldk(1)
        ldv(0)
        a.wait(lg="qb")
        qk(0)
        for i in range(n):
            if i + 1 < n:
                qk(i + 1)
            ex(i, 0)
            if i + 2 < n:
                ldk(i + 2)
            ex(i, 1)
            if i + 1 < n:
                ldv(i + 1)
            ex(i, 2)
            ex(i, 3)
            if i:
                pv(i - 1, 0)
            for r in range(4, 16):
                ex(i, r)
                slots = (5, 13, 9, 7, 11)
                if r == 4:
                    per = min(-(-quota // (n - i)), len(slots))
                if r in slots[:per]:
                    self.take(1)
                    quota -= 1
                if r % 2 == 1:
                    cv(i, (r - 5) // 2)
                if r == 8 and i:
                    pv(i - 1, 1)
            cv(i, 6)
            cv(i, 7)
        pv(n - 1, 0)
        pv(n - 1, 1)
        self.take(quota)

    def fallback(self, u):
        a = self.a
        S, P, K, V = self.S0, self.PR, self.KR, self.VR
        O = self.OB if u else self.OA
        Q = vQB if u else vQA
        vM, vKA, vVAd = self.S0 + 16, self.S0 + 17, self.S0 + 18
        sB, sE, sQB = sT, sT + 1, sT + 2
        if u:
            a(f"s_sub_u32 s{sQB}, 3, s{sW}")
        else:
            a(f"s_mov_b32 s{sQB}, s{sW}")
        a(f"s_add_u32 s{sE}, s{sQB}, 8")
        a(f"v_mov_b32 v{vM}, {fbits(-3e38)}")
        for r in range(16):
            a(f"v_mov_b32 v{O + r}, 0")
        a(f"v_and_b32 v{vA0}, 16, v{vL}")
        a(f"v_cmp_{'ne' if u else 'eq'}_u32 s[{sT + 4}:{sT + 5}], 0, v{vA0}")
        for ps in range(2):
            top, nd, nf = a.newlabel("fb"), a.newlabel("fbd"), a.newlabel("fbf")
            a(f"s_lshl_b32 s3, s{sG}, 2")
            a(f"s_sub_i32 s3, 8, s3")
            a(f"s_max_i32 s{sB}, s3, s{sQB}")
            a.L(top)
            a(f"s_lshl_b32 s3, s{sB}, 12")
            a(f"v_add_u32 v{vKA}, s3, v{self.vKVB}")
            a(f"v_cndmask_b32_e64 v{vVAd}, v{self.vONE}, v{vKA}, s[{sT + 4}:{sT + 5}]")
            a(f"ds_read_b128 {vr(K, 4)}, v{vKA} offset:{u * 1024}")
            a(f"ds_read_b128 {vr(V, 4)}, v{vVAd} offset:2048")
            a(f"ds_read_b128 {vr(V + 4, 4)}, v{vVAd} offset:3072")
            a.wait(lg=0)
            a(f"v_mfma_f32_32x32x16_bf16 {vr(S, 16)}, {vr(K, 4)}, {vr(Q, 4)}, 0")
            a("s_nop 11")
            a(f"s_cmp_eq_u32 s{sB}, s{sE}")
            a(f"s_cbranch_scc0 {nd}")
            for r in range(16):
                a(f"v_add_f32 v{S + r}, v{S + r}, v{self.MD + r}")
            a.L(nd)
            a(f"s_cmp_eq_u32 s{sB}, s{sQB}")
            a(f"s_cbranch_scc0 {nf}")
            for r in range(16):
                a(f"v_add_f32 v{S + r}, v{S + r}, v{self.MF + r}")
            a.L(nf)
            if ps == 0:
                for r in range(0, 16, 2):
                    a(f"v_max3_f32 v{vM}, v{S + r}, v{S + r + 1}, v{vM}")
            else:
                for r in range(16):
                    a(f"v_sub_f32 v{S + r}, v{S + r}, v{vM}")
                for r in range(16):
                    a(f"v_exp_f32 v{S + r}, v{S + r}")
                for k in range(8):
                    a(f"v_cvt_pk_bf16_f32 v{P + k}, v{S + 2 * k}, v{S + 2 * k + 1}")
                for half in range(2):
                    a(f"v_mfma_f32_32x32x16_bf16 {vr(O, 16)}, {vr(V + 4 * half, 4)}, {vr(P + 4 * half, 4)}, {vr(O, 16)}")
            a(f"s_add_u32 s{sB}, s{sB}, 1")
            a(f"s_cmp_le_u32 s{sB}, s{sE}")
            a(f"s_cbranch_scc1 {top}")
            if ps == 0:
                a(f"v_mov_b32 v{vKA}, v{vM}")
                a(f"v_permlane32_swap_b32 v{vM}, v{vKA}")
                a(f"v_max_f32 v{vM}, v{vM}, v{vKA}")
        a("s_nop 11")

    def wfrag_loads(self, sreg, dst, n, kind, tag, first=0):
        out = []
        for i in range(n):
            def f(i=i):
                if first + i and i % 4 == 0:
                    self.a(f"s_add_u32 s{sreg}, s{sreg}, 4096")
                self.ld(dst + 4 * i, 4, vL16, SWS, sreg, imm=(i % 4) * 1024, mods="sc1", tag=(tag, first + i), kind=kind)
            out.append(f)
        return out

    def late_loads(self):
        a, LT = self.a, self.MLR
        a(f"v_lshrrev_b32 v{LT + 11}, 1, v{vL}")
        a(f"v_mul_u32_u24 v{LT + 10}, 6144, v{LT + 11}")
        a(f"v_and_b32 v{LT + 12}, 1, v{vL}")
        a(f"v_lshl_add_u32 v{LT + 10}, v{LT + 12}, 4, v{LT + 10}")
        a(f"v_lshlrev_b32 v{LT + 11}, 1, v{LT + 11}")
        a(f"s_and_b32 s{sT + 6}, s{sP}, 7")
        a(f"s_mul_i32 s{sT + 7}, s{sT + 6}, {64 * 6144}")
        a(f"s_lshr_b32 s3, s{sP}, 3")
        a(f"s_lshl_b32 s3, s3, 6")
        a(f"s_lshl_b32 s{sLATE}, s{sW}, 4")
        a(f"s_add_u32 s{sLATE}, s{sLATE}, s3")
        a(f"s_lshl_b32 s3, s{sLATE}, 1")
        a(f"s_add_u32 s{sT + 7}, s{sT + 7}, s3")
        a(f"s_add_u32 s{sT + 7}, s{sT + 7}, 2048")
        a(f"s_add_u32 s{sT + 8}, s{sT + 7}, {32 * 6144}")
        a(f"s_lshl_b32 s{sT + 9}, s{sT + 6}, 7")
        a(f"s_lshl_b32 s{sT + 6}, s{sT + 6}, 11")
        a(f"s_add_u32 s{sLATE}, s{sLATE}, s{sT + 6}")
        a(f"s_lshl_b32 s{sLATE}, s{sLATE}, 2")
        a(f"s_add_u32 s{sLATE}, s{sLATE}, {MODL}")
        return [
            lambda: self.ld(LT, 4, LT + 10, SWM, sT + 7, tag="wl", mods="nt"),
            lambda: self.ld(LT + 4, 4, LT + 10, SWM, sT + 8, tag="wl", mods="nt"),
            lambda: a(f"buffer_load_ushort v{LT + 8}, v{LT + 11}, {sr(SC, 4)}, s{sT + 9} offen", "wl"),
            lambda: a(f"buffer_load_ushort v{LT + 9}, v{LT + 11}, {sr(SC, 4)}, s{sT + 9} offen offset:64", "wl"),
        ]

    def late_partials(self):
        a, LT, T = self.a, self.MLR, 228
        a.wait(vm="wl")
        self.silu_bf16(LT + 10, LT + 8, LT + 12)
        self.silu_bf16(LT + 11, LT + 9, LT + 12)
        self.unpack(T, LT, 4)
        self.unpack(T + 8, LT + 4, 4)
        for i in range(8):
            a(f"v_mul_f32 v{T + i}, v{LT + 10}, v{T + i}")
        for i in range(8):
            a(f"v_fmac_f32 v{T + i}, v{LT + 11}, v{T + 8 + i}")
        self.reduce8(T)
        a(f"v_and_b32 v{LT}, 1, v{vL}")
        a(f"v_lshlrev_b32 v{LT + 1}, 5, v{LT}")
        a(f"v_lshrrev_b32 v{LT}, 5, v{vL}")
        a(f"v_lshl_add_u32 v{LT + 1}, v{LT}, 4, v{LT + 1}")
        a(f"v_bfe_u32 v{LT}, v{vL}, 4, 1")
        a(f"v_lshl_add_u32 v{LT + 1}, v{LT}, 3, v{LT + 1}")
        a(f"s_mov_b32 s{sT + 6}, 0x00030003")
        a(f"s_mov_b32 s{sT + 7}, 0x00030003")
        a(f"s_mov_b64 exec, s[{sT + 6}:{sT + 7}]")
        self.st(T, 2, LT + 1, SWS, sLATE, mods="sc1")
        a("s_mov_b64 exec, -1")

    def variants(self, labels_emit):
        a = self.a
        snap, bg = a.snapshot(), list(self.bg)
        for label, emit, tail in labels_emit:
            a.restore(snap)
            self.bg = list(bg)
            if label:
                a.L(label)
            emit()
            if tail:
                a(f"s_branch {tail}")

    def attention(self):
        a = self.a
        self.bg = [("wl", f) for f in self.late_loads()] + self.bg
        for w in range(1, 4):
            a(f"s_cmp_eq_u32 s{sW}, {w}")
            a(f"s_cbranch_scc1 L_own{w}")

        def own(w):
            ua = [(0, 8 + i, "d" if i == w else None) for i in range(w + 1)]
            ub = [(1, 8 + i, "d" if i == 3 - w else None) for i in range(4 - w)]
            self.attn_items(ua + ub, first=(0, 1), quota=self.o.get("q_own", 15))
        self.variants([(f"L_own{w}" if w else None, lambda w=w: own(w), "L_own_done" if w < 3 else None) for w in range(4)])
        a.L("L_own_done")
        self.stamp("own")
        self.late_partials()
        a(f"s_lshl_b32 s{sT}, s{sP}, 2")
        a(f"s_add_u32 s{sT}, s{sT}, s{sW}")
        a(f"s_sub_u32 s{sT + 1}, s{sT}, 64")
        a(f"s_sub_u32 s{sT + 2}, s{sT}, 128")
        a(f"s_cmp_ge_u32 s{sG}, 1")
        a(f"s_cselect_b32 s{sT + 3}, s{sT + 1}, s{sT}")
        a(f"s_cmp_ge_u32 s{sG}, 2")
        a(f"s_cselect_b32 s{sT + 4}, s{sT + 2}, s{sT}")
        a(f"v_mov_b32 v{vA0}, s{sT + 3}")
        a(f"v_mov_b32 v{vA1}, s{sT + 4}")
        a(f"v_and_b32 v{self.MLR}, 1, v{vL}")
        a(f"v_cmp_eq_u32 vcc, 0, v{self.MLR}")
        a(f"v_cndmask_b32 v{vA0}, v{vA0}, v{vA1}, vcc")
        a(f"v_lshlrev_b32 v{vA0}, 2, v{vA0}")
        a(f"s_mov_b32 s{sT + 5}, {F_KV}")
        for k, (sreg, lim) in enumerate(((sT + 2, 2), (sT + 1, 1))):
            a(f"s_lshl_b32 s{sreg}, s{sreg}, 12")
            a(f"s_add_u32 s{sreg}, s{sreg}, {KV}")
            a(f"s_cmp_ge_u32 s{sG}, {lim}")
            a(f"s_cselect_b32 s{sreg}, s{sreg}, 0x7f000000")
        self.poll_flags(vA0, sT + 5)
        self.stamp("kvok")
        for k, sreg in enumerate((sT + 2, sT + 1)):
            a(f"s_add_u32 m0, s{sW4K}, {L_KV + k * 4 * 4096}")
            for f in range(4):
                self.dma(vL16, SWS, sreg, imm=f * 1024, mods="sc1", tag="rkv")
        a(f"v_and_b32 v{vA0}, 31, v{vL}")
        a(f"v_lshlrev_b32 v{vA0}, 10, v{vA0}")
        a(f"v_lshrrev_b32 v{vA1}, 5, v{vL}")
        a(f"v_lshl_add_u32 v{vA0}, v{vA1}, 4, v{vA0}")
        a(f"s_lshl_b32 s3, s{sG}, 2")
        a(f"s_add_u32 s3, s3, s{sRT}")
        a(f"s_lshl_b32 s3, s3, 15")
        a(f"s_lshl_b32 s{sT}, s{sF0}, 1")
        a(f"s_add_u32 s3, s3, s{sT}")
        self.ld(self.XR, 4, vA0, SX, 3, tag="xr")
        self.ld(self.XR + 4, 4, vA0, SX, 3, imm=32, tag="xr")
        a(f"s_lshl_b32 s{sT}, s{sP}, 2")
        a(f"s_add_u32 s{sT}, s{sT}, {F_LATE}")
        a(f"s_cmp_eq_u32 s{sP}, 0")
        a(f"s_cselect_b32 s3, {WS_E}, 0x7f000000")
        a(f"v_mov_b32 v{vA0}, s{sT}")
        a(f"v_writelane_b32 v{vA0}, s3, 1")
        a(f"s_cmp_eq_u32 s{sW}, 0")
        a(f"s_cselect_b32 s{sT}, 0, 0x7f000000")
        a(f"v_mov_b32 v{vA1}, s{sTAG}")
        self.bg += [("w1", f) for f in self.w1_dmas(range(4))]
        self.w2 = self.wfrag_loads(sW2, 128, 32, "a", "w2") + self.wfrag_loads(sW2, 0, 32, "a", "w2", first=32) \
            + self.wfrag_loads(sW2, 128, 22, "v", "w2", first=64)
        self.bg += [("w2a", f) for f in self.w2[:32]]
        a.wait(vm="rkv")
        a("s_barrier")
        self.flag_store(sT, "sc1", lanes=2)
        self.stamp("kvin")
        a(f"s_cmp_eq_u32 s{sG}, 0")
        a("s_cbranch_scc1 L_rem_g0")
        a(f"s_cmp_eq_u32 s{sG}, 1")
        a("s_cbranch_scc1 L_rem_g1")
        for w in range(1, 4):
            a(f"s_cmp_eq_u32 s{sW}, {w}")
            a(f"s_cbranch_scc1 L_rem{w}")
        q = self.o.get("q_rem", 32)

        def rem(w):
            ua = [(0, b, "f" if b == w else None) for b in range(w, 8)]
            ub = [(1, b, "f" if b == 3 - w else None) for b in range(3 - w, 8)]
            self.attn_items(ua + ub, first=(), quota=q)
        self.variants([(f"L_rem{w}" if w else None, lambda w=w: rem(w), "L_rem_done") for w in range(4)]
                      + [("L_rem_g1", lambda: self.attn_items([(u, b, None) for u in range(2) for b in range(4, 8)],
                                                              first=(), quota=q), "L_rem_done"),
                         ("L_rem_g0", lambda: self.take(q), None)])
        a.L("L_rem_done")
        self.take_until("w1")
        a(f"s_mov_b32 s{sT + 10}, {F_LATE}")
        self.ld(self.MLR, 4, vL16, SWS, sT + 10, mods="sc1")
        self.stamp("attn")
        lo, hi = fbits(2.0 ** -60), fbits(2.0 ** 60)
        for u, (O, lreg) in enumerate(((self.OA, self.OA + 8), (self.OB, self.OB))):
            ok = a.newlabel("ok")
            a(f"v_cmp_lt_f32 vcc, {lo}, v{lreg}")
            a(f"s_mov_b64 s[{sT}:{sT + 1}], vcc")
            a(f"v_cmp_gt_f32 vcc, {hi}, v{lreg}")
            a(f"s_and_b64 s[{sT}:{sT + 1}], s[{sT}:{sT + 1}], vcc")
            if self.o.get("force_fallback"):
                a(f"s_mov_b64 s[{sT}:{sT + 1}], 0")
            a(f"s_cmp_eq_u64 s[{sT}:{sT + 1}], -1")
            a(f"s_cbranch_scc1 {ok}")
            self.fallback(u)
            a.L(ok)
        a(f"v_rcp_f32 v{self.OA + 9}, v{self.OA + 8}")
        a(f"v_rcp_f32 v{self.OB + 1}, v{self.OB}")
        for i in range(8):
            a(f"v_mul_f32 v{self.OA + i}, v{self.OA + i}, v{self.OA + 9}")
        for i in range(4):
            a(f"v_cvt_pk_bf16_f32 v{64 + i}, v{self.OA + 2 * i}, v{self.OA + 2 * i + 1}")
        for i in range(8):
            a(f"v_mul_f32 v{self.OB + 8 + i}, v{self.OB + 8 + i}, v{self.OB + 1}")
        for i in range(4):
            a(f"v_cvt_pk_bf16_f32 v{68 + i}, v{self.OB + 8 + 2 * i}, v{self.OB + 9 + 2 * i}")
        a(f"s_lshl_b32 s{sT}, s{sGW}, 5")
        a(f"s_lshl_b32 s3, s{sM}, 1")
        a(f"s_add_u32 s{sT}, s{sT}, s3")
        a(f"s_lshl_b32 s{sT + 1}, s{sG}, 2")
        a(f"s_add_u32 s{sT + 1}, s{sT + 1}, 3")
        a(f"s_sub_u32 s{sT + 1}, s{sT + 1}, s{sW}")
        a(f"s_lshl_b32 s{sT + 1}, s{sT + 1}, 5")
        a(f"s_add_u32 s{sT + 1}, s{sT + 1}, s3")
        a(f"s_add_u32 s{sT + 1}, s{sT + 1}, 1")
        a(f"s_sub_u32 s3, s{sT + 1}, s{sT}")
        a(f"v_mul_lo_u32 v{vA0}, s3, v{vL}")
        a(f"v_add_lshl_u32 v{vA0}, v{vA0}, s{sT}, 2")
        a(f"v_mov_b32 v{vA1}, s{sTAG}")
        a(f"s_lshl_b32 s{sT}, s{sT}, 10")
        a(f"s_add_u32 s{sT}, s{sT}, {OO}")
        a(f"s_lshl_b32 s{sT + 1}, s{sT + 1}, 10")
        a(f"s_add_u32 s{sT + 1}, s{sT + 1}, {OO}")
        a(f"s_mov_b32 s{sT + 2}, {F_O}")

        def emit(mods):
            self.st(64, 4, vL16, SWS, sT, mods=mods)
            self.st(68, 4, vL16, SWS, sT + 1, mods=mods)
            a.wait(vm=0)
            self.flag_store(sT + 2, mods, lanes=2)
        self.local_stores(emit)
        self.stamp("opub")

    def g2(self):
        a = self.a
        ACC, XR_, GA = 96, 128, 32
        M = self.MLR
        vML = self.vML = 3

        def check():
            a(f"v_xor_b32 v{vA2}, s{sTAG}, v{M}")
            for r in range(1, 4):
                a(f"v_bitop3_b32 v{vA2}, v{vA2}, v{M + r}, s{sTAG} bitop3:0xf6")
            a(f"v_cmp_ne_u32 vcc, 0, v{vA2}")
        check()
        a("s_cbranch_vccz L_late_seen")
        snap = a.snapshot()
        self.poll(lambda: self.ld(M, 4, vL16, SWS, sT + 10, mods="sc1"), check)
        a.restore(snap)
        a.L("L_late_seen")
        a(f"v_and_b32 v{vA0}, 7, v{vL}")
        a(f"v_lshlrev_b32 v{vA0}, 4, v{vA0}")
        a(f"v_bfe_u32 v{vA2}, v{vL}, 3, 2")
        a(f"v_lshl_add_u32 v{vA0}, v{vA2}, 11, v{vA0}")
        a(f"v_lshrrev_b32 v{vA1}, 5, v{vL}")
        a(f"v_lshl_add_u32 v{vA0}, v{vA1}, 15, v{vA0}")
        a(f"s_lshl_b32 s3, s{sF0}, 2")
        a(f"s_add_u32 s3, s3, {MODL}")
        for k in range(4):
            self.ld(M + 4 * k, 4, vA0, SWS, 3, mods="sc1", tag="ml")
            if k < 3:
                a(f"s_add_u32 s3, s3, 8192")
        a(f"v_permlane32_swap_b32 v{self.XR}, v{self.XR + 2}")
        a(f"v_permlane32_swap_b32 v{self.XR + 1}, v{self.XR + 3}")
        a(f"v_permlane32_swap_b32 v{self.XR + 4}, v{self.XR + 6}")
        a(f"v_permlane32_swap_b32 v{self.XR + 5}, v{self.XR + 7}")
        self.unpack(vX1, self.XR, 8)
        a(f"s_lshl_b32 s3, s{sW}, 9")
        a(f"s_add_u32 s3, s3, {L_ML}")
        a(f"v_lshlrev_b32 v{vML}, 4, v{vA1}")
        a(f"v_add_u32 v{vML}, s3, v{vML}")
        vMW = M + 16
        a(f"v_and_b32 v{vMW}, 31, v{vL}")
        a(f"v_lshlrev_b32 v{vMW}, 4, v{vMW}")
        a(f"v_lshl_add_u32 v{vMW}, v{vA1}, 2, v{vMW}")
        a(f"v_add_u32 v{vMW}, s3, v{vMW}")
        a(f"v_bfe_u32 v{vA0}, v{vL}, 3, 2")
        a(f"v_cmp_eq_u32 vcc, 2, v{vA0}")
        a(f"v_cndmask_b32_e64 v{vMW + 1}, 0, 1.0, vcc")
        a(f"s_lshl_b32 s{sT}, s{sG}, 2")
        a(f"s_add_u32 s{sT}, s{sT}, s{sRT}")
        a(f"s_lshl_b32 s{sT}, s{sT}, 5")
        a(f"s_lshl_b32 s3, s{sW}, 3")
        a(f"s_add_u32 s{sT}, s{sT}, s3")
        a(f"s_lshl_b32 s{sT + 1}, s{sT}, 2")
        a(f"s_add_u32 s{sT + 1}, s{sT + 1}, {F_O}")
        a(f"s_lshl_b32 s{sT}, s{sT}, 10")
        a(f"s_add_u32 s{sT}, s{sT}, {OO}")
        a(f"v_and_b32 v{vA0}, 7, v{vL}")
        a(f"v_lshlrev_b32 v{vA0}, 2, v{vA0}")
        a(f"s_lshl_b32 s{sT + 2}, s{sW}, 13")
        a("s_barrier")
        self.poll_flags(vA0, sT + 1)
        self.stamp("ook")
        for k in range(2):
            a(f"s_add_u32 m0, s{sT + 2}, {L_OX + k * 4096}")
            for f in range(4):
                self.dma(vL16, SWS, sT, imm=f * 1024, mods="sc1", tag="ox")
            if k == 0:
                a(f"s_add_u32 s{sT}, s{sT}, 4096")
        a(f"v_add_u32 v{vA0}, {L_OX}, v{vL16}")
        for k in range(1, 4):
            for i in range(4):
                a(f"v_add_f32 v{M + i}, v{M + i}, v{M + 4 * k + i}")
        a(f"v_permlane32_swap_b32 v{M}, v{M + 1}")
        a(f"v_permlane32_swap_b32 v{M + 2}, v{M + 3}")
        a(f"v_add_f32 v{M}, v{M}, v{M + 1}")
        a(f"v_add_f32 v{M + 2}, v{M + 2}, v{M + 3}")
        for r in (M, M + 2):
            self.bf16r(r, r)
            a(f"v_add_f32 v{r}, v{r}, v{vMW + 1}")
            self.bf16r(r, r)
        a(f"ds_write_b32 v{vMW}, v{M}")
        a(f"ds_write_b32 v{vMW}, v{M + 2} offset:8")
        for i in range(4):
            a(f"ds_read_b128 {vr(GA + 4 * i, 4)}, v{vML} offset:{32 * i}")
        a.wait(vm="ox")
        a("s_barrier")
        xr = lambda s: XR_ + 4 * (s % 8)
        rd = lambda s: a(f"ds_read_b128 {vr(xr(s), 4)}, v{vA0} offset:{s * 1024}", ("o", s))
        for s in range(6):
            rd(s)
        q = self.o.get("q_g2", 12)
        for s in range(32):
            a.wait(lg=[("o", s)])
            c = "0" if s == 0 else vr(ACC, 16)
            a(f"v_mfma_f32_32x32x16_bf16 {vr(ACC, 16)}, {ar(4 * s, 4)}, {vr(xr(s), 4)}, {c}")
            if s + 6 < 32:
                rd(s + 6)
            if s % 2 == 0 and q > 0:
                self.take(1)
                q -= 1
        self.bg += [("w2b", f) for f in self.w2[32:64]]
        self.stamp("g2")
        for i in range(4):
            a(f"ds_read_b128 {vr(48 + 4 * i, 4)}, v{vML} offset:{128 + 32 * i}")
            a(f"ds_read_b128 {vr(64 + 4 * i, 4)}, v{vML} offset:{256 + 32 * i}")
        a(f"s_lshl_b32 s{sT}, s{sG}, 2")
        a(f"s_add_u32 s{sT}, s{sT}, s{sRT}")
        a(f"s_lshl_b32 s{sT + 1}, s{sT}, 13")
        a(f"s_add_u32 s{sT + 1}, s{sT + 1}, {ST2}")
        a(f"s_lshr_b32 s3, s{sF0}, 6")
        a(f"s_lshl_b32 s3, s3, 10")
        a(f"s_add_u32 s{sT + 3}, s{sT + 1}, s3")
        a(f"s_and_b32 s3, s{sW}, 1")
        a(f"s_lshl_b32 s3, s3, 3")
        a(f"s_add_u32 s{sT + 3}, s{sT + 3}, s3")
        for r in range(16):
            a(f"v_fmac_f32 v{vX1 + r}, v{GA + r}, v{ACC + r}")
        for k in range(8):
            a(f"v_cvt_pk_bf16_f32 v{80 + k}, v{vX1 + 2 * k}, v{vX1 + 2 * k + 1}")
        a(f"s_mov_b32 s3, 0x3f803f80")
        a(f"v_dot2_f32_bf16 v88, v80, s3, 0")
        a(f"v_dot2_f32_bf16 v90, v80, v80, 0")
        for k in range(1, 8):
            a(f"v_dot2_f32_bf16 v88, v{80 + k}, s3, v88")
            a(f"v_dot2_f32_bf16 v90, v{80 + k}, v{80 + k}, v90")
        a(f"v_mov_b32 v89, s{sTAG}")
        a("v_permlane32_swap_b32 v88, v90")
        a("v_add_f32 v88, v88, v90")
        self.local_stores(lambda mods: self.st(88, 2, vL16, SWS, sT + 3, mods=mods))
        self.take(self.o.get("q_st", 0))
        self.unpack(vX1, 80, 8)
        a(f"s_add_u32 s{sT + 4}, s{sT + 1}, 4096")

        def loads():
            for k in range(8):
                self.ld(128 + 4 * k, 4, vL16, SWS, sT + 1 if k < 4 else sT + 4, imm=(k % 4) * 1024, mods="sc1")

        def check():
            a(f"v_xor_b32 v{vA2}, s{sTAG}, v129")
            for r in range(131, 160, 2):
                a(f"v_bitop3_b32 v{vA2}, v{vA2}, v{r}, s{sTAG} bitop3:0xf6")
            a(f"v_cmp_ne_u32 vcc, 0, v{vA2}")
        self.poll(loads, check)
        self.stamp("st2ok")
        for step in (16, 8, 4, 2):
            for r in range(128, 128 + step, 2):
                a(f"v_add_f32 v{r}, v{r}, v{r + step}")
        a("v_mov_b32 v130, v128")
        a("v_permlane32_swap_b32 v128, v130")
        self.ln_finish(128, 130, 129)
        a("v_mul_f32 v128, v128, v130")
        a.wait(lg=0)
        for r in range(16):
            a(f"v_fma_f32 v{80 + r}, v{vX1 + r}, v130, -v128")
        for r in range(16):
            a(f"v_fma_f32 v{80 + r}, v{80 + r}, v{64 + r}, v{48 + r}")
        for k in range(8):
            a(f"v_cvt_pk_bf16_f32 v{64 + k}, v{80 + 2 * k}, v{81 + 2 * k}")
        a(f"s_lshl_b32 s{sT}, s{sT}, 15")
        a(f"s_lshl_b32 s3, s{sF0}, 6")
        a(f"s_add_u32 s{sT}, s{sT}, s3")
        a(f"s_add_u32 s{sT}, s{sT}, s{sH2}")
        a(f"s_lshl_b32 s{sT + 1}, s{sP}, 2")
        a(f"s_add_u32 s{sT + 1}, s{sT + 1}, s{sW}")
        a(f"s_lshl_b32 s{sT + 1}, s{sT + 1}, 2")
        a(f"s_add_u32 s{sT + 1}, s{sT + 1}, {F_H2}")
        a(f"v_mov_b32 v{vA1}, s{sTAG}")
        a(f"v_mov_b32 v{vA0}, 0")

        def emit(mods):
            self.st(64, 4, vL16, SWS, sT, mods=mods)
            self.st(68, 4, vL16, SWS, sT, imm=1024, mods=mods)
            a.wait(vm=0)
            self.flag_store(sT + 1, mods)
        self.local_stores(emit)
        self.stamp("h2pub")

    def silu_ops(self, acc, dst, t):
        out = []
        c = fbits(-LOG2E)
        for k in range(0, 16, 4):
            rr = range(k, k + 4)
            out += [f"v_mul_f32 v{t + r % 4}, {c}, v{acc + r}" for r in rr]
            out += [f"v_exp_f32 v{t + r % 4}, v{t + r % 4}" for r in rr]
            out += [f"v_add_f32 v{t + r % 4}, 1.0, v{t + r % 4}" for r in rr]
            out += [f"v_rcp_f32 v{t + r % 4}, v{t + r % 4}" for r in rr]
            out += [f"v_mul_f32 v{acc + r}, v{acc + r}, v{t + r % 4}" for r in rr]
            out += [f"v_cvt_pk_bf16_f32 v{dst + r // 2}, v{acc + r}, v{acc + r + 1}" for r in (k, k + 2)]
        return out

    def g3(self):
        a = self.a
        X, WR, ACC, T, HP = 128, 32, 64, 112, 116
        vB2 = vTR
        w1c = self.w1_dmas(range(4, 6))
        for _ in range(self.o.get("q_w1c", 8)):
            w1c.pop(0)()
        a(f"s_lshl_b32 s{sT}, s{sGW}, 6")
        a(f"s_add_u32 s{sT}, s{sT}, {F_H2}")
        a(f"v_and_b32 v{vA0}, 15, v{vL}")
        a(f"v_lshlrev_b32 v{vA0}, 2, v{vA0}")
        a(f"v_add_u32 v{vB2}, 0x10000, v{vL16}")
        a(f"s_lshl_b32 s{sT + 1}, s{sGW}, 15")
        a(f"s_add_u32 s{sT + 1}, s{sT + 1}, s{sH2}")
        a(f"s_cmp_ge_u32 s{sM}, 11")
        a(f"s_cselect_b32 s3, 31, 47")
        a(f"v_min_u32 v{vA1}, s3, v{vL}")
        a(f"v_lshlrev_b32 v{vA1}, 7, v{vA1}")

        def rd(t, s, dst):
            off = L_W1 + (t * 32 + s) * 1024
            v, off = (vL16, off) if off < 65536 else (vB2, off - 65536)
            a(f"ds_read_b128 {vr(dst, 4)}, v{v} offset:{off}", ("w", t, s))

        wr = lambda t, s: WR + 8 * (s % 4) + 4 * t
        for s in range(3):
            rd(0, s, wr(0, s))
            rd(1, s, wr(1, s))
        self.poll_flags(vA0, sT)
        self.stamp("h2ok")
        xl = self.xloads(X, sT + 1)
        for _ in range(self.o.get("xahead", 6)):
            xl.pop(0)()
        extra = [lambda: self.ld(vA2, 1, vA1, SWS, sHID, mods="sc1")] + w1c
        for s in range(32):
            for t in range(2):
                a.wait(vm=[("x", s)] if t == 0 else None, lg=[("w", t, s)])
                c = "0" if s == 0 else vr(ACC + 16 * t, 16)
                a(f"v_mfma_f32_32x32x16_bf16 {vr(ACC + 16 * t, 16)}, {vr(wr(t, s), 4)}, {vr(X + 4 * s, 4)}, {c}")
                if t == 0:
                    if xl:
                        xl.pop(0)()
                    else:
                        self.take(1)
                elif extra and s >= self.o.get("s_hidpt", 20):
                    extra.pop(0)()
                if s + 3 < 32:
                    rd(t, s + 3, wr(t, s + 3))
        assert not extra
        a.wait(vm="w1")
        a("s_barrier")
        self.stamp("passA")

        def stores(t):
            def emit(mods):
                so = sHID if t < 2 else sT + 3
                self.st(HP, 4, vL16, SWS, so, imm=(2 * t % 4) * 1024, mods=mods)
                self.st(HP + 4, 4, vL16, SWS, so, imm=(2 * t % 4 + 1) * 1024, mods=mods)
            return lambda: self.local_stores(emit)

        a(f"s_add_u32 s{sT + 3}, s{sHID}, 4096")
        a(f"s_cmp_ge_u32 s{sM}, 11")
        a("s_cbranch_scc1 L_g3_two")
        snap, bg = a.snapshot(), list(self.bg)
        fill = self.silu_ops(ACC, HP, T) + [stores(0)] + self.silu_ops(ACC + 16, HP, T) + [stores(1)]
        w3 = lambda s: WR + 4 * (s % 8)
        for s in range(5):
            rd(2, s, w3(s))
        for s in range(32):
            a.wait(lg=[("w", 2, s)])
            c = "0" if s == 0 else vr(ACC + 32, 16)
            a(f"v_mfma_f32_32x32x16_bf16 {vr(ACC + 32, 16)}, {vr(w3(s), 4)}, {vr(X + 4 * s, 4)}, {c}")
            if s + 5 < 32:
                rd(2, s + 5, w3(s + 5))
            if s % 2 == 0 or len(self.bg) > 32 - s:
                self.take(1)
            if s >= 1:
                per = -(-len(fill) // (32 - s))
                for _ in range(per):
                    f = fill.pop(0)
                    a(f) if isinstance(f, str) else f()
        assert not fill
        for i, f in enumerate(self.silu_ops(ACC + 32, HP, T)):
            a(f)
            if i % 10 == 0:
                self.take(1)
        self.take(99)
        stores(2)()
        a("s_branch L_g3_done")
        a.L("L_g3_two")
        a.restore(snap)
        self.bg = bg
        for t in range(2):
            for i, f in enumerate(self.silu_ops(ACC + 16 * t, HP, T)):
                a(f)
                if i % 6 == 0:
                    self.take(1)
            if t:
                self.take(99)
            stores(t)()
        a.L("L_g3_done")
        self.stamp("g3")
        a(f"s_lshl_b32 s{sT}, s{sGW}, 4")
        a(f"s_add_u32 s{sT}, s{sT}, s{sM}")
        a(f"s_lshl_b32 s{sT}, s{sT}, 2")
        a(f"s_add_u32 s{sT}, s{sT}, {F_HID}")
        a(f"v_mov_b32 v{vA1}, s{sTAG}")
        a(f"v_mov_b32 v{vA0}, 0")
        a.wait(vm=0)
        self.local_stores(lambda mods: self.flag_store(sT, mods))
        self.bg = [("w2c", f) for f in self.w2[64:]]
        self.take(self.o.get("q_hid", 4))
        a("s_barrier")
        self.stamp("hidpub")

    def g4(self):
        a = self.a
        ACC, XR_, GB = 96, 32, 64
        vB2 = vTR
        a(f"s_lshl_b32 s{sT}, s{sG}, 2")
        a(f"s_add_u32 s{sT}, s{sT}, s{sRT}")
        a(f"s_lshl_b32 s{sT + 1}, s{sT}, 6")
        a(f"s_add_u32 s{sT + 1}, s{sT + 1}, {F_HID}")
        a(f"s_mul_i32 s{sT + 2}, s{sT}, {86 * 1024}")
        a(f"s_add_u32 s{sT + 2}, s{sT + 2}, {HID}")
        a(f"s_lshl_b32 s{sT + 3}, s{sW}, 12")
        a(f"v_and_b32 v{vA0}, 15, v{vL}")
        a(f"v_lshlrev_b32 v{vA0}, 2, v{vA0}")
        for i in range(4):
            a(f"ds_read_b128 {vr(GB + 4 * i, 4)}, v{self.vML} offset:{384 + 32 * i}")
        self.poll_flags(vA0, sT + 1)
        self.stamp("hidok")
        a(f"s_add_u32 s{sT + 4}, s{sT + 2}, s{sT + 3}")
        hx = []
        for u in range(5):
            for f in range(4):
                def g(u=u, f=f):
                    if f == 0:
                        a(f"s_add_u32 m0, s{sT + 3}, {L_HX + u * 16384}")
                    self.dma(vL16, SWS, sT + 4, imm=f * 1024, mods="sc1", tag=("hx", u))
                    if f == 3:
                        a(f"s_add_u32 s{sT + 4}, s{sT + 4}, 16384")
                hx.append(g)
        for f in range(2):
            def g(f=f):
                if f == 0:
                    a(f"s_lshl_b32 s3, s{sW}, 11")
                    a(f"s_add_u32 s3, s3, {80 * 1024}")
                    a(f"s_add_u32 m0, s3, {L_HX}")
                    a(f"s_add_u32 s{sT + 4}, s{sT + 2}, s3")
                self.dma(vL16, SWS, sT + 4, imm=f * 1024, mods="sc1", tag=("hx", 5))
            hx.append(g)
        self.bg = [("hx", f) for f in hx] + self.bg
        self.take(self.o.get("hxahead", 8))
        a(f"v_and_b32 v{vA0}, 31, v{vL}")
        a(f"v_lshlrev_b32 v{vA0}, 10, v{vA0}")
        a(f"v_lshrrev_b32 v{vA1}, 5, v{vL}")
        a(f"v_lshl_add_u32 v{vA0}, v{vA1}, 4, v{vA0}")
        a(f"s_lshl_b32 s{sT}, s{sT}, 15")
        a(f"s_lshl_b32 s3, s{sF0}, 1")
        a(f"s_add_u32 s{sT}, s{sT}, s3")

        xr = lambda s: XR_ + 4 * (s % 8)

        def rd(s):
            if s % 16 == 0:
                a.wait(vm=[("hx", s // 16)])
                a("s_barrier")
            off = L_HX + s * 1024
            v, off = (vL16, off) if off < 65536 else (vB2, off - 65536)
            a(f"ds_read_b128 {vr(xr(s), 4)}, v{v} offset:{off}", ("h", s))

        def w2(s):
            if s < 32:
                return ar(128 + 4 * s, 4)
            if s < 64:
                return ar(4 * (s - 32), 4)
            return vr(128 + 4 * (s - 64), 4)
        for s in range(6):
            rd(s)
        for s in range(86):
            a.wait(vm=[("w2", s)], lg=[("h", s)])
            c = "0" if s == 0 else vr(ACC, 16)
            a(f"v_mfma_f32_32x32x16_bf16 {vr(ACC, 16)}, {w2(s)}, {vr(xr(s), 4)}, {c}")
            if s % 2 == 0:
                self.take(1)
            if s + 6 < 86:
                rd(s + 6)
        assert not self.bg
        self.stamp("g4")
        for r in range(16):
            a(f"v_fmac_f32 v{vX1 + r}, v{GB + r}, v{ACC + r}")
        for k in range(8):
            a(f"v_cvt_pk_bf16_f32 v{80 + k}, v{vX1 + 2 * k}, v{vX1 + 2 * k + 1}")
        for p in (80, 84):
            a(f"v_permlane32_swap_b32 v{p}, v{p + 2}")
            a(f"v_permlane32_swap_b32 v{p + 1}, v{p + 3}")
        om = self.o.get("out_mods", "")
        self.st(80, 4, vA0, SOUT, sT, mods=om)
        self.st(84, 4, vA0, SOUT, sT, imm=32, mods=om)
        if self.stamps:
            a.wait(vm=0)
            self.stamp("end")
            a("s_memtime s[100:101]")
            a.wait(lg=0)
            a("s_sub_u32 s100, s100, s98")
            a("v_writelane_b32 v0, s100, 63")
            a(f"s_lshl_b32 s3, s2, 2")
            a(f"s_add_u32 s3, s3, s{sW}")
            a(f"s_lshl_b32 s3, s3, 8")
            a(f"s_add_u32 s3, s3, {STAMP}")
            a(f"v_lshlrev_b32 v{vA0}, 2, v{vL}")
            self.st(0, 1, vA0, SWS, 3)
            if self.o.get("dbg"):
                self.srd(SPR, 22, 256)
                a(f"v_readlane_b32 s3, v0, 0")
                a(f"v_subrev_u32 v0, s3, v0")
                a(f"v_lshlrev_b32 v{vA0}, 1, v{vL}")
                a(f"s_lshl_b32 s3, s2, 2")
                a(f"s_add_u32 s3, s3, s{sW}")
                a(f"s_cmp_eq_u32 s3, {self.o['dbg']}")
                a(f"s_cselect_b32 s3, 0, 0x7f000000")
                a(f"s_mov_b32 exec_lo, 0x55555555")
                a(f"s_mov_b32 exec_hi, 0")
                self.st(0, 1, vA0, SPR, 3)

    def build(self):
        a = self.a
        self.startup()
        self.g1()
        self.attention()
        self.g2()
        self.g3()
        self.g4()
        a.L("L_end")
        a("s_endpgm")
        a.L("L_code_end")
        nops = a.pad()
        head = open(os.path.join(os.path.dirname(os.path.abspath(__file__)), "..", "cdna_kernels", NAME + ".s.ref")).read()
        head = [l for l in head.split("\n") if l.startswith(";") and "@launch" not in l and "Override" not in l
                and "grid=ceil" not in l]
        out = "\n".join(head) + "\n"
        out += f"; @launch grid=(256,1,1) block=(256,1,1) lds={LDS_SIZE}\n"
        out += "; One persistent workgroup per CU; 16 workgroups share a block of 128 tokens and hand their\n"
        out += "; tiles to each other through tagged words in the workspace.\n"
        out += '.amdgcn_target "amdgcn-amd-amdhsa--gfx950"\n.text\n'
        out += f".globl {KERNEL}\n.p2align 8\n.type {KERNEL},@function\n{KERNEL}:\n"
        out += a.text()
        out += f""".section .rodata,"a"
.p2align 6
.amdhsa_kernel {KERNEL}
  .amdhsa_next_free_vgpr 512
  .amdhsa_next_free_sgpr 102
  .amdhsa_accum_offset 256
  .amdhsa_group_segment_fixed_size 0
  .amdhsa_kernarg_size 88
  .amdhsa_user_sgpr_count 2
  .amdhsa_user_sgpr_kernarg_segment_ptr 1
  .amdhsa_system_sgpr_workgroup_id_x 1
  .amdhsa_float_denorm_mode_32 3
.end_amdhsa_kernel
"""
        return out, nops


def main():
    import argparse
    ap = argparse.ArgumentParser()
    ap.add_argument("-o", default=None)
    ap.add_argument("--stamps", action="store_true")
    ap.add_argument("--opt", action="append", default=[])
    args = ap.parse_args()
    opts = {}
    for kv in args.opt:
        k, _, v = kv.partition("=")
        try:
            opts[k] = int(v) if v else 1
        except ValueError:
            opts[k] = v
    g = Gen(stamps=args.stamps, opts=opts)
    text, nops = g.build()
    path = args.o or os.path.join(os.path.dirname(os.path.abspath(__file__)), "..", "cdna_kernels", NAME + ".s")
    open(path, "w").write(text)
    if args.stamps:
        open(path + ".stamps", "w").write("\n".join(g.stamp_names))
    n = sum(1 for x in g.a.ins if x.kind not in ("label", "comment"))
    print(f"wrote {path}: {n} instructions, {nops} pad states, {len(text)} bytes of text")


if __name__ == "__main__":
    main()
```

```python
import os
import struct
import sys

sys.path.insert(0, os.path.dirname(os.path.abspath(__file__)))
from asmlib import Asm, vr, ar, sr
from layout import *

NAME = "adaLN_cond__sliding_block__dense_activation_silu__prompt"
KERNEL = NAME + "_kernel"


def fbits(x):
    return "0x%08x" % struct.unpack("<I", struct.pack("<f", x))[0]


LOG2E = 1.4426950408889634

SX, SWQ, SWM, SC, SOUT, SWS, SPR = 28, 32, 36, 40, 44, 48, 52
sG, sM, sW, sTAG, sFAST, sTO, sXCC, sP = 56, 57, 58, 59, 60, 61, 62, 63
sT = 64
sRT, sF0, sH2, sFT0 = 76, 77, 78, 79
sWQO, sWQL, sLATE, sWO, sW2, sW1, sW1C, sW4K, sHID, sBG = 80, 81, 82, 83, 84, 85, 86, 87, 88, 89
sHI = 26
sGW = 27

vL16, vTR, vTR2, vQA, vQB, vL = 1, 2, 3, 4, 8, 12
vA0, vA1, vA2 = 13, 14, 15
vX1 = 16


class Gen:
    def __init__(self, stamps=False, opts=None):
        self.a = Asm()
        self.stamps = stamps
        self.nstamp = 0
        self.stamp_names = []
        self.o = dict(opts or {})

    def stamp(self, name):
        if not self.stamps:
            return
        a = self.a
        a("s_memrealtime s[100:101]")
        a.wait(lg=0)
        a(f"v_writelane_b32 v0, s100, {self.nstamp}")
        self.nstamp += 1
        self.stamp_names.append(name)
        assert self.nstamp <= 60

    def srd(self, base, ptr, size):
        a = self.a
        a(f"s_mov_b32 s{base}, s{ptr}")
        a(f"s_and_b32 s{base + 1}, s{ptr + 1}, 0xffff")
        a(f"s_mov_b32 s{base + 2}, {size}")
        a(f"s_mov_b32 s{base + 3}, 0x20000")

    def ld(self, dst, n, voff, srd, soff, imm=0, mods="", tag=None, kind="v"):
        suf = {1: "dword", 2: "dwordx2", 4: "dwordx4"}[n]
        off = f" offset:{imm}" if imm else ""
        so = f"s{soff}" if isinstance(soff, int) else soff
        self.a(f"buffer_load_{suf} {vr(dst, n, kind)}, v{voff}, {sr(srd, 4)}, {so} offen{off} {mods}".rstrip(), tag)

    def st(self, src, n, voff, srd, soff, imm=0, mods="", tag=None):
        suf = {1: "dword", 2: "dwordx2", 4: "dwordx4"}[n]
        off = f" offset:{imm}" if imm else ""
        so = f"s{soff}" if isinstance(soff, int) else soff
        self.a(f"buffer_store_{suf} {vr(src, n)}, v{voff}, {sr(srd, 4)}, {so} offen{off} {mods}".rstrip(), tag)

    def dma(self, voff, srd, soff, imm=0, mods="", tag=None):
        off = f" offset:{imm}" if imm else ""
        self.a(f"buffer_load_dwordx4 v{voff}, {sr(srd, 4)}, s{soff} offen{off} {mods} lds".replace("  ", " "), tag)

    def local_stores(self, emit):
        a = self.a
        slow, done = a.newlabel("slow"), a.newlabel("stored")
        a(f"s_cmp_lg_u32 s{sFAST}, 0")
        a(f"s_cbranch_scc0 {slow}")
        snap = a.snapshot()
        emit("")
        a(f"s_branch {done}")
        a.L(slow)
        a.restore(snap)
        emit("sc1")
        a.L(done)

    def poll(self, loads, check):
        a = self.a
        top, done = a.newlabel("poll"), a.newlabel("polled")
        a.L(top)
        loads()
        a.wait(vm=0)
        check()
        a(f"s_cbranch_vccz {done}")
        a(f"s_cmp_eq_u32 s{sTO}, 0")
        a(f"s_cbranch_scc1 {done}")
        a(f"s_sub_u32 s{sTO}, s{sTO}, 1")
        a(f"s_branch {top}")
        a.L(done)

    def poll_flags(self, voff, soff):
        self.poll(lambda: self.ld(vA2, 1, voff, SWS, soff, mods="sc1"),
                  lambda: self.a(f"v_cmp_ne_u32 vcc, s{sTAG}, v{vA2}"))

    def flag_store(self, soff, mods, lanes=1, voff=None):
        a = self.a
        a(f"s_mov_b64 exec, {(1 << lanes) - 1}")
        self.st(vA1, 1, vA0 if voff is None else voff, SWS, soff, mods=mods)
        a("s_mov_b64 exec, -1")

    def csel(self, dst, yes, no):
        self.a(f"s_mov_b32 s{dst}, {no}")
        self.a(f"s_cmov_b32 s{dst}, {yes}")

    def bf16r(self, dst, src):
        self.a(f"v_cvt_pk_bf16_f32 v{dst}, v{src}, v{src}")
        self.a(f"v_and_b32 v{dst}, s{sHI}, v{dst}")

    def unpack(self, dst, src, n):
        for i in range(n):
            self.a(f"v_lshlrev_b32 v{dst + 2 * i}, 16, v{src + i}")
            self.a(f"v_and_b32 v{dst + 2 * i + 1}, s{sHI}, v{src + i}")

    def silu_bf16(self, dst, src_u16, t):
        a = self.a
        a(f"v_lshlrev_b32 v{dst}, 16, v{src_u16}")
        a(f"v_mul_f32 v{t}, {fbits(-LOG2E)}, v{dst}")
        a(f"v_exp_f32 v{t}, v{t}")
        a(f"v_add_f32 v{t}, 1.0, v{t}")
        a(f"v_rcp_f32 v{t}, v{t}")
        a(f"v_mul_f32 v{dst}, v{dst}, v{t}")
        self.bf16r(dst, dst)

    def ror_add(self, regs, steps):
        for n in steps:
            for r in regs:
                self.a(f"v_add_f32_dpp v{r}, v{r}, v{r} row_ror:{n} row_mask:0xf bank_mask:0xf")

    def reduce8(self, p):
        a = self.a
        for i in range(4):
            a(f"v_permlane32_swap_b32 v{p + i}, v{p + 4 + i}")
        for i in range(4):
            a(f"v_add_f32 v{p + i}, v{p + i}, v{p + 4 + i}")
        for i in range(2):
            a(f"v_permlane16_swap_b32 v{p + i}, v{p + 2 + i}")
        for i in range(2):
            a(f"v_add_f32 v{p + i}, v{p + i}, v{p + 2 + i}")
        self.ror_add([p, p + 1], [8, 4, 2])

    def ln_finish(self, vsum, vsq, t):
        a = self.a
        a(f"v_mul_f32 v{vsum}, {fbits(1 / 512)}, v{vsum}")
        a(f"v_mul_f32 v{t}, v{vsum}, v{vsum}")
        a(f"s_mov_b32 s{sT + 11}, {fbits(1 / 512)}")
        a(f"v_fma_f32 v{vsq}, v{vsq}, s{sT + 11}, -v{t}")
        a(f"v_max_f32 v{vsq}, 0, v{vsq}")
        self.bf16r(vsum, vsum)
        self.bf16r(vsq, vsq)
        a(f"v_add_f32 v{vsq}, {fbits(1e-5)}, v{vsq}")
        self.bf16r(vsq, vsq)
        a(f"v_sqrt_f32 v{vsq}, v{vsq}")
        self.bf16r(vsq, vsq)
        a(f"v_rcp_f32 v{vsq}, v{vsq}")

    def startup(self):
        a = self.a
        a("s_cmp_ge_u32 s2, 256")
        a("s_cbranch_scc1 L_end")
        a("s_load_dwordx16 s[4:19], s[0:1], 0")
        a("s_load_dwordx4 s[20:23], s[0:1], 64")
        a("s_load_dwordx2 s[24:25], s[0:1], 80")
        if self.stamps:
            a("s_memrealtime s[100:101]")
            a("s_memtime s[98:99]")
        a(f"v_lshrrev_b32 v{vA0}, 6, v0")
        a(f"v_and_b32 v{vL}, 63, v0")
        a(f"v_readfirstlane_b32 s{sW}, v{vA0}")
        a("s_and_b32 s3, s2, 7")
        a(f"s_lshr_b32 s{sT}, s2, 3")
        a(f"s_lshr_b32 s{sT + 1}, s{sT}, 4")
        a(f"s_lshl_b32 s{sG}, s3, 1")
        a(f"s_add_u32 s{sG}, s{sG}, s{sT + 1}")
        a(f"s_and_b32 s{sM}, s{sT}, 15")
        a(f"s_lshl_b32 s{sP}, s{sG}, 4")
        a(f"s_add_u32 s{sP}, s{sP}, s{sM}")
        a(f"s_lshl_b32 s{sGW}, s{sG}, 2")
        a(f"s_add_u32 s{sGW}, s{sGW}, s{sW}")
        a(f"s_getreg_b32 s{sXCC}, hwreg(HW_REG_XCC_ID, 0, 4)")
        a(f"s_mov_b32 s{sHI}, 0xffff0000")
        a(f"s_mov_b32 s{sTO}, 0x80000")
        a(f"s_lshr_b32 s{sRT}, s{sM}, 2")
        a(f"s_and_b32 s{sF0}, s{sM}, 3")
        a(f"s_lshl_b32 s{sF0}, s{sF0}, 7")
        a(f"s_lshl_b32 s3, s{sW}, 5")
        a(f"s_add_u32 s{sF0}, s{sF0}, s3")
        a(f"v_lshlrev_b32 v{vL16}, 4, v{vL}")
        vWM, vCO, vXS, vWR, vPT, vCT = 84, 85, 86, 87, 88, 90
        a(f"v_lshrrev_b32 v92, 1, v{vL}")
        a(f"v_mul_u32_u24 v{vWM}, 6144, v92")
        a(f"v_and_b32 v93, 1, v{vL}")
        a(f"v_lshl_add_u32 v{vWM}, v93, 4, v{vWM}")
        a(f"v_lshlrev_b32 v{vCO}, 1, v92")
        a(f"v_and_b32 v92, 31, v{vL}")
        a(f"v_lshlrev_b32 v{vXS}, 10, v92")
        a(f"v_lshrrev_b32 v93, 5, v{vL}")
        a(f"v_lshl_add_u32 v{vXS}, v93, 4, v{vXS}")
        a(f"v_lshrrev_b32 v92, 2, v{vL}")
        a(f"v_and_b32 v93, 3, v{vL}")
        a(f"v_lshlrev_b32 v94, 4, v93")
        a(f"v_mul_u32_u24 v{vWR}, 3072, v92")
        a(f"v_add_u32 v{vWR}, v{vWR}, v94")
        a(f"s_lshl_b32 s3, s{sT}, 2")
        a(f"s_add_u32 s3, s3, s{sW}")
        a(f"s_lshl_b32 s3, s3, 9")
        a(f"v_lshl_add_u32 v{vCT}, v93, 7, s3")
        a(f"v_min_u32 v{vCT}, (L_code_end-{KERNEL}-4), v{vCT}")
        a(f"s_getpc_b64 s[{sT + 2}:{sT + 3}]")
        a.L("L_pc")
        a(f"s_sub_u32 s{sT + 2}, s{sT + 2}, (L_pc-{KERNEL})")
        a(f"s_subb_u32 s{sT + 3}, s{sT + 3}, 0")
        a(f"v_mov_b32 v{vCT + 1}, s{sT + 3}")
        a(f"v_add_co_u32 v{vCT}, vcc, s{sT + 2}, v{vCT}")
        a(f"v_addc_co_u32 v{vCT + 1}, vcc, 0, v{vCT + 1}, vcc")
        a(f"v_and_b32 v96, 15, v{vL}")
        a(f"v_lshrrev_b32 v97, 2, v96")
        a(f"v_lshlrev_b32 v97, 6, v97")
        a(f"v_lshl_add_u32 v97, v93, 3, v97")
        a(f"v_bfe_u32 v96, v{vL}, 4, 1")
        a(f"v_lshl_add_u32 v97, v96, 5, v97")
        a(f"v_lshrrev_b32 v96, 5, v{vL}")
        a(f"v_lshl_add_u32 v{vTR}, v96, 9, v97")
        a(f"v_add_u32 v{vTR2}, 0x10000, v{vTR}")
        a(f"v_lshl_add_u32 v95, v96, 8, v97")
        a(f"s_lshl_b32 s3, s{sW}, 12")
        a(f"s_add_u32 s3, s3, {L_PREP}")
        a(f"v_add_u32 v95, s3, v95")
        a.wait(lg=0)
        if self.stamps:
            a(f"v_writelane_b32 v0, s100, 0")
            self.nstamp = 1
            self.stamp_names.append("entry")
        self.stamp("karg")
        a(f"s_load_dword s{sTAG}, s[24:25], 0")
        if self.o.get("fine"):
            self.stamp("E")
        self.srd(SWM, 18, 512 * 6144)
        self.srd(SC, 16, 1024)
        self.srd(SX, 4, 2048 * 1024)
        if self.o.get("probe"):
            kind = self.o["probe"]
            ptr, size, base = {"bx": (10, 2 << 20, 0), "wslo": (24, 256 << 20, 32 << 20), "wshi": (24, 256 << 20, 250 << 20),
                               "wsmid": (24, 256 << 20, 128 << 20), "out": (20, 2 << 20, 0), "none": (10, 2 << 20, 0)}[kind]
            self.srd(SPR, ptr, size)
            a(f"s_lshl_b32 s3, s2, 13")
            a(f"s_add_u32 s3, s3, {base}")
            a(f"v_mov_b32 v100, 0")
            for i in range(16 if kind != "none" else 0):
                self.ld(101, 1, 100, SPR, 3, imm=i * 256)
                a.wait(vm=0)
        if self.o.get("bwprobe"):
            n = self.o["bwprobe"]
            self.srd(SPR, 24, 256 << 20)
            a(f"s_lshl_b32 s3, s2, 2")
            a(f"s_add_u32 s3, s3, s{sW}")
            a(f"s_mul_i32 s3, s3, {n * 1024}")
            a(f"s_add_u32 s3, s3, {64 << 20}")
            for i in range(n):
                self.ld(128 + 4 * (i % 32), 4, vL16, SPR, 3, imm=(i % 4) * 1024)
                if i % 4 == 3:
                    a(f"s_add_u32 s3, s3, 4096")
            a.wait(vm=0)
        a(f"s_mul_i32 s{sT}, s{sG}, {32 * 6144}")
        a(f"s_and_b32 s3, s{sM}, 1")
        a(f"s_lshl_b32 s3, s3, 10")
        a(f"s_add_u32 s{sT}, s{sT}, s3")
        a(f"s_lshr_b32 s3, s{sM}, 1")
        a(f"s_lshl_b32 s3, s3, 7")
        a(f"s_add_u32 s{sT}, s{sT}, s3")
        a(f"s_lshl_b32 s3, s{sW}, 5")
        a(f"s_add_u32 s{sT}, s{sT}, s3")
        self.ld(32, 4, vWM, SWM, sT, tag="we", mods="nt")
        a(f"s_lshl_b32 s{sT + 1}, s{sG}, 6")
        a(f"buffer_load_ushort v36, v{vCO}, {sr(SC, 4)}, s{sT + 1} offen", "we")
        if self.o.get("fine"):
            self.stamp("i_we")
        a(f"s_lshl_b32 s{sT + 2}, s{sP}, 3")
        a(f"s_lshl_b32 s3, s{sW}, 1")
        a(f"s_add_u32 s{sT + 2}, s{sT + 2}, s3")
        a(f"s_lshl_b32 s{sT + 3}, s{sT + 2}, 10")
        self.ld(40, 4, vL16, SX, sT + 3, tag="rows")
        self.ld(44, 4, vL16, SX, sT + 3, imm=1024, tag="rows")
        a(f"s_lshl_b32 s{sT + 3}, s{sGW}, 15")
        a(f"s_lshl_b32 s3, s{sM}, 6")
        a(f"s_add_u32 s{sT + 3}, s{sT + 3}, s3")
        self.ld(48, 4, vXS, SX, sT + 3, tag="xs")
        self.ld(52, 4, vXS, SX, sT + 3, imm=32, tag="xs")
        if self.o.get("fine"):
            self.stamp("i_x")
        self.srd(SWS, 24, WS_SIZE)
        self.srd(SWQ, 6, 512 * 3072)
        self.srd(SOUT, 20, 2048 * 1024)
        a(f"s_lshl_b32 s{sT + 4}, s{sGW}, 15")
        a(f"s_lshl_b32 s3, s{sM}, 11")
        a(f"s_add_u32 s{sT + 4}, s{sT + 4}, s3")
        a(f"s_add_u32 s{sT + 4}, s{sT + 4}, {H1}")
        a(f"s_lshl_b32 s{sT + 5}, s{sGW}, 6")
        a(f"s_add_u32 s{sT + 5}, s{sT + 5}, {F_H1}")
        a(f"v_lshl_add_u32 v{vPT}, v{vL}, 7, s{sT + 4}")
        a(f"v_mov_b32 v92, s{sT + 5}")
        a(f"v_cmp_gt_u32 vcc, {0 if self.o.get('nopt') else 16}, v{vL}")
        a(f"v_cndmask_b32 v{vPT}, v92, v{vPT}, vcc")
        self.ld(37, 1, vPT, SWS, "0", mods="sc1")
        a(f"global_load_dword v38, v[{vCT}:{vCT + 1}], off")
        if self.o.get("fine"):
            self.stamp("i_pt")
        sU, sRS, sS0, sS1, sS2, sD0, sD2 = sT + 6, sT + 7, sT + 8, sT + 9, sT + 10, 90, 91
        a(f"s_lshl_b32 s{sU}, s{sP}, 2")
        a(f"s_add_u32 s{sU}, s{sU}, s{sW}")
        a(f"s_mov_b32 s{SPR + 3}, 0x20000")
        a(f"s_cmp_ge_u32 s{sU}, 472")
        a("s_cbranch_scc1 L_prep_w1")
        a(f"s_cmp_ge_u32 s{sU}, 128")
        a(f"s_cselect_b32 s{SPR}, s14, s8")
        a(f"s_cselect_b32 s{SPR + 1}, s15, s9")
        self.csel(SPR + 2, 1376 * 1024, 512 * 1024)
        self.csel(sD2, 86 * 1024, 32 * 1024)
        self.csel(sD0, W2F, WOF)
        a(f"s_cselect_b32 s3, 128, 0")
        a(f"s_and_b32 s{SPR + 1}, s{SPR + 1}, 0xffff")
        a(f"s_sub_u32 s{sU}, s{sU}, s3")
        a(f"s_movk_i32 s{sRS}, 1024")
        a(f"s_movk_i32 s{sS1}, 16384")
        a(f"s_movk_i32 s{sS2}, 64")
        a(f"s_lshr_b32 s3, s{sU}, 3")
        a(f"s_and_b32 s{sU}, s{sU}, 7")
        a(f"s_lshl_b32 s{sS0}, s3, 15")
        a(f"s_lshl_b32 s3, s3, 11")
        a(f"s_add_u32 s{sD0}, s{sD0}, s3")
        a(f"s_lshl_b32 s3, s{sU}, 7")
        a(f"s_add_u32 s{sS0}, s{sS0}, s3")
        a(f"s_mul_i32 s3, s{sU}, s{sD2}")
        a(f"s_lshl_b32 s3, s3, 1")
        a(f"s_add_u32 s{sD0}, s{sD0}, s3")
        a("s_branch L_prep_go")
        a.L("L_prep_w1")
        a(f"s_mov_b32 s{SPR}, s12")
        a(f"s_and_b32 s{SPR + 1}, s13, 0xffff")
        a(f"s_mov_b32 s{SPR + 2}, {512 * 2752}")
        a(f"s_movk_i32 s{sRS}, 2752")
        a(f"s_mov_b32 s{sS1}, {16 * 2752}")
        a(f"s_mov_b32 s{sS2}, {32 * 2752}")
        a(f"s_movk_i32 s{sD2}, 2048")
        a(f"s_sub_u32 s{sU}, s{sU}, 472")
        a(f"s_and_b32 s3, s{sU}, 7")
        a(f"s_lshr_b32 s{sU}, s{sU}, 3")
        a(f"s_mul_i32 s{sS0}, s3, {64 * 2752}")
        a(f"s_lshl_b32 s3, s3, 12")
        a(f"s_add_u32 s{sD0}, s3, {W1F}")
        a(f"s_lshl_b32 s3, s{sU}, 6")
        a(f"s_add_u32 s{sS0}, s{sS0}, s3")
        a(f"s_lshl_b32 s3, s{sU}, 15")
        a(f"s_add_u32 s{sD0}, s{sD0}, s3")
        a(f"s_cmp_ge_u32 s{sU}, 43")
        a(f"s_cselect_b32 s{sS0}, 0x7f000000, s{sS0}")
        a(f"s_cselect_b32 s{sD0}, 0x7f000000, s{sD0}")
        a.L("L_prep_go")
        if self.o.get("noprep"):
            a(f"s_mov_b32 s{sS0}, 0x7f000000")
            a(f"s_mov_b32 s{sD0}, 0x7f000000")
        a(f"v_lshrrev_b32 v92, 2, v{vL}")
        a(f"v_mul_lo_u32 v92, v92, s{sRS}")
        a(f"v_add_u32 v92, v92, v94")
        a(f"s_lshl_b32 s3, s{sW}, 12")
        a(f"s_add_u32 m0, s3, {L_PREP}")
        self.dma(92, SPR, sS0, tag="prep", mods="nt")
        a(f"s_add_u32 s{sU}, s{sS0}, s{sS1}")
        a("s_add_u32 m0, m0, 1024")
        self.dma(92, SPR, sU, tag="prep", mods="nt")
        a(f"s_add_u32 s{sS0}, s{sS0}, s{sS2}")
        a("s_add_u32 m0, m0, 1024")
        self.dma(92, SPR, sS0, tag="prep", mods="nt")
        a(f"s_add_u32 s{sU}, s{sS0}, s{sS1}")
        a("s_add_u32 m0, m0, 1024")
        self.dma(92, SPR, sU, tag="prep", mods="nt")
        if self.o.get("fine"):
            self.stamp("i_prep")
        self.vWR = vWR
        a(f"s_mul_i32 s{sWQO}, s{sW}, {16 * 3072}")
        a(f"s_lshl_b32 s3, s{sM}, 6")
        a(f"s_add_u32 s{sWQO}, s{sWQO}, s3")
        a(f"s_lshl_b32 s{sWQL}, s{sW}, 10")
        self.keep = (vWM, vCO)
        self.stamp("issued")
        a.wait(lg=0)
        a(f"s_add_u32 s{sTAG}, s{sTAG}, {TAG_STEP}")
        a(f"s_and_b32 s{sTAG}, s{sTAG}, 0xfffffff0")
        vC16 = 93
        a(f"v_and_b32 v96, 1, v{vL}")
        a(f"v_lshlrev_b32 v{vC16}, 3, v96")
        a(f"v_lshrrev_b32 v96, 5, v{vL}")
        a(f"v_lshl_add_u32 v{vC16}, v96, 2, v{vC16}")
        a(f"v_bfe_u32 v96, v{vL}, 4, 1")
        a(f"v_lshl_add_u32 v{vC16}, v96, 1, v{vC16}")
        a.wait(vm="we")
        self.stamp("we")
        self.silu_bf16(96, 36, 97)
        self.unpack(100, 32, 4)
        for i in range(8):
            a(f"v_mul_f32 v{100 + i}, v96, v{100 + i}")
        self.reduce8(100)
        a(f"v_mov_b32 v102, v101")
        a(f"v_mov_b32 v101, s{sTAG}")
        a(f"v_mov_b32 v103, s{sTAG}")
        a(f"v_lshlrev_b32 v96, 3, v{vC16}")
        a(f"s_and_b32 s3, s{sM}, 1")
        a(f"s_lshl_b32 s{sT}, s3, 5")
        a(f"s_lshr_b32 s3, s{sM}, 1")
        a(f"s_lshl_b32 s3, s3, 2")
        a(f"s_add_u32 s{sT}, s{sT}, s3")
        a(f"s_add_u32 s{sT}, s{sT}, s{sW}")
        a(f"s_lshl_b32 s{sT}, s{sT}, 4")
        a(f"s_add_u32 s{sT}, s{sT}, s{sG}")
        a(f"s_lshl_b32 s{sT}, s{sT}, 7")
        a(f"s_add_u32 s{sT}, s{sT}, {MODE}")
        a(f"s_mov_b32 s{sT + 6}, 0x00030003")
        a(f"s_mov_b32 s{sT + 7}, 0x00030003")
        a(f"s_mov_b64 exec, s[{sT + 6}:{sT + 7}]")
        self.st(100, 4, 96, SWS, sT, mods="sc1")
        a("s_mov_b64 exec, -1")
        a.wait(vm="rows")
        a(f"s_mov_b32 s3, 0x3f803f80")
        for r, base in ((0, 40), (1, 44)):
            a(f"v_dot2_f32_bf16 v{104 + 2 * r}, v{base}, s3, 0")
            a(f"v_dot2_f32_bf16 v{105 + 2 * r}, v{base}, v{base}, 0")
        for i in range(1, 4):
            for r, base in ((0, 40), (1, 44)):
                a(f"v_dot2_f32_bf16 v{104 + 2 * r}, v{base + i}, s3, v{104 + 2 * r}")
                a(f"v_dot2_f32_bf16 v{105 + 2 * r}, v{base + i}, v{base + i}, v{105 + 2 * r}")
        a("v_permlane32_swap_b32 v104, v106")
        a("v_permlane32_swap_b32 v105, v107")
        a("v_add_f32 v104, v104, v106")
        a("v_add_f32 v105, v105, v107")
        a("v_permlane16_swap_b32 v104, v105")
        a("v_add_f32 v104, v104, v105")
        self.ror_add([104], [8, 4, 2, 1])
        a("v_mov_b32 v106, v104")
        a("v_permlane16_swap_b32 v104, v106")
        self.ln_finish(104, 106, 105)
        a(f"s_or_b32 s3, s{sTAG}, s{sXCC}")
        a(f"v_mov_b32 v105, s3")
        a(f"v_mov_b32 v107, s{sTAG}")
        a(f"v_lshrrev_b32 v96, 1, v{vL}")
        a(f"s_lshl_b32 s{sT + 2}, s{sT + 2}, 4")
        a(f"s_add_u32 s{sT + 2}, s{sT + 2}, {ST1}")
        a(f"s_mov_b32 s{sT + 6}, 1")
        a(f"s_mov_b32 s{sT + 7}, 1")
        a(f"s_mov_b64 exec, s[{sT + 6}:{sT + 7}]")
        self.st(104, 4, 96, SWS, sT + 2, mods="sc1")
        a("s_mov_b64 exec, -1")
        self.stamp("pub1")
        for f in self.wtile_dmas(range(self.o.get("nu", 4)), "kv", "wkv0"):
            f()
        a.wait(vm="prep")
        for i in range(4):
            a(f"ds_read_b64_tr_b16 v[{68 + 4 * i}:{69 + 4 * i}], v95 offset:{i * 1024}", i)
            a(f"ds_read_b64_tr_b16 v[{70 + 4 * i}:{71 + 4 * i}], v95 offset:{i * 1024 + 512}", i)
        a(f"s_add_u32 s3, s{sD0}, s{sD2}")
        for i in range(4):
            a.wait(lg=i)
            self.st(68 + 4 * i, 4, vL16, SWS, sD0 if i < 2 else 3, imm=(i & 1) * 1024, mods="sc1")
        a.wait(vm="xs")
        self.unpack(112, 48, 8)
        a(f"s_and_b32 s3, s{sW}, 1")
        a(f"s_lshl_b32 s{sT}, s3, 5")
        a(f"s_lshl_b32 s3, s{sM}, 1")
        a(f"s_add_u32 s{sT}, s{sT}, s3")
        a(f"s_lshr_b32 s3, s{sW}, 1")
        a(f"s_add_u32 s{sT}, s{sT}, s3")
        a(f"s_lshl_b32 s{sT}, s{sT}, 11")
        a(f"s_add_u32 s{sT}, s{sT}, {MODE}")
        a(f"v_lshlrev_b32 v84, 5, v{vL}")
        a(f"v_and_b32 v85, 31, v{vL}")
        a(f"v_lshlrev_b32 v85, 4, v85")
        a(f"s_lshl_b32 s{sT + 1}, s{sGW}, 9")
        a(f"s_add_u32 s{sT + 1}, s{sT + 1}, {ST1}")
        a(f"v_and_b32 v86, 15, v{vL}")
        a(f"v_lshlrev_b32 v86, 7, v86")
        a(f"s_lshl_b32 s{sT + 2}, s{sG}, 11")
        a(f"s_add_u32 s{sT + 2}, s{sT + 2}, {ST1}")
        self.stamp("prepoll")

        def loads():
            self.ld(96, 4, 84, SWS, sT, mods="sc1")
            self.ld(100, 4, 84, SWS, sT, imm=16, mods="sc1")
            self.ld(104, 4, 85, SWS, sT + 1, mods="sc1")
            self.ld(108, 1, 86, SWS, sT + 2, imm=4, mods="sc1")

        def check():
            a(f"v_and_b32 v109, -16, v108")
            a(f"v_and_b32 v105, -16, v105")
            a(f"v_xor_b32 v109, s{sTAG}, v109")
            for r in (97, 99, 101, 103, 105, 107):
                a(f"v_bitop3_b32 v109, v109, v{r}, s{sTAG} bitop3:0xf6")
            a("v_cmp_ne_u32 vcc, 0, v109")
        self.poll(loads, check)
        self.stamp("modok")
        a(f"v_and_b32 v108, 15, v108")
        a(f"v_cmp_ne_u32 vcc, s{sXCC}, v108")
        a("s_cmp_eq_u64 vcc, 0")
        a(f"s_cselect_b32 s{sFAST}, 1, 0")
        if self.o.get("force_slow"):
            a(f"s_mov_b32 s{sFAST}, 0")
        a(f"s_cmp_lg_u32 s{sFAST}, 0")
        self.csel(sH2, H1, H2X)
        a("v_permlane32_swap_b32 v96, v100")
        a("v_permlane32_swap_b32 v98, v102")
        a("v_add_f32 v96, v96, v100")
        a("v_add_f32 v98, v98, v102")
        a("v_permlane16_swap_b32 v96, v98")
        a("v_add_f32 v96, v96, v98")
        self.ror_add([96], [8, 4])
        self.bf16r(96, 96)
        a(f"s_and_b32 s3, s{sW}, 1")
        a(f"v_cvt_f32_u32 v97, s3")
        a(f"v_add_f32 v96, v96, v97")
        self.bf16r(96, 96)
        a(f"v_and_b32 v97, 3, v{vL}")
        a(f"v_lshlrev_b32 v97, 2, v97")
        a(f"v_lshrrev_b32 v98, 5, v{vL}")
        a(f"v_lshl_add_u32 v97, v98, 1, v97")
        a(f"v_bfe_u32 v99, v{vL}, 4, 1")
        a(f"v_add_u32 v97, v97, v99")
        a(f"s_lshl_b32 s3, s3, 5")
        a(f"s_lshr_b32 s{sT}, s{sW}, 1")
        a(f"s_lshl_b32 s{sT}, s{sT}, 4")
        a(f"s_add_u32 s3, s3, s{sT}")
        a(f"v_add_u32 v97, s3, v97")
        a(f"v_lshlrev_b32 v97, 2, v97")
        a(f"v_add_u32 v97, {L_GS}, v97")
        a(f"ds_write_b32 v97, v96")
        a(f"v_lshlrev_b32 v98, 5, v98")
        a(f"v_add_u32 v98, {L_GS}, v98")
        a("v_mul_f32 v104, v104, v106")
        for i in range(16):
            a(f"v_fma_f32 v{112 + i}, v{112 + i}, v106, -v104")
        a.wait(lg=0)
        a("s_barrier")
        for s in range(2):
            for q in range(2):
                a(f"ds_read_b128 v[{32 + 8 * s + 4 * q}:{35 + 8 * s + 4 * q}], v98 offset:{128 + s * 64 + q * 16}", ("g", s))
                a(f"ds_read_b128 v[{48 + 8 * s + 4 * q}:{51 + 8 * s + 4 * q}], v98 offset:{s * 64 + q * 16}", ("g", s))
        a(f"v_mov_b32 v{vA1}, s{sTAG}")
        a(f"v_mov_b32 v{vA0}, 0")
        a(f"s_lshl_b32 s3, s{sP}, 2")
        a(f"s_add_u32 s3, s3, {F_PREP}")
        a(f"s_cmp_eq_u32 s{sW}, 0")
        a(f"s_cselect_b32 s3, s3, 0x7f000000")
        self.flag_store(3, "sc1")
        for s in range(2):
            a.wait(lg=[("g", s)])
            for i in range(8):
                a(f"v_fma_f32 v{112 + 8 * s + i}, v{112 + 8 * s + i}, v{32 + 8 * s + i}, v{48 + 8 * s + i}")
            for i in range(4):
                a(f"v_cvt_pk_bf16_f32 v{64 + 4 * s + i}, v{112 + 8 * s + 2 * i}, v{113 + 8 * s + 2 * i}")
        a(f"s_lshl_b32 s3, s{sM}, 2")
        a(f"s_add_u32 s3, s3, s{sT + 5}")

        def emit(mods):
            self.st(64, 4, vL16, SWS, sT + 4, mods=mods)
            self.st(68, 4, vL16, SWS, sT + 4, imm=1024, mods=mods)
            a.wait(vm=0)
            self.flag_store(3, mods)
        self.local_stores(emit)
        self.stamp("h1pub")

    def wtile_dmas(self, us, which, tag):
        a, out = self.a, []
        tiles = {"kv": ((L_WK, 1024), (L_WV, 2048)), "q": ((L_WQ, 0),)}[which]
        for u in us:
            for base, col in tiles:
                def f(u=u, base=base, col=col):
                    a(f"s_add_u32 s3, s{sWQO}, {u * 64 * 3072 + col}")
                    a(f"s_add_u32 m0, s{sWQL}, {base + u * 4096}")
                    self.dma(self.vWR, SWQ, 3, tag=tag)
                out.append(f)
        return out

    def xloads(self, X, sreg):
        out = []
        self.a.seen -= {("x", s) for s in range(32)}
        for s in range(32):
            def f(s=s):
                if s and s % 4 == 0:
                    self.a(f"s_add_u32 s{sreg}, s{sreg}, 4096")
                self.ld(X + 4 * s, 4, vL16, SWS, sreg, imm=(s % 4) * 1024, mods="sc1", tag=("x", s))
            out.append(f)
        return out

    def take(self, n):
        for _ in range(n):
            if self.bg:
                self.bg.pop(0)[1]()

    def take_until(self, name):
        while any(k == name for k, _ in self.bg):
            self.bg.pop(0)[1]()

    def touch_addr_ops(self, dst):
        o = []
        o.append(f"s_lshl_b32 s{sT}, s{sGW}, 15")
        o.append(f"s_lshl_b32 s{sT + 6}, s{sM}, 11")
        o.append(f"s_add_u32 s{sT}, s{sT}, s{sT + 6}")
        o.append(f"s_add_u32 s{sT}, s{sT}, {OO}")
        o.append(f"s_lshl_b32 s{sT + 1}, s{sG}, 2")
        o.append(f"s_add_u32 s{sT + 1}, s{sT + 1}, 3")
        o.append(f"s_sub_u32 s{sT + 1}, s{sT + 1}, s{sW}")
        o.append(f"s_lshl_b32 s{sT + 1}, s{sT + 1}, 15")
        o.append(f"s_add_u32 s{sT + 1}, s{sT + 1}, s{sT + 6}")
        o.append(f"s_add_u32 s{sT + 1}, s{sT + 1}, {OO + 1024 - 8 * 128}")
        o.append(f"s_lshl_b32 s{sT + 2}, s{sG}, 2")
        o.append(f"s_add_u32 s{sT + 2}, s{sT + 2}, s{sRT}")
        o.append(f"s_lshl_b32 s{sT + 2}, s{sT + 2}, 13")
        o.append(f"s_lshr_b32 s{sT + 6}, s{sF0}, 6")
        o.append(f"s_lshl_b32 s{sT + 6}, s{sT + 6}, 10")
        o.append(f"s_add_u32 s{sT + 2}, s{sT + 2}, s{sT + 6}")
        o.append(f"s_add_u32 s{sT + 2}, s{sT + 2}, {ST2 - 16 * 128}")
        o.append(f"s_lshl_b32 s{sT + 3}, s{sG}, 9")
        o.append(f"s_add_u32 s{sT + 3}, s{sT + 3}, {F_O - 24 * 128}")
        o.append(f"s_lshl_b32 s{sT + 4}, s{sG}, 8")
        o.append(f"s_add_u32 s{sT + 5}, s{sT + 4}, {F_HID - 30 * 128}")
        o.append(f"s_add_u32 s{sT + 4}, s{sT + 4}, {F_H2 - 28 * 128}")
        o.append(f"v_mov_b32 v{dst}, s{sT + 5}")
        o.append(f"v_and_b32 v{vA0}, 31, v{vL}")
        for lim, sreg in ((30, sT + 4), (28, sT + 3), (24, sT + 2), (16, sT + 1), (8, sT)):
            o.append(f"v_cmp_gt_u32 vcc, {lim}, v{vA0}")
            o.append(f"v_mov_b32 v{vA2}, s{sreg}")
            o.append("s_nop 0")
            o.append(f"v_cndmask_b32 v{dst}, v{dst}, v{vA2}, vcc")
        o.append(f"v_lshl_add_u32 v{dst}, v{vA0}, 7, v{dst}")
        return o

    def setup_background(self):
        o = []
        o.append(f"s_lshl_b32 s{sWO}, s{sF0}, 10")
        o.append(f"s_add_u32 s{sWO}, s{sWO}, {WOF}")
        o.append(f"s_lshr_b32 s{sW2}, s{sF0}, 5")
        o.append(f"s_mul_i32 s{sW2}, s{sW2}, {86 * 1024}")
        o.append(f"s_add_u32 s{sW2}, s{sW2}, {W2F}")
        o.append(f"s_mul_i32 s{sFT0}, s{sM}, 3")
        o.append(f"s_lshl_b32 s{sW1}, s{sM}, 1")
        o.append(f"s_add_u32 s{sW1}, s{sW1}, 11")
        o.append(f"s_min_u32 s{sFT0}, s{sFT0}, s{sW1}")
        o.append(f"s_lshl_b32 s{sW1}, s{sFT0}, 15")
        o.append(f"s_lshl_b32 s{sW4K}, s{sW}, 12")
        o.append(f"s_add_u32 s{sW1}, s{sW1}, s{sW4K}")
        o.append(f"s_add_u32 s{sW1}, s{sW1}, {W1F}")
        o.append(f"s_add_u32 s{sW1C}, s{sW1}, 65536")
        o.append(f"s_cmp_ge_u32 s{sM}, 11\ns_cselect_b32 s{sW1C}, 0x7f000000, s{sW1C}")
        o.append(f"s_mul_i32 s{sHID}, s{sGW}, {86 * 1024}")
        o.append(f"s_lshl_b32 s{sLATE}, s{sFT0}, 11")
        o.append(f"s_add_u32 s{sHID}, s{sHID}, s{sLATE}")
        o.append(f"s_add_u32 s{sHID}, s{sHID}, {HID}")
        return o

    def w1_dmas(self, us):
        a, out = self.a, []
        for u in us:
            for f in range(4):
                def g(u=u, f=f):
                    if f == 0:
                        a(f"s_add_u32 s{sBG}, s{sW1 if u < 4 else sW1C}, {(u % 4) * 16384}")
                    a(f"s_add_u32 m0, s{sW4K}, {L_W1 + u * 16384}")
                    self.dma(vL16, SWS, sBG, imm=f * 1024, mods="sc1", tag="w1")
                out.append(g)
        return out

    def g1(self):
        a = self.a
        X, WR, ACK, ACV, ACQ = 128, 32, 96, 112, 80
        nu = self.o.get("nu", 4)
        a(f"v_and_b32 v{vA0}, 15, v{vL}")
        a(f"v_lshlrev_b32 v{vA0}, 2, v{vA0}")
        a(f"s_lshl_b32 s{sT + 8}, s{sGW}, 15")
        a(f"s_add_u32 s{sT + 8}, s{sT + 8}, {H1}")

        def rd(tile_base, s, dst, tag):
            v, off = (vTR, tile_base) if tile_base < 65536 else (vTR2, tile_base - 65536)
            a(f"ds_read_b64_tr_b16 v[{dst}:{dst + 1}], v{v} offset:{off + s * 1024}", tag)
            a(f"ds_read_b64_tr_b16 v[{dst + 2}:{dst + 3}], v{v} offset:{off + s * 1024 + 256}", tag)

        wk = lambda s: WR + 8 * (s % 4)
        wv = lambda s: WR + 8 * (s % 4) + 4
        for s in range(2):
            rd(L_WK, s, wk(s), ("k", s))
            rd(L_WV, s, wv(s), ("v", s))
        self.poll_flags(vA0, sT + 5)
        self.stamp("h1ok")
        xl = self.xloads(X, sT + 8)
        ahead = self.o.get("xahead", 6)
        for _ in range(ahead):
            xl.pop(0)()
        rest = self.wtile_dmas(range(nu, 8), "kv", "wkv1") + self.wtile_dmas(range(8), "q", "wq")
        fill = self.touch_addr_ops(vA1) + self.setup_background()
        for s in range(32):
            a.wait(vm=[("x", s)], lg=[("k", s)])
            c = "0" if s == 0 else vr(ACK, 16)
            a(f"v_mfma_f32_32x32x16_bf16 {vr(ACK, 16)}, {vr(wk(s), 4)}, {vr(X + 4 * s, 4)}, {c}")
            if s + 2 == 4 * nu and nu < 8:
                a.wait(vm="wkv1")
                a("s_barrier")
            if xl:
                xl.pop(0)()
            if s + 2 < 32:
                rd(L_WK, s + 2, wk(s + 2), ("k", s + 2))
            a.wait(lg=[("v", s)])
            c = "0" if s == 0 else vr(ACV, 16)
            a(f"v_mfma_f32_32x32x16_bf16 {vr(ACV, 16)}, {vr(X + 4 * s, 4)}, {vr(wv(s), 4)}, {c}")
            if rest:
                rest.pop(0)()
            else:
                for _ in range(4):
                    if fill:
                        a(fill.pop(0))
            if s + 2 < 32:
                rd(L_WV, s + 2, wv(s + 2), ("v", s + 2))
        assert not rest
        while fill:
            a(fill.pop(0))
        self.stamp("pass1")
        a(f"s_lshl_b32 s{sT}, s{sP}, 2")
        a(f"s_add_u32 s{sT}, s{sT}, s{sW}")
        a(f"s_lshl_b32 s{sT + 1}, s{sT}, 2")
        a(f"s_add_u32 s{sT + 1}, s{sT + 1}, {F_KV}")
        a(f"s_lshl_b32 s{sT}, s{sT}, 12")
        a(f"s_add_u32 s{sT}, s{sT}, {KV}")
        a(f"s_lshl_b32 s3, s{sW}, 12")
        a(f"s_add_u32 s3, s3, {L_KV + 8 * 4096}")
        a(f"v_add_u32 v{vA0}, s3, v{vL16}")
        a(f"s_mov_b32 s{sT + 2}, {F_PREP}")
        a.wait(vm="wq")
        a("s_barrier")
        wq = lambda s: WR + 4 * (s % 4)
        for s in range(3):
            rd(L_WQ, s, wq(s), ("q", s))
        fill = []
        for f in range(4):
            src = ACK + 8 * f
            fill += [f"v_cvt_pk_bf16_f32 v{64 + 4 * f + i}, v{src + 2 * i}, v{src + 2 * i + 1}" for i in range(4)]
            fill.append(lambda f=f: self.st(64 + 4 * f, 4, vL16, SWS, sT, imm=f * 1024, mods="sc1", tag="kv"))
        fill.append(lambda: self.ld(vQA, 4, vL16, SWS, sT + 2, mods="sc1", tag="prepf"))
        fill.append(lambda: self.ld(vA2, 1, vA1, SWS, "0", mods="sc1", tag="opt"))
        fill += [f"ds_write_b128 v{vA0}, {vr(64 + 4 * f, 4)} offset:{f * 1024}" for f in range(4)]
        fill += self.attn_setup()
        self.bg = [("wo", f) for f in self.wfrag_loads(sWO, 0, 32, "a", "wo")]
        sflag = self.o.get("sflag", 16)
        for s in range(32):
            a.wait(lg=[("q", s)])
            c = "0" if s == 0 else vr(ACQ, 16)
            a(f"v_mfma_f32_32x32x16_bf16 {vr(ACQ, 16)}, {vr(wq(s), 4)}, {vr(X + 4 * s, 4)}, {c}")
            if s + 3 < 32:
                rd(L_WQ, s + 3, wq(s + 3), ("q", s + 3))
            for _ in range(5 if s < 6 else 3):
                if fill:
                    f = fill.pop(0)
                    a(f) if isinstance(f, str) else f()
            if s == sflag:
                a(f"v_mov_b32 v{vQB}, s{sTAG}")
                a(f"v_mov_b32 v{vQB + 1}, 0")
                a.wait(vm="prepf")
                a("s_mov_b64 exec, 1")
                self.st(vQB, 1, vQB + 1, SWS, sT + 1, mods="sc1")
                a("s_mov_b64 exec, -1")

                def check():
                    a(f"v_xor_b32 v{vQB + 2}, s{sTAG}, v{vQA}")
                    for r in range(1, 4):
                        a(f"v_bitop3_b32 v{vQB + 2}, v{vQB + 2}, v{vQA + r}, s{sTAG} bitop3:0xf6")
                    a(f"v_cmp_ne_u32 s[{sT + 4}:{sT + 5}], 0, v{vQB + 2}")
                check()
                a(f"s_cmp_eq_u64 s[{sT + 4}:{sT + 5}], 0")
                a("s_cbranch_scc1 L_prep_seen")
                snap = a.snapshot()

                def check2():
                    a(f"s_mov_b64 s[{sT + 6}:{sT + 7}], vcc")
                    check()
                    a(f"s_mov_b64 vcc, s[{sT + 4}:{sT + 5}]")
                a(f"s_mov_b64 s[{sT + 8}:{sT + 9}], vcc")
                self.poll(lambda: self.ld(vQA, 4, vL16, SWS, sT + 2, mods="sc1"), check2)
                a(f"s_mov_b64 vcc, s[{sT + 8}:{sT + 9}]")
                a.restore(snap)
                a.L("L_prep_seen")
            if s > sflag and s % 2 == 1:
                self.take(1)
        while fill:
            f = fill.pop(0)
            a(f) if isinstance(f, str) else f()
        a(f"s_sub_u32 s3, 3, s{sW}")
        a(f"s_lshl_b32 s3, s3, 10")
        a(f"s_add_u32 s3, s3, {L_QX}")
        a(f"v_add_u32 v{vA0}, s3, v{vL16}")
        a(f"s_lshl_b32 s3, s{sW}, 10")
        a(f"s_add_u32 s3, s3, {L_QX}")
        a(f"v_add_u32 v{vA1}, s3, v{vL16}")
        self.attn_addresses()
        sc = fbits(0.25 * LOG2E)
        for i in list(range(8, 16)) + list(range(8)):
            a(f"v_mul_f32 v{ACQ + i}, {sc}, v{ACQ + i}")
        for i in range(4):
            a(f"v_cvt_pk_bf16_f32 v{vQB + i}, v{ACQ + 8 + 2 * i}, v{ACQ + 9 + 2 * i}")
        a(f"ds_write_b128 v{vA0}, {vr(vQB, 4)}")
        for i in range(4):
            a(f"v_cvt_pk_bf16_f32 v{vQA + i}, v{ACQ + 2 * i}, v{ACQ + 1 + 2 * i}")
        a.wait(lg=0)
        a("s_barrier")
        a(f"ds_read_b128 {vr(vQB, 4)}, v{vA1}", "qb")
        self.stamp("pass2")

    MD, MF = 48, 16
    S0, OA, OB = 64, 96, 112
    KR, VR, PR = 128, 136, 160
    vKVB, vONE, vVA, vVB = 176, 177, 180, 192
    XR = 204
    MLR = 212

    def attn_setup(self):
        out = []
        t0, t1 = 112, 113
        out.append(f"v_and_b32 v{t0}, 31, v{vL}")
        out.append(f"v_lshrrev_b32 v{t1}, 5, v{vL}")
        out.append(f"v_lshlrev_b32 v{t1}, 2, v{t1}")
        out.append(f"v_sub_u32 v{t0}, v{t0}, v{t1}")
        out.append(f"v_mov_b32 v{t1}, {fbits(-1e30)}")
        for r in range(16):
            key = 8 * (r >> 2) + (r & 3)
            out.append(f"v_cmp_le_i32 vcc, {key}, v{t0}")
            out.append(f"v_cndmask_b32 v{self.MD + r}, v{t1}, 0, vcc"
                       .replace("v_cndmask_b32", "v_cndmask_b32_e64"))
            out.append(f"v_sub_f32 v{self.MF + r}, v{t1}, v{self.MD + r}")
        return out

    def attn_addresses(self):
        a = self.a
        t = self.vONE + 1
        a(f"v_add_u32 v{self.vKVB}, {L_KV}, v{vL16}")
        a(f"v_mov_b32 v{self.vONE}, {L_GS - 2048}")
        a(f"v_and_b32 v{t}, 16, v{vL}")
        a(f"v_cmp_eq_u32 vcc, 0, v{t}")
        for i in range(4):
            a(f"v_mov_b32 v{self.PR + i}, 0x3f803f80")
        a(f"ds_write_b128 v{self.vONE}, {vr(self.PR, 4)} offset:2048")
        a(f"ds_write_b128 v{self.vONE}, {vr(self.PR, 4)} offset:3072")
        for b in range(12):
            a(f"v_add_u32 v{t + b % 2}, {b * 4096}, v{self.vKVB}")
            a(f"v_cndmask_b32 v{self.vVA + b}, v{self.vONE}, v{t + b % 2}, vcc")
            a(f"v_cndmask_b32 v{self.vVB + b}, v{t + b % 2}, v{self.vONE}, vcc")

    def attn_items(self, items, first, quota=0):
        a = self.a
        first = set(first)
        n = len(items)
        S = lambda i: self.S0 + 16 * (i % 2)
        P = lambda i: self.PR + 8 * (i % 2)
        K = lambda i: self.KR + 4 * (i % 2)
        V = lambda i: self.VR + 8 * (i % 3)

        def ldk(i):
            u, b, _ = items[i]
            a(f"ds_read_b128 {vr(K(i), 4)}, v{self.vKVB} offset:{b * 4096 + u * 1024}", ("K", i))

        def ldv(i):
            u, b, _ = items[i]
            va = (self.vVB if u else self.vVA) + b
            a(f"ds_read_b128 {vr(V(i), 4)}, v{va} offset:2048", ("V", i))
            a(f"ds_read_b128 {vr(V(i) + 4, 4)}, v{va} offset:3072", ("V", i))

        def qk(i):
            u, _, mask = items[i]
            c = {None: "0", "d": vr(self.MD, 16), "f": vr(self.MF, 16)}[mask]
            a.wait(lg=[("K", i)])
            a(f"v_mfma_f32_32x32x16_bf16 {vr(S(i), 16)}, {vr(K(i), 4)}, {vr(vQB if u else vQA, 4)}, {c}")

        def pv(i, half):
            u = items[i][0]
            o = vr(self.OB if u else self.OA, 16)
            c = o
            if half == 0:
                a.wait(lg=[("V", i)])
                if u in first:
                    first.discard(u)
                    c = "0"
            a(f"v_mfma_f32_32x32x16_bf16 {o}, {vr(V(i) + 4 * half, 4)}, {vr(P(i) + 4 * half, 4)}, {c}")

        ex = lambda i, r: a(f"v_exp_f32 v{S(i) + r}, v{S(i) + r}")
        cv = lambda i, k: a(f"v_cvt_pk_bf16_f32 v{P(i) + k}, v{S(i) + 2 * k}, v{S(i) + 2 * k + 1}")

        ldk(0)
        if n > 1:
            ldk(1)
        ldv(0)
        a.wait(lg="qb")
        qk(0)
        for i in range(n):
            if i + 1 < n:
                qk(i + 1)
            ex(i, 0)
            if i + 2 < n:
                ldk(i + 2)
            ex(i, 1)
            if i + 1 < n:
                ldv(i + 1)
            ex(i, 2)
            ex(i, 3)
            if i:
                pv(i - 1, 0)
            for r in range(4, 16):
                ex(i, r)
                slots = (5, 13, 9, 7, 11)
                if r == 4:
                    per = min(-(-quota // (n - i)), len(slots))
                if r in slots[:per]:
                    self.take(1)
                    quota -= 1
                if r % 2 == 1:
                    cv(i, (r - 5) // 2)
                if r == 8 and i:
                    pv(i - 1, 1)
            cv(i, 6)
            cv(i, 7)
        pv(n - 1, 0)
        pv(n - 1, 1)
        self.take(quota)

    def fallback(self, u):
        a = self.a
        S, P, K, V = self.S0, self.PR, self.KR, self.VR
        O = self.OB if u else self.OA
        Q = vQB if u else vQA
        vM, vKA, vVAd = self.S0 + 16, self.S0 + 17, self.S0 + 18
        sB, sE, sQB = sT, sT + 1, sT + 2
        if u:
            a(f"s_sub_u32 s{sQB}, 3, s{sW}")
        else:
            a(f"s_mov_b32 s{sQB}, s{sW}")
        a(f"s_add_u32 s{sE}, s{sQB}, 8")
        a(f"v_mov_b32 v{vM}, {fbits(-3e38)}")
        for r in range(16):
            a(f"v_mov_b32 v{O + r}, 0")
        a(f"v_and_b32 v{vA0}, 16, v{vL}")
        a(f"v_cmp_{'ne' if u else 'eq'}_u32 s[{sT + 4}:{sT + 5}], 0, v{vA0}")
        for ps in range(2):
            top, nd, nf = a.newlabel("fb"), a.newlabel("fbd"), a.newlabel("fbf")
            a(f"s_lshl_b32 s3, s{sG}, 2")
            a(f"s_sub_i32 s3, 8, s3")
            a(f"s_max_i32 s{sB}, s3, s{sQB}")
            a.L(top)
            a(f"s_lshl_b32 s3, s{sB}, 12")
            a(f"v_add_u32 v{vKA}, s3, v{self.vKVB}")
            a(f"v_cndmask_b32_e64 v{vVAd}, v{self.vONE}, v{vKA}, s[{sT + 4}:{sT + 5}]")
            a(f"ds_read_b128 {vr(K, 4)}, v{vKA} offset:{u * 1024}")
            a(f"ds_read_b128 {vr(V, 4)}, v{vVAd} offset:2048")
            a(f"ds_read_b128 {vr(V + 4, 4)}, v{vVAd} offset:3072")
            a.wait(lg=0)
            a(f"v_mfma_f32_32x32x16_bf16 {vr(S, 16)}, {vr(K, 4)}, {vr(Q, 4)}, 0")
            a("s_nop 11")
            a(f"s_cmp_eq_u32 s{sB}, s{sE}")
            a(f"s_cbranch_scc0 {nd}")
            for r in range(16):
                a(f"v_add_f32 v{S + r}, v{S + r}, v{self.MD + r}")
            a.L(nd)
            a(f"s_cmp_eq_u32 s{sB}, s{sQB}")
            a(f"s_cbranch_scc0 {nf}")
            for r in range(16):
                a(f"v_add_f32 v{S + r}, v{S + r}, v{self.MF + r}")
            a.L(nf)
            if ps == 0:
                for r in range(0, 16, 2):
                    a(f"v_max3_f32 v{vM}, v{S + r}, v{S + r + 1}, v{vM}")
            else:
                for r in range(16):
                    a(f"v_sub_f32 v{S + r}, v{S + r}, v{vM}")
                for r in range(16):
                    a(f"v_exp_f32 v{S + r}, v{S + r}")
                for k in range(8):
                    a(f"v_cvt_pk_bf16_f32 v{P + k}, v{S + 2 * k}, v{S + 2 * k + 1}")
                for half in range(2):
                    a(f"v_mfma_f32_32x32x16_bf16 {vr(O, 16)}, {vr(V + 4 * half, 4)}, {vr(P + 4 * half, 4)}, {vr(O, 16)}")
            a(f"s_add_u32 s{sB}, s{sB}, 1")
            a(f"s_cmp_le_u32 s{sB}, s{sE}")
            a(f"s_cbranch_scc1 {top}")
            if ps == 0:
                a(f"v_mov_b32 v{vKA}, v{vM}")
                a(f"v_permlane32_swap_b32 v{vM}, v{vKA}")
                a(f"v_max_f32 v{vM}, v{vM}, v{vKA}")
        a("s_nop 11")

    def wfrag_loads(self, sreg, dst, n, kind, tag, first=0):
        out = []
        for i in range(n):
            def f(i=i):
                if first + i and i % 4 == 0:
                    self.a(f"s_add_u32 s{sreg}, s{sreg}, 4096")
                self.ld(dst + 4 * i, 4, vL16, SWS, sreg, imm=(i % 4) * 1024, mods="sc1", tag=(tag, first + i), kind=kind)
            out.append(f)
        return out

    def late_loads(self):
        a, LT = self.a, self.MLR
        a(f"v_lshrrev_b32 v{LT + 11}, 1, v{vL}")
        a(f"v_mul_u32_u24 v{LT + 10}, 6144, v{LT + 11}")
        a(f"v_and_b32 v{LT + 12}, 1, v{vL}")
        a(f"v_lshl_add_u32 v{LT + 10}, v{LT + 12}, 4, v{LT + 10}")
        a(f"v_lshlrev_b32 v{LT + 11}, 1, v{LT + 11}")
        a(f"s_and_b32 s{sT + 6}, s{sP}, 7")
        a(f"s_mul_i32 s{sT + 7}, s{sT + 6}, {64 * 6144}")
        a(f"s_lshr_b32 s3, s{sP}, 3")
        a(f"s_lshl_b32 s3, s3, 6")
        a(f"s_lshl_b32 s{sLATE}, s{sW}, 4")
        a(f"s_add_u32 s{sLATE}, s{sLATE}, s3")
        a(f"s_lshl_b32 s3, s{sLATE}, 1")
        a(f"s_add_u32 s{sT + 7}, s{sT + 7}, s3")
        a(f"s_add_u32 s{sT + 7}, s{sT + 7}, 2048")
        a(f"s_add_u32 s{sT + 8}, s{sT + 7}, {32 * 6144}")
        a(f"s_lshl_b32 s{sT + 9}, s{sT + 6}, 7")
        a(f"s_lshl_b32 s{sT + 6}, s{sT + 6}, 11")
        a(f"s_add_u32 s{sLATE}, s{sLATE}, s{sT + 6}")
        a(f"s_lshl_b32 s{sLATE}, s{sLATE}, 2")
        a(f"s_add_u32 s{sLATE}, s{sLATE}, {MODL}")
        return [
            lambda: self.ld(LT, 4, LT + 10, SWM, sT + 7, tag="wl", mods="nt"),
            lambda: self.ld(LT + 4, 4, LT + 10, SWM, sT + 8, tag="wl", mods="nt"),
            lambda: a(f"buffer_load_ushort v{LT + 8}, v{LT + 11}, {sr(SC, 4)}, s{sT + 9} offen", "wl"),
            lambda: a(f"buffer_load_ushort v{LT + 9}, v{LT + 11}, {sr(SC, 4)}, s{sT + 9} offen offset:64", "wl"),
        ]

    def late_partials(self):
        a, LT, T = self.a, self.MLR, 228
        a.wait(vm="wl")
        self.silu_bf16(LT + 10, LT + 8, LT + 12)
        self.silu_bf16(LT + 11, LT + 9, LT + 12)
        self.unpack(T, LT, 4)
        self.unpack(T + 8, LT + 4, 4)
        for i in range(8):
            a(f"v_mul_f32 v{T + i}, v{LT + 10}, v{T + i}")
        for i in range(8):
            a(f"v_fmac_f32 v{T + i}, v{LT + 11}, v{T + 8 + i}")
        self.reduce8(T)
        a(f"v_and_b32 v{LT}, 1, v{vL}")
        a(f"v_lshlrev_b32 v{LT + 1}, 5, v{LT}")
        a(f"v_lshrrev_b32 v{LT}, 5, v{vL}")
        a(f"v_lshl_add_u32 v{LT + 1}, v{LT}, 4, v{LT + 1}")
        a(f"v_bfe_u32 v{LT}, v{vL}, 4, 1")
        a(f"v_lshl_add_u32 v{LT + 1}, v{LT}, 3, v{LT + 1}")
        a(f"s_mov_b32 s{sT + 6}, 0x00030003")
        a(f"s_mov_b32 s{sT + 7}, 0x00030003")
        a(f"s_mov_b64 exec, s[{sT + 6}:{sT + 7}]")
        self.st(T, 2, LT + 1, SWS, sLATE, mods="sc1")
        a("s_mov_b64 exec, -1")

    def variants(self, labels_emit):
        a = self.a
        snap, bg = a.snapshot(), list(self.bg)
        for label, emit, tail in labels_emit:
            a.restore(snap)
            self.bg = list(bg)
            if label:
                a.L(label)
            emit()
            if tail:
                a(f"s_branch {tail}")

    def attention(self):
        a = self.a
        self.bg = [("wl", f) for f in self.late_loads()] + self.bg
        for w in range(1, 4):
            a(f"s_cmp_eq_u32 s{sW}, {w}")
            a(f"s_cbranch_scc1 L_own{w}")

        def own(w):
            ua = [(0, 8 + i, "d" if i == w else None) for i in range(w + 1)]
            ub = [(1, 8 + i, "d" if i == 3 - w else None) for i in range(4 - w)]
            self.attn_items(ua + ub, first=(0, 1), quota=self.o.get("q_own", 15))
        self.variants([(f"L_own{w}" if w else None, lambda w=w: own(w), "L_own_done" if w < 3 else None) for w in range(4)])
        a.L("L_own_done")
        self.stamp("own")
        self.late_partials()
        a(f"s_lshl_b32 s{sT}, s{sP}, 2")
        a(f"s_add_u32 s{sT}, s{sT}, s{sW}")
        a(f"s_sub_u32 s{sT + 1}, s{sT}, 64")
        a(f"s_sub_u32 s{sT + 2}, s{sT}, 128")
        a(f"s_cmp_ge_u32 s{sG}, 1")
        a(f"s_cselect_b32 s{sT + 3}, s{sT + 1}, s{sT}")
        a(f"s_cmp_ge_u32 s{sG}, 2")
        a(f"s_cselect_b32 s{sT + 4}, s{sT + 2}, s{sT}")
        a(f"v_mov_b32 v{vA0}, s{sT + 3}")
        a(f"v_mov_b32 v{vA1}, s{sT + 4}")
        a(f"v_and_b32 v{self.MLR}, 1, v{vL}")
        a(f"v_cmp_eq_u32 vcc, 0, v{self.MLR}")
        a(f"v_cndmask_b32 v{vA0}, v{vA0}, v{vA1}, vcc")
        a(f"v_lshlrev_b32 v{vA0}, 2, v{vA0}")
        a(f"s_mov_b32 s{sT + 5}, {F_KV}")
        for k, (sreg, lim) in enumerate(((sT + 2, 2), (sT + 1, 1))):
            a(f"s_lshl_b32 s{sreg}, s{sreg}, 12")
            a(f"s_add_u32 s{sreg}, s{sreg}, {KV}")
            a(f"s_cmp_ge_u32 s{sG}, {lim}")
            a(f"s_cselect_b32 s{sreg}, s{sreg}, 0x7f000000")
        self.poll_flags(vA0, sT + 5)
        self.stamp("kvok")
        for k, sreg in enumerate((sT + 2, sT + 1)):
            a(f"s_add_u32 m0, s{sW4K}, {L_KV + k * 4 * 4096}")
            for f in range(4):
                self.dma(vL16, SWS, sreg, imm=f * 1024, mods="sc1", tag="rkv")
        a(f"v_and_b32 v{vA0}, 31, v{vL}")
        a(f"v_lshlrev_b32 v{vA0}, 10, v{vA0}")
        a(f"v_lshrrev_b32 v{vA1}, 5, v{vL}")
        a(f"v_lshl_add_u32 v{vA0}, v{vA1}, 4, v{vA0}")
        a(f"s_lshl_b32 s3, s{sG}, 2")
        a(f"s_add_u32 s3, s3, s{sRT}")
        a(f"s_lshl_b32 s3, s3, 15")
        a(f"s_lshl_b32 s{sT}, s{sF0}, 1")
        a(f"s_add_u32 s3, s3, s{sT}")
        self.ld(self.XR, 4, vA0, SX, 3, tag="xr")
        self.ld(self.XR + 4, 4, vA0, SX, 3, imm=32, tag="xr")
        a(f"s_lshl_b32 s{sT}, s{sP}, 2")
        a(f"s_add_u32 s{sT}, s{sT}, {F_LATE}")
        a(f"s_cmp_eq_u32 s{sP}, 0")
        a(f"s_cselect_b32 s3, {WS_E}, 0x7f000000")
        a(f"v_mov_b32 v{vA0}, s{sT}")
        a(f"v_writelane_b32 v{vA0}, s3, 1")
        a(f"s_cmp_eq_u32 s{sW}, 0")
        a(f"s_cselect_b32 s{sT}, 0, 0x7f000000")
        a(f"v_mov_b32 v{vA1}, s{sTAG}")
        self.bg += [("w1", f) for f in self.w1_dmas(range(4))]
        self.w2 = self.wfrag_loads(sW2, 128, 32, "a", "w2") + self.wfrag_loads(sW2, 0, 32, "a", "w2", first=32) \
            + self.wfrag_loads(sW2, 128, 22, "v", "w2", first=64)
        self.bg += [("w2a", f) for f in self.w2[:32]]
        a.wait(vm="rkv")
        a("s_barrier")
        self.flag_store(sT, "sc1", lanes=2)
        self.stamp("kvin")
        a(f"s_cmp_eq_u32 s{sG}, 0")
        a("s_cbranch_scc1 L_rem_g0")
        a(f"s_cmp_eq_u32 s{sG}, 1")
        a("s_cbranch_scc1 L_rem_g1")
        for w in range(1, 4):
            a(f"s_cmp_eq_u32 s{sW}, {w}")
            a(f"s_cbranch_scc1 L_rem{w}")
        q = self.o.get("q_rem", 32)

        def rem(w):
            ua = [(0, b, "f" if b == w else None) for b in range(w, 8)]
            ub = [(1, b, "f" if b == 3 - w else None) for b in range(3 - w, 8)]
            self.attn_items(ua + ub, first=(), quota=q)
        self.variants([(f"L_rem{w}" if w else None, lambda w=w: rem(w), "L_rem_done") for w in range(4)]
                      + [("L_rem_g1", lambda: self.attn_items([(u, b, None) for u in range(2) for b in range(4, 8)],
                                                              first=(), quota=q), "L_rem_done"),
                         ("L_rem_g0", lambda: self.take(q), None)])
        a.L("L_rem_done")
        self.take_until("w1")
        a(f"s_mov_b32 s{sT + 10}, {F_LATE}")
        self.ld(self.MLR, 4, vL16, SWS, sT + 10, mods="sc1")
        self.stamp("attn")
        lo, hi = fbits(2.0 ** -60), fbits(2.0 ** 60)
        for u, (O, lreg) in enumerate(((self.OA, self.OA + 8), (self.OB, self.OB))):
            ok = a.newlabel("ok")
            a(f"v_cmp_lt_f32 vcc, {lo}, v{lreg}")
            a(f"s_mov_b64 s[{sT}:{sT + 1}], vcc")
            a(f"v_cmp_gt_f32 vcc, {hi}, v{lreg}")
            a(f"s_and_b64 s[{sT}:{sT + 1}], s[{sT}:{sT + 1}], vcc")
            if self.o.get("force_fallback"):
                a(f"s_mov_b64 s[{sT}:{sT + 1}], 0")
            a(f"s_cmp_eq_u64 s[{sT}:{sT + 1}], -1")
            a(f"s_cbranch_scc1 {ok}")
            self.fallback(u)
            a.L(ok)
        a(f"v_rcp_f32 v{self.OA + 9}, v{self.OA + 8}")
        a(f"v_rcp_f32 v{self.OB + 1}, v{self.OB}")
        for i in range(8):
            a(f"v_mul_f32 v{self.OA + i}, v{self.OA + i}, v{self.OA + 9}")
        for i in range(4):
            a(f"v_cvt_pk_bf16_f32 v{64 + i}, v{self.OA + 2 * i}, v{self.OA + 2 * i + 1}")
        for i in range(8):
            a(f"v_mul_f32 v{self.OB + 8 + i}, v{self.OB + 8 + i}, v{self.OB + 1}")
        for i in range(4):
            a(f"v_cvt_pk_bf16_f32 v{68 + i}, v{self.OB + 8 + 2 * i}, v{self.OB + 9 + 2 * i}")
        a(f"s_lshl_b32 s{sT}, s{sGW}, 5")
        a(f"s_lshl_b32 s3, s{sM}, 1")
        a(f"s_add_u32 s{sT}, s{sT}, s3")
        a(f"s_lshl_b32 s{sT + 1}, s{sG}, 2")
        a(f"s_add_u32 s{sT + 1}, s{sT + 1}, 3")
        a(f"s_sub_u32 s{sT + 1}, s{sT + 1}, s{sW}")
        a(f"s_lshl_b32 s{sT + 1}, s{sT + 1}, 5")
        a(f"s_add_u32 s{sT + 1}, s{sT + 1}, s3")
        a(f"s_add_u32 s{sT + 1}, s{sT + 1}, 1")
        a(f"s_sub_u32 s3, s{sT + 1}, s{sT}")
        a(f"v_mul_lo_u32 v{vA0}, s3, v{vL}")
        a(f"v_add_lshl_u32 v{vA0}, v{vA0}, s{sT}, 2")
        a(f"v_mov_b32 v{vA1}, s{sTAG}")
        a(f"s_lshl_b32 s{sT}, s{sT}, 10")
        a(f"s_add_u32 s{sT}, s{sT}, {OO}")
        a(f"s_lshl_b32 s{sT + 1}, s{sT + 1}, 10")
        a(f"s_add_u32 s{sT + 1}, s{sT + 1}, {OO}")
        a(f"s_mov_b32 s{sT + 2}, {F_O}")

        def emit(mods):
            self.st(64, 4, vL16, SWS, sT, mods=mods)
            self.st(68, 4, vL16, SWS, sT + 1, mods=mods)
            a.wait(vm=0)
            self.flag_store(sT + 2, mods, lanes=2)
        self.local_stores(emit)
        self.stamp("opub")

    def g2(self):
        a = self.a
        ACC, XR_, GA = 96, 128, 32
        M = self.MLR
        vML = self.vML = 3

        def check():
            a(f"v_xor_b32 v{vA2}, s{sTAG}, v{M}")
            for r in range(1, 4):
                a(f"v_bitop3_b32 v{vA2}, v{vA2}, v{M + r}, s{sTAG} bitop3:0xf6")
            a(f"v_cmp_ne_u32 vcc, 0, v{vA2}")
        check()
        a("s_cbranch_vccz L_late_seen")
        snap = a.snapshot()
        self.poll(lambda: self.ld(M, 4, vL16, SWS, sT + 10, mods="sc1"), check)
        a.restore(snap)
        a.L("L_late_seen")
        a(f"v_and_b32 v{vA0}, 7, v{vL}")
        a(f"v_lshlrev_b32 v{vA0}, 4, v{vA0}")
        a(f"v_bfe_u32 v{vA2}, v{vL}, 3, 2")
        a(f"v_lshl_add_u32 v{vA0}, v{vA2}, 11, v{vA0}")
        a(f"v_lshrrev_b32 v{vA1}, 5, v{vL}")
        a(f"v_lshl_add_u32 v{vA0}, v{vA1}, 15, v{vA0}")
        a(f"s_lshl_b32 s3, s{sF0}, 2")
        a(f"s_add_u32 s3, s3, {MODL}")
        for k in range(4):
            self.ld(M + 4 * k, 4, vA0, SWS, 3, mods="sc1", tag="ml")
            if k < 3:
                a(f"s_add_u32 s3, s3, 8192")
        a(f"v_permlane32_swap_b32 v{self.XR}, v{self.XR + 2}")
        a(f"v_permlane32_swap_b32 v{self.XR + 1}, v{self.XR + 3}")
        a(f"v_permlane32_swap_b32 v{self.XR + 4}, v{self.XR + 6}")
        a(f"v_permlane32_swap_b32 v{self.XR + 5}, v{self.XR + 7}")
        self.unpack(vX1, self.XR, 8)
        a(f"s_lshl_b32 s3, s{sW}, 9")
        a(f"s_add_u32 s3, s3, {L_ML}")
        a(f"v_lshlrev_b32 v{vML}, 4, v{vA1}")
        a(f"v_add_u32 v{vML}, s3, v{vML}")
        vMW = M + 16
        a(f"v_and_b32 v{vMW}, 31, v{vL}")
        a(f"v_lshlrev_b32 v{vMW}, 4, v{vMW}")
        a(f"v_lshl_add_u32 v{vMW}, v{vA1}, 2, v{vMW}")
        a(f"v_add_u32 v{vMW}, s3, v{vMW}")
        a(f"v_bfe_u32 v{vA0}, v{vL}, 3, 2")
        a(f"v_cmp_eq_u32 vcc, 2, v{vA0}")
        a(f"v_cndmask_b32_e64 v{vMW + 1}, 0, 1.0, vcc")
        a(f"s_lshl_b32 s{sT}, s{sG}, 2")
        a(f"s_add_u32 s{sT}, s{sT}, s{sRT}")
        a(f"s_lshl_b32 s{sT}, s{sT}, 5")
        a(f"s_lshl_b32 s3, s{sW}, 3")
        a(f"s_add_u32 s{sT}, s{sT}, s3")
        a(f"s_lshl_b32 s{sT + 1}, s{sT}, 2")
        a(f"s_add_u32 s{sT + 1}, s{sT + 1}, {F_O}")
        a(f"s_lshl_b32 s{sT}, s{sT}, 10")
        a(f"s_add_u32 s{sT}, s{sT}, {OO}")
        a(f"v_and_b32 v{vA0}, 7, v{vL}")
        a(f"v_lshlrev_b32 v{vA0}, 2, v{vA0}")
        a(f"s_lshl_b32 s{sT + 2}, s{sW}, 13")
        a("s_barrier")
        self.poll_flags(vA0, sT + 1)
        self.stamp("ook")
        for k in range(2):
            a(f"s_add_u32 m0, s{sT + 2}, {L_OX + k * 4096}")
            for f in range(4):
                self.dma(vL16, SWS, sT, imm=f * 1024, mods="sc1", tag="ox")
            if k == 0:
                a(f"s_add_u32 s{sT}, s{sT}, 4096")
        a(f"v_add_u32 v{vA0}, {L_OX}, v{vL16}")
        for k in range(1, 4):
            for i in range(4):
                a(f"v_add_f32 v{M + i}, v{M + i}, v{M + 4 * k + i}")
        a(f"v_permlane32_swap_b32 v{M}, v{M + 1}")
        a(f"v_permlane32_swap_b32 v{M + 2}, v{M + 3}")
        a(f"v_add_f32 v{M}, v{M}, v{M + 1}")
        a(f"v_add_f32 v{M + 2}, v{M + 2}, v{M + 3}")
        for r in (M, M + 2):
            self.bf16r(r, r)
            a(f"v_add_f32 v{r}, v{r}, v{vMW + 1}")
            self.bf16r(r, r)
        a(f"ds_write_b32 v{vMW}, v{M}")
        a(f"ds_write_b32 v{vMW}, v{M + 2} offset:8")
        for i in range(4):
            a(f"ds_read_b128 {vr(GA + 4 * i, 4)}, v{vML} offset:{32 * i}")
        a.wait(vm="ox")
        a("s_barrier")
        xr = lambda s: XR_ + 4 * (s % 8)
        rd = lambda s: a(f"ds_read_b128 {vr(xr(s), 4)}, v{vA0} offset:{s * 1024}", ("o", s))
        for s in range(6):
            rd(s)
        q = self.o.get("q_g2", 12)
        for s in range(32):
            a.wait(lg=[("o", s)])
            c = "0" if s == 0 else vr(ACC, 16)
            a(f"v_mfma_f32_32x32x16_bf16 {vr(ACC, 16)}, {ar(4 * s, 4)}, {vr(xr(s), 4)}, {c}")
            if s + 6 < 32:
                rd(s + 6)
            if s % 2 == 0 and q > 0:
                self.take(1)
                q -= 1
        self.bg += [("w2b", f) for f in self.w2[32:64]]
        self.stamp("g2")
        for i in range(4):
            a(f"ds_read_b128 {vr(48 + 4 * i, 4)}, v{vML} offset:{128 + 32 * i}")
            a(f"ds_read_b128 {vr(64 + 4 * i, 4)}, v{vML} offset:{256 + 32 * i}")
        a(f"s_lshl_b32 s{sT}, s{sG}, 2")
        a(f"s_add_u32 s{sT}, s{sT}, s{sRT}")
        a(f"s_lshl_b32 s{sT + 1}, s{sT}, 13")
        a(f"s_add_u32 s{sT + 1}, s{sT + 1}, {ST2}")
        a(f"s_lshr_b32 s3, s{sF0}, 6")
        a(f"s_lshl_b32 s3, s3, 10")
        a(f"s_add_u32 s{sT + 3}, s{sT + 1}, s3")
        a(f"s_and_b32 s3, s{sW}, 1")
        a(f"s_lshl_b32 s3, s3, 3")
        a(f"s_add_u32 s{sT + 3}, s{sT + 3}, s3")
        for r in range(16):
            a(f"v_fmac_f32 v{vX1 + r}, v{GA + r}, v{ACC + r}")
        for k in range(8):
            a(f"v_cvt_pk_bf16_f32 v{80 + k}, v{vX1 + 2 * k}, v{vX1 + 2 * k + 1}")
        a(f"s_mov_b32 s3, 0x3f803f80")
        a(f"v_dot2_f32_bf16 v88, v80, s3, 0")
        a(f"v_dot2_f32_bf16 v90, v80, v80, 0")
        for k in range(1, 8):
            a(f"v_dot2_f32_bf16 v88, v{80 + k}, s3, v88")
            a(f"v_dot2_f32_bf16 v90, v{80 + k}, v{80 + k}, v90")
        a(f"v_mov_b32 v89, s{sTAG}")
        a("v_permlane32_swap_b32 v88, v90")
        a("v_add_f32 v88, v88, v90")
        self.local_stores(lambda mods: self.st(88, 2, vL16, SWS, sT + 3, mods=mods))
        self.take(self.o.get("q_st", 0))
        self.unpack(vX1, 80, 8)
        a(f"s_add_u32 s{sT + 4}, s{sT + 1}, 4096")

        def loads():
            for k in range(8):
                self.ld(128 + 4 * k, 4, vL16, SWS, sT + 1 if k < 4 else sT + 4, imm=(k % 4) * 1024, mods="sc1")

        def check():
            a(f"v_xor_b32 v{vA2}, s{sTAG}, v129")
            for r in range(131, 160, 2):
                a(f"v_bitop3_b32 v{vA2}, v{vA2}, v{r}, s{sTAG} bitop3:0xf6")
            a(f"v_cmp_ne_u32 vcc, 0, v{vA2}")
        self.poll(loads, check)
        self.stamp("st2ok")
        for step in (16, 8, 4, 2):
            for r in range(128, 128 + step, 2):
                a(f"v_add_f32 v{r}, v{r}, v{r + step}")
        a("v_mov_b32 v130, v128")
        a("v_permlane32_swap_b32 v128, v130")
        self.ln_finish(128, 130, 129)
        a("v_mul_f32 v128, v128, v130")
        a.wait(lg=0)
        for r in range(16):
            a(f"v_fma_f32 v{80 + r}, v{vX1 + r}, v130, -v128")
        for r in range(16):
            a(f"v_fma_f32 v{80 + r}, v{80 + r}, v{64 + r}, v{48 + r}")
        for k in range(8):
            a(f"v_cvt_pk_bf16_f32 v{64 + k}, v{80 + 2 * k}, v{81 + 2 * k}")
        a(f"s_lshl_b32 s{sT}, s{sT}, 15")
        a(f"s_lshl_b32 s3, s{sF0}, 6")
        a(f"s_add_u32 s{sT}, s{sT}, s3")
        a(f"s_add_u32 s{sT}, s{sT}, s{sH2}")
        a(f"s_lshl_b32 s{sT + 1}, s{sP}, 2")
        a(f"s_add_u32 s{sT + 1}, s{sT + 1}, s{sW}")
        a(f"s_lshl_b32 s{sT + 1}, s{sT + 1}, 2")
        a(f"s_add_u32 s{sT + 1}, s{sT + 1}, {F_H2}")
        a(f"v_mov_b32 v{vA1}, s{sTAG}")
        a(f"v_mov_b32 v{vA0}, 0")

        def emit(mods):
            self.st(64, 4, vL16, SWS, sT, mods=mods)
            self.st(68, 4, vL16, SWS, sT, imm=1024, mods=mods)
            a.wait(vm=0)
            self.flag_store(sT + 1, mods)
        self.local_stores(emit)
        self.stamp("h2pub")

    def silu_ops(self, acc, dst, t):
        out = []
        c = fbits(-LOG2E)
        for k in range(0, 16, 4):
            rr = range(k, k + 4)
            out += [f"v_mul_f32 v{t + r % 4}, {c}, v{acc + r}" for r in rr]
            out += [f"v_exp_f32 v{t + r % 4}, v{t + r % 4}" for r in rr]
            out += [f"v_add_f32 v{t + r % 4}, 1.0, v{t + r % 4}" for r in rr]
            out += [f"v_rcp_f32 v{t + r % 4}, v{t + r % 4}" for r in rr]
            out += [f"v_mul_f32 v{acc + r}, v{acc + r}, v{t + r % 4}" for r in rr]
            out += [f"v_cvt_pk_bf16_f32 v{dst + r // 2}, v{acc + r}, v{acc + r + 1}" for r in (k, k + 2)]
        return out

    def g3(self):
        a = self.a
        X, WR, ACC, T, HP = 128, 32, 64, 112, 116
        vB2 = vTR
        w1c = self.w1_dmas(range(4, 6))
        for _ in range(self.o.get("q_w1c", 8)):
            w1c.pop(0)()
        a(f"s_lshl_b32 s{sT}, s{sGW}, 6")
        a(f"s_add_u32 s{sT}, s{sT}, {F_H2}")
        a(f"v_and_b32 v{vA0}, 15, v{vL}")
        a(f"v_lshlrev_b32 v{vA0}, 2, v{vA0}")
        a(f"v_add_u32 v{vB2}, 0x10000, v{vL16}")
        a(f"s_lshl_b32 s{sT + 1}, s{sGW}, 15")
        a(f"s_add_u32 s{sT + 1}, s{sT + 1}, s{sH2}")
        a(f"s_cmp_ge_u32 s{sM}, 11")
        a(f"s_cselect_b32 s3, 31, 47")
        a(f"v_min_u32 v{vA1}, s3, v{vL}")
        a(f"v_lshlrev_b32 v{vA1}, 7, v{vA1}")

        def rd(t, s, dst):
            off = L_W1 + (t * 32 + s) * 1024
            v, off = (vL16, off) if off < 65536 else (vB2, off - 65536)
            a(f"ds_read_b128 {vr(dst, 4)}, v{v} offset:{off}", ("w", t, s))

        wr = lambda t, s: WR + 8 * (s % 4) + 4 * t
        for s in range(3):
            rd(0, s, wr(0, s))
            rd(1, s, wr(1, s))
        self.poll_flags(vA0, sT)
        self.stamp("h2ok")
        xl = self.xloads(X, sT + 1)
        for _ in range(self.o.get("xahead", 6)):
            xl.pop(0)()
        extra = [lambda: self.ld(vA2, 1, vA1, SWS, sHID, mods="sc1")] + w1c
        for s in range(32):
            for t in range(2):
                a.wait(vm=[("x", s)] if t == 0 else None, lg=[("w", t, s)])
                c = "0" if s == 0 else vr(ACC + 16 * t, 16)
                a(f"v_mfma_f32_32x32x16_bf16 {vr(ACC + 16 * t, 16)}, {vr(wr(t, s), 4)}, {vr(X + 4 * s, 4)}, {c}")
                if t == 0:
                    if xl:
                        xl.pop(0)()
                    else:
                        self.take(1)
                elif extra and s >= self.o.get("s_hidpt", 20):
                    extra.pop(0)()
                if s + 3 < 32:
                    rd(t, s + 3, wr(t, s + 3))
        assert not extra
        a.wait(vm="w1")
        a("s_barrier")
        self.stamp("passA")

        def stores(t):
            def emit(mods):
                so = sHID if t < 2 else sT + 3
                self.st(HP, 4, vL16, SWS, so, imm=(2 * t % 4) * 1024, mods=mods)
                self.st(HP + 4, 4, vL16, SWS, so, imm=(2 * t % 4 + 1) * 1024, mods=mods)
            return lambda: self.local_stores(emit)

        a(f"s_add_u32 s{sT + 3}, s{sHID}, 4096")
        a(f"s_cmp_ge_u32 s{sM}, 11")
        a("s_cbranch_scc1 L_g3_two")
        snap, bg = a.snapshot(), list(self.bg)
        fill = self.silu_ops(ACC, HP, T) + [stores(0)] + self.silu_ops(ACC + 16, HP, T) + [stores(1)]
        w3 = lambda s: WR + 4 * (s % 8)
        for s in range(5):
            rd(2, s, w3(s))
        for s in range(32):
            a.wait(lg=[("w", 2, s)])
            c = "0" if s == 0 else vr(ACC + 32, 16)
            a(f"v_mfma_f32_32x32x16_bf16 {vr(ACC + 32, 16)}, {vr(w3(s), 4)}, {vr(X + 4 * s, 4)}, {c}")
            if s + 5 < 32:
                rd(2, s + 5, w3(s + 5))
            if s % 2 == 0 or len(self.bg) > 32 - s:
                self.take(1)
            if s >= 1:
                per = -(-len(fill) // (32 - s))
                for _ in range(per):
                    f = fill.pop(0)
                    a(f) if isinstance(f, str) else f()
        assert not fill
        for i, f in enumerate(self.silu_ops(ACC + 32, HP, T)):
            a(f)
            if i % 10 == 0:
                self.take(1)
        self.take(99)
        stores(2)()
        a("s_branch L_g3_done")
        a.L("L_g3_two")
        a.restore(snap)
        self.bg = bg
        for t in range(2):
            for i, f in enumerate(self.silu_ops(ACC + 16 * t, HP, T)):
                a(f)
                if i % 6 == 0:
                    self.take(1)
            if t:
                self.take(99)
            stores(t)()
        a.L("L_g3_done")
        self.stamp("g3")
        a(f"s_lshl_b32 s{sT}, s{sGW}, 4")
        a(f"s_add_u32 s{sT}, s{sT}, s{sM}")
        a(f"s_lshl_b32 s{sT}, s{sT}, 2")
        a(f"s_add_u32 s{sT}, s{sT}, {F_HID}")
        a(f"v_mov_b32 v{vA1}, s{sTAG}")
        a(f"v_mov_b32 v{vA0}, 0")
        a.wait(vm=0)
        self.local_stores(lambda mods: self.flag_store(sT, mods))
        self.bg = [("w2c", f) for f in self.w2[64:]]
        self.take(self.o.get("q_hid", 4))
        a("s_barrier")
        self.stamp("hidpub")

    def g4(self):
        a = self.a
        ACC, XR_, GB = 96, 32, 64
        vB2 = vTR
        a(f"s_lshl_b32 s{sT}, s{sG}, 2")
        a(f"s_add_u32 s{sT}, s{sT}, s{sRT}")
        a(f"s_lshl_b32 s{sT + 1}, s{sT}, 6")
        a(f"s_add_u32 s{sT + 1}, s{sT + 1}, {F_HID}")
        a(f"s_mul_i32 s{sT + 2}, s{sT}, {86 * 1024}")
        a(f"s_add_u32 s{sT + 2}, s{sT + 2}, {HID}")
        a(f"s_lshl_b32 s{sT + 3}, s{sW}, 12")
        a(f"v_and_b32 v{vA0}, 15, v{vL}")
        a(f"v_lshlrev_b32 v{vA0}, 2, v{vA0}")
        for i in range(4):
            a(f"ds_read_b128 {vr(GB + 4 * i, 4)}, v{self.vML} offset:{384 + 32 * i}")
        self.poll_flags(vA0, sT + 1)
        self.stamp("hidok")
        a(f"s_add_u32 s{sT + 4}, s{sT + 2}, s{sT + 3}")
        hx = []
        for u in range(5):
            for f in range(4):
                def g(u=u, f=f):
                    if f == 0:
                        a(f"s_add_u32 m0, s{sT + 3}, {L_HX + u * 16384}")
                    self.dma(vL16, SWS, sT + 4, imm=f * 1024, mods="sc1", tag=("hx", u))
                    if f == 3:
                        a(f"s_add_u32 s{sT + 4}, s{sT + 4}, 16384")
                hx.append(g)
        for f in range(2):
            def g(f=f):
                if f == 0:
                    a(f"s_lshl_b32 s3, s{sW}, 11")
                    a(f"s_add_u32 s3, s3, {80 * 1024}")
                    a(f"s_add_u32 m0, s3, {L_HX}")
                    a(f"s_add_u32 s{sT + 4}, s{sT + 2}, s3")
                self.dma(vL16, SWS, sT + 4, imm=f * 1024, mods="sc1", tag=("hx", 5))
            hx.append(g)
        self.bg = [("hx", f) for f in hx] + self.bg
        self.take(self.o.get("hxahead", 8))
        a(f"v_and_b32 v{vA0}, 31, v{vL}")
        a(f"v_lshlrev_b32 v{vA0}, 10, v{vA0}")
        a(f"v_lshrrev_b32 v{vA1}, 5, v{vL}")
        a(f"v_lshl_add_u32 v{vA0}, v{vA1}, 4, v{vA0}")
        a(f"s_lshl_b32 s{sT}, s{sT}, 15")
        a(f"s_lshl_b32 s3, s{sF0}, 1")
        a(f"s_add_u32 s{sT}, s{sT}, s3")

        xr = lambda s: XR_ + 4 * (s % 8)

        def rd(s):
            if s % 16 == 0:
                a.wait(vm=[("hx", s // 16)])
                a("s_barrier")
            off = L_HX + s * 1024
            v, off = (vL16, off) if off < 65536 else (vB2, off - 65536)
            a(f"ds_read_b128 {vr(xr(s), 4)}, v{v} offset:{off}", ("h", s))

        def w2(s):
            if s < 32:
                return ar(128 + 4 * s, 4)
            if s < 64:
                return ar(4 * (s - 32), 4)
            return vr(128 + 4 * (s - 64), 4)
        for s in range(6):
            rd(s)
        for s in range(86):
            a.wait(vm=[("w2", s)], lg=[("h", s)])
            c = "0" if s == 0 else vr(ACC, 16)
            a(f"v_mfma_f32_32x32x16_bf16 {vr(ACC, 16)}, {w2(s)}, {vr(xr(s), 4)}, {c}")
            if s % 2 == 0:
                self.take(1)
            if s + 6 < 86:
                rd(s + 6)
        assert not self.bg
        self.stamp("g4")
        for r in range(16):
            a(f"v_fmac_f32 v{vX1 + r}, v{GB + r}, v{ACC + r}")
        for k in range(8):
            a(f"v_cvt_pk_bf16_f32 v{80 + k}, v{vX1 + 2 * k}, v{vX1 + 2 * k + 1}")
        for p in (80, 84):
            a(f"v_permlane32_swap_b32 v{p}, v{p + 2}")
            a(f"v_permlane32_swap_b32 v{p + 1}, v{p + 3}")
        om = self.o.get("out_mods", "")
        self.st(80, 4, vA0, SOUT, sT, mods=om)
        self.st(84, 4, vA0, SOUT, sT, imm=32, mods=om)
        if self.stamps:
            a.wait(vm=0)
            self.stamp("end")
            a("s_memtime s[100:101]")
            a.wait(lg=0)
            a("s_sub_u32 s100, s100, s98")
            a("v_writelane_b32 v0, s100, 63")
            a(f"s_lshl_b32 s3, s2, 2")
            a(f"s_add_u32 s3, s3, s{sW}")
            a(f"s_lshl_b32 s3, s3, 8")
            a(f"s_add_u32 s3, s3, {STAMP}")
            a(f"v_lshlrev_b32 v{vA0}, 2, v{vL}")
            self.st(0, 1, vA0, SWS, 3)
            if self.o.get("dbg"):
                self.srd(SPR, 22, 256)
                a(f"v_readlane_b32 s3, v0, 0")
                a(f"v_subrev_u32 v0, s3, v0")
                a(f"v_lshlrev_b32 v{vA0}, 1, v{vL}")
                a(f"s_lshl_b32 s3, s2, 2")
                a(f"s_add_u32 s3, s3, s{sW}")
                a(f"s_cmp_eq_u32 s3, {self.o['dbg']}")
                a(f"s_cselect_b32 s3, 0, 0x7f000000")
                a(f"s_mov_b32 exec_lo, 0x55555555")
                a(f"s_mov_b32 exec_hi, 0")
                self.st(0, 1, vA0, SPR, 3)

    def build(self):
        a = self.a
        self.startup()
        self.g1()
        self.attention()
        self.g2()
        self.g3()
        self.g4()
        a.L("L_end")
        a("s_endpgm")
        a.L("L_code_end")
        nops = a.pad()
        head = open(os.path.join(os.path.dirname(os.path.abspath(__file__)), "..", "cdna_kernels", NAME + ".s.ref")).read()
        head = [l for l in head.split("\n") if l.startswith(";") and "@launch" not in l and "Override" not in l
                and "grid=ceil" not in l]
        out = "\n".join(head) + "\n"
        out += f"; @launch grid=(256,1,1) block=(256,1,1) lds={LDS_SIZE}\n"
        out += "; One persistent workgroup per CU; 16 workgroups share a block of 128 tokens and hand their\n"
        out += "; tiles to each other through tagged words in the workspace.\n"
        out += '.amdgcn_target "amdgcn-amd-amdhsa--gfx950"\n.text\n'
        out += f".globl {KERNEL}\n.p2align 8\n.type {KERNEL},@function\n{KERNEL}:\n"
        out += a.text()
        out += f""".section .rodata,"a"
.p2align 6
.amdhsa_kernel {KERNEL}
  .amdhsa_next_free_vgpr 512
  .amdhsa_next_free_sgpr 102
  .amdhsa_accum_offset 256
  .amdhsa_group_segment_fixed_size 0
  .amdhsa_kernarg_size 88
  .amdhsa_user_sgpr_count 2
  .amdhsa_user_sgpr_kernarg_segment_ptr 1
  .amdhsa_system_sgpr_workgroup_id_x 1
  .amdhsa_float_denorm_mode_32 3
.end_amdhsa_kernel
"""
        return out, nops


def main():
    import argparse
    ap = argparse.ArgumentParser()
    ap.add_argument("-o", default=None)
    ap.add_argument("--stamps", action="store_true")
    ap.add_argument("--opt", action="append", default=[])
    args = ap.parse_args()
    opts = {}
    for kv in args.opt:
        k, _, v = kv.partition("=")
        try:
            opts[k] = int(v) if v else 1
        except ValueError:
            opts[k] = v
    g = Gen(stamps=args.stamps, opts=opts)
    text, nops = g.build()
    path = args.o or os.path.join(os.path.dirname(os.path.abspath(__file__)), "..", "cdna_kernels", NAME + ".s")
    open(path, "w").write(text)
    if args.stamps:
        open(path + ".stamps", "w").write("\n".join(g.stamp_names))
    n = sum(1 for x in g.a.ins if x.kind not in ("label", "comment"))
    print(f"wrote {path}: {n} instructions, {nops} pad states, {len(text)} bytes of text")


if __name__ == "__main__":
    main()
```

```python
KB = 1024

WS_E = 0
F_PREP = 0x1000
F_XC = 0x1400
F_LATE = 0x1800
F_H1 = 0x2000
F_KV = 0x80000
F_O = 0x4000
F_H2 = 0x6000
F_HID = 0x7000
ST1 = 0x8000
MODL = 0x10000
MODE = 0x20000
ST2 = 0x40000
STAMP = 0xC0000
H1 = 0x100000
H2X = 0x300000
OO = 0x500000
KV = 0x700000
HID = 0xB00000
WOF = 0x1100000
W1F = 0x1180000
W2F = 0x1300000
WS_SIZE = 0x1500000

L_WK = 0
L_WV = 32 * KB
L_WQ = 64 * KB
L_W1 = 0
L_HX = 0
R1 = 96 * KB
L_KV = R1
L_PREP = R1
L_OX = R1
L_QX = R1 + 48 * KB
L_GS = R1 + 52 * KB
L_ML = R1 + 53 * KB
L_LATE = R1 + 55 * KB
L_JUNK = R1 + 63 * KB
LDS_SIZE = 160 * KB

TAG_STEP = 0x9E3779B0
```

```python
import os
import struct
import sys

sys.path.insert(0, os.path.dirname(os.path.abspath(__file__)))
from asmlib import Asm, vr, ar, sr
from layout import *

NAME = "adaLN_cond__sliding_block__dense_activation_silu__prompt"
KERNEL = NAME + "_kernel"


def fbits(x):
    return "0x%08x" % struct.unpack("<I", struct.pack("<f", x))[0]


LOG2E = 1.4426950408889634

SX, SWQ, SWM, SC, SOUT, SWS, SPR = 28, 32, 36, 40, 44, 48, 52
sG, sM, sW, sTAG, sFAST, sTO, sXCC, sP = 56, 57, 58, 59, 60, 61, 62, 63
sT = 64
sRT, sF0, sOB, sFT0 = 76, 77, 78, 79
SW1 = 12
SH2, sOS, sOA = 8, 96, 16
sWQO, sWQL, sLATE, sWO, sW2, sW1, sW1C, sW4K, sHID, sBG = 80, 81, 82, 83, 84, 85, 86, 87, 88, 89
sXI = 92
sKV1 = 18
sOUTO = 95
sHI = 26
sGW = 27

vL16, vTR, vTR2, vQA, vQB, vL = 1, 2, 3, 4, 8, 12
vA0, vA1, vA2 = 13, 14, 15
vX1 = 16
vXT = 4


class Gen:
    def __init__(self, stamps=False, opts=None):
        self.a = Asm()
        self.stamps = stamps
        self.nstamp = 0
        self.stamp_names = []
        self.o = dict(opts or {})

    def stamp(self, name):
        if not self.stamps:
            return
        only = self.o.get("only")
        if only and name != "end" and not any(name.startswith(p) for p in only.split("+")):
            return
        if name.startswith("it") and not only:
            return
        a = self.a
        a("s_memrealtime s[100:101]")
        a("s_memtime s[0:1]")
        a.wait(lg=0)
        a(f"v_writelane_b32 v0, s100, {self.nstamp}")
        a(f"v_writelane_b32 v0, s0, {self.nstamp + 32}")
        self.nstamp += 1
        self.stamp_names.append(name)
        assert self.nstamp <= 31

    def srd(self, base, ptr, size):
        a = self.a
        a(f"s_mov_b32 s{base}, s{ptr}")
        a(f"s_and_b32 s{base + 1}, s{ptr + 1}, 0xffff")
        a(f"s_mov_b32 s{base + 2}, {size}")
        a(f"s_mov_b32 s{base + 3}, 0x20000")

    def ld(self, dst, n, voff, srd, soff, imm=0, mods="", tag=None, kind="v"):
        suf = {1: "dword", 2: "dwordx2", 4: "dwordx4"}[n]
        off = f" offset:{imm}" if imm else ""
        so = f"s{soff}" if isinstance(soff, int) else soff
        self.a(f"buffer_load_{suf} {vr(dst, n, kind)}, v{voff}, {sr(srd, 4)}, {so} offen{off} {mods}".rstrip(), tag)

    def st(self, src, n, voff, srd, soff, imm=0, mods="", tag=None):
        suf = {1: "dword", 2: "dwordx2", 4: "dwordx4"}[n]
        off = f" offset:{imm}" if imm else ""
        so = f"s{soff}" if isinstance(soff, int) else soff
        self.a(f"buffer_store_{suf} {vr(src, n)}, v{voff}, {sr(srd, 4)}, {so} offen{off} {mods}".rstrip(), tag)

    def dma(self, voff, srd, soff, imm=0, mods="", tag=None):
        off = f" offset:{imm}" if imm else ""
        self.a(f"buffer_load_dwordx4 v{voff}, {sr(srd, 4)}, s{soff} offen{off} {mods} lds".replace("  ", " "), tag)

    def touch(self, srd, lanes, tmp, addr, soff):
        a = self.a
        for t in addr + soff:
            a(t)
        a(f"s_mov_b32 m0, {L_JUNK}")
        if lanes <= 32:
            a(f"s_mov_b64 exec, {hex((1 << lanes) - 1)}" if lanes < 32 else "s_mov_b32 exec_hi, 0")
        elif lanes < 64:
            a(f"s_mov_b32 exec_hi, {hex((1 << (lanes - 32)) - 1)}")
        a(f"buffer_load_dword v{tmp}, {sr(srd, 4)}, s3 offen lds")
        if lanes < 64:
            a("s_mov_b64 exec, -1")

    def touch_named(self, what, tmp):
        lin = [f"v_lshlrev_b32 v{tmp}, 3, v{vL16}"]
        if what in ("kv0", "kv1"):
            self.touch(SWQ, 48, tmp, lin,
                       [f"s_mul_i32 s3, s{sXI}, 6144", f"s_add_u32 s3, s3, {256 * 3072 if what == 'kv1' else 0}"])
        elif what == "q":
            self.touch(SWQ, 32, tmp, [f"v_lshrrev_b32 v{tmp}, 3, v{vL}", f"v_mul_u32_u24 v{tmp}, {3072 - 1024}, v{tmp}",
                                      f"v_lshl_add_u32 v{tmp}, v{vL}, 7, v{tmp}"], [f"s_mul_i32 s3, s{sXI}, 12288"])
        elif what == "mw1":
            self.touch(SW1, 11, tmp, lin, [f"s_lshl_b32 s3, s{sP}, 2", f"s_add_u32 s3, s3, s{sW}", f"s_mul_i32 s3, s3, {11 * 128}"])
        elif what == "mq":
            self.touch(SWQ, 4, tmp, lin, [f"s_lshl_b32 s3, s{sP}, 1", f"s_lshr_b32 s97, s{sW}, 1", f"s_add_u32 s3, s3, s97",
                                          f"s_mul_i32 s3, s3, 3072", f"s_and_b32 s97, s{sW}, 1", f"s_lshl_b32 s97, s97, 9",
                                          f"s_add_u32 s3, s3, s97"])
        elif what == "wo":
            self.touch(SWS, 32, tmp, lin, [f"s_lshl_b32 s3, s{sXI}, 12", f"s_add_u32 s3, s3, {WOF}"])
        elif what in ("w1a", "w1b"):
            self.touch(SW1, 43, tmp, lin, [f"s_mul_i32 s3, s{sXI}, {43 * 128}"]
                       + ([f"s_add_u32 s3, s3, {5504 * 128}"] if what == "w1b" else []))
        elif what in ("w2a", "w2b", "w2c"):
            n = 22 if what == "w2c" else 32
            base = W2F + {"w2a": 0, "w2b": 32768, "w2c": 65536}[what]
            self.touch(SWS, n, tmp, lin, [f"s_lshr_b32 s3, s{sXI}, 3", f"s_mul_i32 s97, s3, {86 * 1024}", f"s_and_b32 s3, s{sXI}, 7",
                                          f"s_mul_i32 s3, s3, {n * 128}", f"s_add_u32 s3, s3, s97", f"s_add_u32 s3, s3, {base}"])
        else:
            raise ValueError(what)

    def touches(self, where, tmp):
        plan = dict(mq="no", mw1="p1tail", kv0="no", kv1="no", q="no", wo="no", w1a="no", w1b="no", w2a="no", w2b="no", w2c="no")
        for k in plan:
            plan[k] = self.o.get("t_" + k, plan[k])
        return [lambda k=k: self.touch_named(k, tmp) for k in plan if plan[k] == where]

    def local_stores(self, emit):
        a = self.a
        slow, done = a.newlabel("slow"), a.newlabel("stored")
        a(f"s_cmp_lg_u32 s{sFAST}, 0")
        a(f"s_cbranch_scc0 {slow}")
        snap = a.snapshot()
        emit("")
        a(f"s_branch {done}")
        a.L(slow)
        a.restore(snap)
        emit("sc1")
        a.L(done)

    def poll(self, loads, check, nap=0):
        a = self.a
        top, done = a.newlabel("poll"), a.newlabel("polled")
        a.L(top)
        loads()
        a.wait(vm=0)
        check()
        a(f"s_cbranch_vccz {done}")
        a(f"s_cmp_eq_u32 s{sTO}, 0")
        a(f"s_cbranch_scc1 {done}")
        a(f"s_sub_u32 s{sTO}, s{sTO}, 1")
        if nap:
            a(f"s_sleep {nap}")
        a(f"s_branch {top}")
        a.L(done)

    def poll_flags(self, voff, soff, nap=0):
        self.poll(lambda: self.ld(vA2, 1, voff, SWS, soff, mods="sc1"),
                  lambda: self.a(f"v_cmp_ne_u32 vcc, s{sTAG}, v{vA2}"), nap)

    def flag_store(self, soff, mods, lanes=1, voff=None):
        a = self.a
        a(f"s_mov_b64 exec, {(1 << lanes) - 1}")
        self.st(vA1, 1, vA0 if voff is None else voff, SWS, soff, mods=mods)
        a("s_mov_b64 exec, -1")

    def csel(self, dst, yes, no):
        self.a(f"s_mov_b32 s{dst}, {no}")
        self.a(f"s_cmov_b32 s{dst}, {yes}")

    def bf16r(self, dst, src):
        self.a(f"v_cvt_pk_bf16_f32 v{dst}, v{src}, v{src}")
        self.a(f"v_and_b32 v{dst}, s{sHI}, v{dst}")

    def unpack(self, dst, src, n):
        for i in range(n):
            self.a(f"v_lshlrev_b32 v{dst + 2 * i}, 16, v{src + i}")
            self.a(f"v_and_b32 v{dst + 2 * i + 1}, s{sHI}, v{src + i}")

    def silu_bf16(self, dst, src_u16, t):
        a = self.a
        a(f"v_lshlrev_b32 v{dst}, 16, v{src_u16}")
        a(f"v_mul_f32 v{t}, {fbits(-LOG2E)}, v{dst}")
        a(f"v_exp_f32 v{t}, v{t}")
        a(f"v_add_f32 v{t}, 1.0, v{t}")
        a(f"v_rcp_f32 v{t}, v{t}")
        a(f"v_mul_f32 v{dst}, v{dst}, v{t}")
        self.bf16r(dst, dst)

    def ror_add(self, regs, steps):
        for n in steps:
            for r in regs:
                self.a(f"v_add_f32_dpp v{r}, v{r}, v{r} row_ror:{n} row_mask:0xf bank_mask:0xf")

    def reduce8(self, p):
        a = self.a
        for i in range(4):
            a(f"v_permlane32_swap_b32 v{p + i}, v{p + 4 + i}")
        for i in range(4):
            a(f"v_add_f32 v{p + i}, v{p + i}, v{p + 4 + i}")
        for i in range(2):
            a(f"v_permlane16_swap_b32 v{p + i}, v{p + 2 + i}")
        for i in range(2):
            a(f"v_add_f32 v{p + i}, v{p + i}, v{p + 2 + i}")
        self.ror_add([p, p + 1], [8, 4, 2])

    def ln_finish(self, vsum, vsq, t):
        a = self.a
        a(f"v_mul_f32 v{vsum}, {fbits(1 / 512)}, v{vsum}")
        a(f"v_mul_f32 v{t}, v{vsum}, v{vsum}")
        a(f"s_mov_b32 s{sT + 11}, {fbits(1 / 512)}")
        a(f"v_fma_f32 v{vsq}, v{vsq}, s{sT + 11}, -v{t}")
        a(f"v_max_f32 v{vsq}, 0, v{vsq}")
        self.bf16r(vsum, vsum)
        self.bf16r(vsq, vsq)
        a(f"v_add_f32 v{vsq}, {fbits(1e-5)}, v{vsq}")
        self.bf16r(vsq, vsq)
        a(f"v_sqrt_f32 v{vsq}, v{vsq}")
        self.bf16r(vsq, vsq)
        a(f"v_rcp_f32 v{vsq}, v{vsq}")

    def prep_reads(self, n, dst, vbase):
        for i in range(n):
            self.a(f"ds_read_b64_tr_b16 v[{dst + 4 * i}:{dst + 1 + 4 * i}], v{vbase} offset:{i * 1024}", ("pr", i))
            self.a(f"ds_read_b64_tr_b16 v[{dst + 2 + 4 * i}:{dst + 3 + 4 * i}], v{vbase} offset:{i * 1024 + 512}", ("pr", i))

    def startup(self):
        a = self.a
        a("s_cmp_ge_u32 s2, 256")
        a("s_cbranch_scc1 L_end")
        a("s_load_dwordx16 s[4:19], s[0:1], 0")
        a("s_load_dwordx4 s[20:23], s[0:1], 64")
        a("s_load_dwordx2 s[24:25], s[0:1], 80")
        if self.stamps:
            a("s_memrealtime s[100:101]")
            a("s_memtime s[98:99]")
        a(f"s_lshr_b32 s3, s2, 3")
        a(f"s_lshl_b32 s3, s3, 11")
        a(f"v_lshl_add_u32 v90, v0, 7, s3")
        a(f"v_min_u32 v90, (L_code_end-{KERNEL}-4), v90")
        a(f"s_getpc_b64 s[{sT + 8}:{sT + 9}]")
        a.L("L_pc")
        a(f"s_sub_u32 s{sT + 8}, s{sT + 8}, (L_pc-{KERNEL})")
        a(f"s_subb_u32 s{sT + 9}, s{sT + 9}, 0")
        a(f"v_mov_b32 v91, s{sT + 9}")
        a(f"v_add_co_u32 v90, vcc, s{sT + 8}, v90")
        a(f"v_addc_co_u32 v91, vcc, 0, v91, vcc")
        a(f"v_cmp_gt_u32 vcc, 16, v0")
        a(f"v_lshrrev_b32 v{vA0}, 6, v0")
        a(f"s_cbranch_vccz L_touched")
        a(f"s_mov_b64 exec, vcc")
        a.cond = 1
        a(f"global_load_dword v38, v[90:91], off")
        a.cond = 0
        a(f"s_mov_b64 exec, -1")
        a.L("L_touched")
        a(f"v_and_b32 v{vL}, 63, v0")
        a(f"v_readfirstlane_b32 s{sW}, v{vA0}")
        a("s_and_b32 s3, s2, 7")
        a(f"s_lshr_b32 s{sT}, s2, 3")
        a(f"s_lshr_b32 s{sT + 1}, s{sT}, 4")
        a(f"s_lshl_b32 s{sG}, s3, 1")
        a(f"s_add_u32 s{sG}, s{sG}, s{sT + 1}")
        a(f"s_and_b32 s{sM}, s{sT}, 15")
        if self.o.get("mxor"):
            a(f"s_xor_b32 s{sM}, s{sM}, {self.o['mxor']}")
        a(f"s_lshl_b32 s{sP}, s{sG}, 4")
        a(f"s_add_u32 s{sP}, s{sP}, s{sM}")
        a(f"s_lshl_b32 s{sGW}, s{sG}, 2")
        a(f"s_add_u32 s{sGW}, s{sGW}, s{sW}")
        a(f"s_lshl_b32 s{sW4K}, s{sW}, 12")
        a(f"s_lshl_b32 s{sXI}, s{sT}, 2")
        a(f"s_add_u32 s{sXI}, s{sXI}, s{sW}")
        vWM, vCO, vQD, vWR, vPT, vCT, vC16, vPB = 84, 85, 89, 5, 88, 90, 93, 90
        self.vWR, self.vQD, self.vPB = vWR, vQD, vPB
        vW1B = 102
        sWE, sCE, sROW, sXS, sH1O, sH1F, sTOK = sT, sT + 1, sT + 3, sT + 6, sT + 4, sT + 5, sT + 2
        a(f"s_mul_i32 s{sWE}, s{sG}, {32 * 6144}")
        a(f"s_and_b32 s3, s{sM}, 1")
        a(f"s_lshl_b32 s3, s3, 10")
        a(f"s_add_u32 s{sWE}, s{sWE}, s3")
        a(f"s_lshr_b32 s3, s{sM}, 1")
        a(f"s_lshl_b32 s3, s3, 7")
        a(f"s_add_u32 s{sWE}, s{sWE}, s3")
        a(f"s_lshl_b32 s3, s{sW}, 5")
        a(f"s_add_u32 s{sWE}, s{sWE}, s3")
        a(f"s_lshl_b32 s{sCE}, s{sG}, 6")
        a(f"v_lshlrev_b32 v{vL16}, 4, v{vL}")
        a(f"v_lshrrev_b32 v92, 1, v{vL}")
        a(f"v_mul_u32_u24 v{vWM}, 6144, v92")
        a(f"v_and_b32 v93, 1, v{vL}")
        a(f"v_lshl_add_u32 v{vWM}, v93, 4, v{vWM}")
        a(f"v_lshlrev_b32 v{vCO}, 1, v92")
        a(f"s_lshl_b32 s{sTOK}, s{sP}, 3")
        a(f"s_lshl_b32 s3, s{sW}, 1")
        a(f"s_add_u32 s{sTOK}, s{sTOK}, s3")
        a(f"s_lshl_b32 s{sROW}, s{sTOK}, 10")
        a(f"s_lshl_b32 s{sXS}, s{sGW}, 15")
        a(f"s_lshl_b32 s3, s{sM}, 11")
        a(f"s_add_u32 s{sH1O}, s{sXS}, s3")
        a(f"s_lshl_b32 s3, s{sM}, 6")
        a(f"s_add_u32 s{sXS}, s{sXS}, s3")
        a(f"s_mul_i32 s{sWQO}, s{sW}, {16 * 3072}")
        a(f"s_add_u32 s{sWQO}, s{sWQO}, s3")
        a(f"s_lshl_b32 s{sWQL}, s{sW}, 10")
        a(f"s_lshl_b32 s{sH1F}, s{sGW}, 6")
        a(f"s_add_u32 s{sH1F}, s{sH1F}, {F_H1}")
        a(f"v_lshrrev_b32 v92, 2, v{vL}")
        a(f"v_and_b32 v96, 3, v{vL}")
        a(f"v_lshlrev_b32 v94, 4, v96")
        a(f"v_lshl_add_u32 v{vQD}, v92, 10, v94")
        a(f"v_mul_u32_u24 v{vWR}, 3072, v92")
        a(f"v_add_u32 v{vWR}, v{vWR}, v94")
        a(f"v_lshlrev_b32 v{vPT}, 7, v{vL}")
        sS0, sD0, sD1, sU = sT + 7, 90, 91, sT + 8
        a(f"s_lshl_b32 s{sU}, s{sW}, 8")
        a(f"s_add_u32 s{sU}, s{sU}, s{sP}")
        a(f"s_cmp_ge_u32 s{sU}, 256")
        a(f"s_cselect_b32 s3, 256, 0")
        self.csel(sD0, W2F, WOF)
        self.csel(sD1, 86 * 1024, 32 * 1024)
        a(f"s_sub_u32 s{sU}, s{sU}, s3")
        a(f"s_lshr_b32 s3, s{sU}, 3")
        a(f"s_lshl_b32 s{sS0}, s3, 14")
        a(f"s_lshl_b32 s3, s3, 10")
        a(f"s_add_u32 s{sD0}, s{sD0}, s3")
        a(f"s_and_b32 s3, s{sU}, 7")
        a(f"s_lshl_b32 s3, s3, 7")
        a(f"s_add_u32 s{sS0}, s{sS0}, s3")
        a(f"s_lshr_b32 s3, s3, 6")
        a(f"s_mul_i32 s3, s3, s{sD1}")
        a(f"s_add_u32 s{sD0}, s{sD0}, s3")
        a(f"s_cmp_ge_u32 s{sU}, 688")
        a(f"s_cselect_b32 s{sS0}, 0x7f000000, s{sS0}")
        a(f"s_cselect_b32 s{sD0}, 0x7f000000, s{sD0}")
        a(f"s_add_u32 s{sD1}, s{sD1}, s{sD0}")
        if self.o.get("p2pos", "T") == "T":
            a(f"s_cmp_eq_u32 s{sW}, 0")
            a(f"s_cselect_b32 s93, 0x7f000000, s{sS0}")
            a(f"s_cselect_b32 s94, 0x7f000000, s{sD0}")
            a(f"s_cselect_b32 s{sS0}, s{sS0}, 0x7f000000")
            a(f"s_cselect_b32 s{sD0}, s{sD0}, 0x7f000000")
            a(f"s_cselect_b32 s{sD1}, s{sD1}, 0x7f000000")
        a(f"v_lshrrev_b32 v6, 3, v{vL}")
        a(f"v_and_b32 v86, 0x70, v{vL16}")
        a(f"v_lshl_add_u32 v6, v6, 10, v86")
        a(f"s_getreg_b32 s{sXCC}, hwreg(HW_REG_XCC_ID, 0, 4)")
        a(f"s_mov_b32 s{sHI}, 0xffff0000")
        for base in (SWM, SC, SX, SWS, SWQ, SOUT, SPR):
            a(f"s_mov_b32 s{base + 3}, 0x20000")
        for base, size in ((SWM, 512 * 6144), (SC, 1024), (SX, 2048 * 1024), (SWS, WS_SIZE), (SWQ, 512 * 3072),
                           (SOUT, 2048 * 1024)):
            a(f"s_mov_b32 s{base + 2}, {size}")
        a.wait(lg=0)
        if self.stamps:
            a(f"v_writelane_b32 v0, s100, 0")
            a(f"v_writelane_b32 v0, s98, 32")
            self.nstamp = 1
            self.stamp_names.append("entry")
        self.stamp("karg")

        def base(srd, ptr):
            a(f"s_mov_b32 s{srd}, s{ptr}")
            a(f"s_and_b32 s{srd + 1}, s{ptr + 1}, 0xffff")
        base(SWM, 18)
        self.ld(32, 4, vWM, SWM, sWE, tag="we", mods="nt")
        self.stamp("it_we")
        a(f"s_load_dword s{sTAG}, s[24:25], 0")
        base(SC, 16)
        a(f"buffer_load_ushort v36, v{vCO}, {sr(SC, 4)}, s{sCE} offen", "we")
        base(SX, 4)
        self.ld(40, 4, vL16, SX, sROW, tag="rows")
        self.ld(44, 4, vL16, SX, sROW, imm=1024, tag="rows")
        self.stamp("it_rows")
        base(SWQ, 6)
        npre = self.o.get("npre", 6)
        wkv = self.wtile_dmas(range(npre), "all", "wkv0")
        for f in self.touches("s0", 95):
            f()
        for _ in range(self.o.get("kv0", 0)):
            wkv.pop(0)()
        self.stamp("it_t0")
        base(SWS, 24)
        base(SOUT, 20)
        a(f"s_cmp_eq_u32 s{sW}, 0")
        a(f"s_cselect_b32 s{SPR}, s8, s14")
        a(f"s_cselect_b32 s{SPR + 1}, s9, s15")
        self.csel(SPR + 2, 512 * 1024, 1376 * 1024)
        a(f"s_and_b32 s{SPR + 1}, s{SPR + 1}, 0xffff")
        a(f"s_and_b32 s{SW1 + 1}, s{SW1 + 1}, 0xffff")
        a(f"s_mov_b32 s{SW1 + 2}, {512 * 2752}")
        a(f"s_mov_b32 s{SW1 + 3}, 0x20000")

        def xs(k):
            a(f"s_add_u32 m0, s{sW4K}, {L_PREP + 2048 + k * 1024}")
            if k:
                a(f"s_add_u32 s{sXS}, s{sXS}, 16384")
            self.dma(vQD, SX, sXS, tag="xs")

        def pt():
            a(f"s_mov_b64 exec, 0xffff")
            self.ld(37, 1, vPT, SOUT, sH1O, mods="sc1")
            a("s_mov_b64 exec, 1")
            self.ld(39, 1, vPT, SWS, sH1F, mods="sc1")
            a("s_mov_b64 exec, -1")

        def pr(k):
            a(f"s_add_u32 m0, s{sW4K}, {L_PREP + k * 1024}")
            if k:
                a(f"s_add_u32 s{sS0}, s{sS0}, 8192")
            self.dma(6, SPR, sS0, tag="prep", mods="nt")
        second = [lambda: xs(0), lambda: xs(1), pt, lambda: pr(0), lambda: pr(1)]
        for _ in range(self.o.get("sec0", 0)):
            second.pop(0)()
        later = second + wkv

        def more(n=1):
            for _ in range(n):
                if later:
                    later.pop(0)()
        self.stamp("issued")
        a(f"s_mov_b32 s{sTO}, 0x80000")
        a(f"s_lshr_b32 s{sRT}, s{sM}, 2")
        a(f"s_and_b32 s{sF0}, s{sM}, 3")
        a(f"s_lshl_b32 s{sF0}, s{sF0}, 7")
        a(f"s_lshl_b32 s3, s{sW}, 5")
        a(f"s_add_u32 s{sF0}, s{sF0}, s3")
        a(f"v_and_b32 v98, 15, v{vL}")
        a(f"v_lshrrev_b32 v97, 2, v98")
        a(f"v_lshlrev_b32 v97, 6, v97")
        a(f"v_lshl_add_u32 v97, v96, 3, v97")
        a(f"v_bfe_u32 v98, v{vL}, 4, 1")
        a(f"v_lshl_add_u32 v97, v98, 5, v97")
        a(f"v_lshrrev_b32 v99, 5, v{vL}")
        a(f"v_lshl_add_u32 v{vTR}, v99, 9, v97")
        a(f"v_add_u32 v{vTR2}, 0x10000, v{vTR}")
        a(f"v_lshl_add_u32 v{vPB}, v99, 8, v97")
        a(f"v_and_b32 v100, 0x1c0, v{vPB}")
        a(f"v_mul_u32_u24 v{vW1B}, 3, v100")
        a(f"v_and_b32 v101, 63, v{vPB}")
        a(f"v_add_u32 v{vW1B}, v{vW1B}, v101")
        a(f"v_accvgpr_write_b32 a255, v{vW1B}")
        a(f"v_lshl_add_u32 v{vPB}, v100, 1, v101")
        a(f"s_add_u32 s3, s{sW4K}, {L_PREP}")
        a(f"v_add_u32 v{vPB}, s3, v{vPB}")
        a(f"v_accvgpr_write_b32 a254, v{vPB}")
        a(f"v_lshlrev_b32 v92, 10, v98")
        a(f"v_lshl_add_u32 v92, v99, 4, v92")
        a(f"v_and_b32 v100, 16, v{vL16}")
        a(f"v_lshl_add_u32 v92, v100, 1, v92")
        a(f"v_lshlrev_b32 v95, 2, v96")
        a(f"v_lshl_add_u32 v95, v99, 1, v95")
        a(f"v_add_u32 v95, v95, v98")
        a(f"s_and_b32 s3, s{sW}, 1")
        a(f"v_cvt_f32_u32 v86, s3")
        a(f"s_lshl_b32 s3, s3, 5")
        a(f"s_lshr_b32 s{sT + 9}, s{sW}, 1")
        a(f"s_lshl_b32 s{sT + 9}, s{sT + 9}, 4")
        a(f"s_add_u32 s3, s3, s{sT + 9}")
        a(f"v_add_lshl_u32 v95, v95, s3, 2")
        a(f"v_add_u32 v95, {L_GS}, v95")
        a(f"v_lshlrev_b32 v94, 5, v99")
        a(f"v_add_u32 v94, {L_GS}, v94")
        a(f"s_and_b32 s3, s{sM}, 1")
        a(f"s_lshl_b32 s{sT}, s3, 5")
        a(f"s_lshr_b32 s3, s{sM}, 1")
        a(f"s_lshl_b32 s3, s3, 2")
        a(f"s_add_u32 s{sT}, s{sT}, s3")
        a(f"s_add_u32 s{sT}, s{sT}, s{sW}")
        a(f"s_lshl_b32 s{sT}, s{sT}, 5")
        a(f"s_add_u32 s{sT}, s{sT}, s{sG}")
        a(f"s_lshl_b32 s{sT}, s{sT}, 6")
        a(f"s_add_u32 s{sT}, s{sT}, {MODE}")
        a(f"s_lshl_b32 s{sT + 9}, s{sP}, 2")
        a(f"s_add_u32 s{sT + 9}, s{sT + 9}, {F_XC}")
        a(f"s_cmp_eq_u32 s{sW}, 0")
        a(f"s_cselect_b32 s{sT + 9}, s{sT + 9}, 0x7f000000")
        a(f"s_lshl_b32 s{sTOK}, s{sTOK}, 4")
        a(f"s_add_u32 s{sTOK}, s{sTOK}, {ST1}")
        a.wait(lg=0)
        a(f"s_add_u32 s{sTAG}, s{sTAG}, {TAG_STEP}")
        a(f"s_and_b32 s{sTAG}, s{sTAG}, 0xfffffff0")
        a(f"s_or_b32 s3, s{sTAG}, s{sXCC}")
        a(f"v_mov_b32 v{vA1}, s3")
        a(f"v_mov_b32 v{vA0}, 0")
        a(f"v_mov_b32 v109, s{sTAG}")
        a(f"v_mov_b32 v111, s{sTAG}")
        self.flag_store(sT + 9, "sc1")
        self.stamp("it_xc")
        a.wait(vm="we")
        self.stamp("we")
        self.silu_bf16(96, 36, 97)
        self.unpack(100, 32, 4)
        for i in range(8):
            a(f"v_mul_f32 v{100 + i}, v96, v{100 + i}")
        more(self.o.get("mix", 0))
        self.reduce8(100)
        a(f"v_mov_b32 v102, v101")
        a(f"v_mov_b32 v101, v111")
        a(f"v_mov_b32 v103, v111")
        a(f"s_mov_b32 exec_lo, 0x00030003")
        a(f"s_mov_b32 exec_hi, 0x00030003")
        self.st(100, 4, 92, SWS, sT, mods="sc1")
        a("s_mov_b64 exec, -1")
        self.stamp("it_part")
        more(self.o.get("mix", 0))
        a.wait(vm="rows")
        a(f"s_mov_b32 s3, 0x3f803f80")
        for r, b in ((0, 40), (1, 44)):
            a(f"v_dot2_f32_bf16 v{104 + 2 * r}, v{b}, s3, 0")
            a(f"v_dot2_f32_bf16 v{105 + 2 * r}, v{b}, v{b}, 0")
        for i in range(1, 4):
            for r, b in ((0, 40), (1, 44)):
                a(f"v_dot2_f32_bf16 v{104 + 2 * r}, v{b + i}, s3, v{104 + 2 * r}")
                a(f"v_dot2_f32_bf16 v{105 + 2 * r}, v{b + i}, v{b + i}, v{105 + 2 * r}")
        a(f"v_lshrrev_b32 v96, 1, v{vL}")
        a("v_permlane32_swap_b32 v104, v106")
        a("v_permlane32_swap_b32 v105, v107")
        a("v_add_f32 v104, v104, v106")
        a("v_add_f32 v105, v105, v107")
        a("v_permlane16_swap_b32 v104, v105")
        a("v_add_f32 v108, v104, v105")
        more(self.o.get("mix", 0))
        self.ror_add([108], [8, 4, 2, 1])
        a("v_mov_b32 v110, v108")
        a("v_permlane16_swap_b32 v108, v110")
        self.ln_finish(108, 110, 105)
        a(f"s_mov_b32 exec_lo, 1")
        a(f"s_mov_b32 exec_hi, 1")
        self.st(108, 4, 96, SWS, sTOK, mods="sc1")
        a("s_mov_b64 exec, -1")
        self.stamp("pub1")
        for f in self.touches("s1", 103):
            f()
        while len(later) > self.o.get("kv2", 2) or any(f in second for f in later):
            more()
        a(f"v_and_b32 v97, 31, v{vL}")
        a(f"v_lshlrev_b32 v85, 4, v97")
        a(f"v_lshlrev_b32 v97, 6, v97")
        a(f"v_lshl_add_u32 v97, v99, 4, v97")
        a(f"s_add_u32 s3, s{sW4K}, {L_PREP + 2048}")
        a(f"v_add_u32 v97, s3, v97")
        self.stamp("it_dma")
        a.wait(vm="prep")
        self.stamp("it_prep")
        a(f"ds_read_b128 v[48:51], v97", "xsr")
        a(f"ds_read_b128 v[52:55], v97 offset:32", "xsr")
        for i in range(2):
            a(f"ds_read_b64_tr_b16 v[{68 + 4 * i}:{69 + 4 * i}], v{vPB} offset:{i * 64}", ("pr", i))
            a(f"ds_read_b64_tr_b16 v[{70 + 4 * i}:{71 + 4 * i}], v{vPB} offset:{i * 64 + 1024}", ("pr", i))
        more(99)
        for i in range(2):
            a.wait(lg=[("pr", i)])
            self.st(68 + 4 * i, 4, vL16, SWS, sD1 if i else sD0, mods="sc1")
        self.unpack(112, 48, 8)
        XF = [112 + i for i in range(16)]
        a(f"s_and_b32 s3, s{sW}, 1")
        a(f"s_lshl_b32 s{sT}, s3, 5")
        a(f"s_lshl_b32 s3, s{sM}, 1")
        a(f"s_add_u32 s{sT}, s{sT}, s3")
        a(f"s_lshr_b32 s3, s{sW}, 1")
        a(f"s_add_u32 s{sT}, s{sT}, s3")
        a(f"s_lshl_b32 s{sT}, s{sT}, 11")
        a(f"s_add_u32 s{sT}, s{sT}, {MODE}")
        a(f"s_lshl_b32 s{sT + 1}, s{sGW}, 9")
        a(f"s_add_u32 s{sT + 1}, s{sT + 1}, {ST1}")
        a(f"v_and_b32 v93, 15, v{vL}")
        a(f"v_lshlrev_b32 v93, 2, v93")
        a(f"s_lshl_b32 s{sT + 2}, s{sG}, 6")
        a(f"s_add_u32 s{sT + 2}, s{sT + 2}, {F_XC}")
        a(f"v_mov_b32 v{vA1}, s{sTAG}")
        a(f"v_mov_b32 v{vA0}, 0")
        a(f"s_lshl_b32 s{sT + 3}, s{sP}, 2")
        a(f"s_add_u32 s{sT + 3}, s{sT + 3}, {F_PREP}")
        a(f"s_cmp_eq_u32 s{sW}, 0")
        a(f"s_cselect_b32 s{sT + 3}, s{sT + 3}, 0x7f000000")
        a(f"s_lshl_b32 s{sT + 6}, s{sM}, 2")
        a(f"s_add_u32 s{sT + 6}, s{sT + 6}, s{sH1F}")
        for f in self.touches("s2", 103):
            f()
        self.stamp("prepoll")

        def loads():
            self.ld(96, 4, vL16, SWS, sT, mods="sc1")
            self.ld(100, 4, vL16, SWS, sT, imm=1024, mods="sc1")
            self.ld(104, 4, 85, SWS, sT + 1, mods="sc1")
            self.ld(108, 1, 93, SWS, sT + 2, mods="sc1")

        def check():
            a(f"v_and_b32 v109, -16, v108")
            a(f"v_xor_b32 v109, s{sTAG}, v109")
            for r in (97, 99, 101, 103, 105, 107):
                a(f"v_bitop3_b32 v109, v109, v{r}, s{sTAG} bitop3:0xf6")
            a("v_cmp_ne_u32 vcc, 0, v109")
        self.poll(loads, check, self.o.get("nap", 2))
        self.stamp("modok")
        a("v_permlane32_swap_b32 v96, v100")
        a("v_permlane32_swap_b32 v98, v102")
        a(f"v_and_b32 v108, 15, v108")
        a("v_add_f32 v96, v96, v100")
        a("v_add_f32 v98, v98, v102")
        a(f"v_cmp_ne_u32 vcc, s{sXCC}, v108")
        a("v_mul_f32 v104, v104, v106")
        a("v_permlane16_swap_b32 v96, v98")
        a("v_add_f32 v96, v96, v98")
        a("s_cmp_eq_u64 vcc, 0")
        a(f"s_cselect_b32 s{sFAST}, 1, 0")
        norm = [f"v_fma_f32 v{r}, v{r}, v106, -v104" for r in XF]
        for n in (8, 4):
            a(norm.pop(0))
            a(norm.pop(0))
            self.ror_add([96], [n])
        self.bf16r(96, 96)
        a(f"v_add_f32 v96, v96, v86")
        self.bf16r(96, 96)
        a(f"ds_write_b32 v95, v96")
        if self.o.get("force_slow"):
            a(f"s_mov_b32 s{sFAST}, 0")
        a(f"s_add_u32 s{SH2}, s24, {H2X}")
        a(f"s_addc_u32 s{SH2 + 1}, s25, 0")
        a(f"s_cmp_lg_u32 s{sFAST}, 0")
        a(f"s_cselect_b32 s{SH2}, s20, s{SH2}")
        a(f"s_cselect_b32 s{SH2 + 1}, s21, s{SH2 + 1}")
        self.csel(sOB, HID, OO)
        self.csel(sOS, 86 * 1024, 32 * 1024)
        a(f"s_and_b32 s{SH2 + 1}, s{SH2 + 1}, 0xffff")
        a(f"s_mov_b32 s{SH2 + 2}, {2 << 20}")
        a(f"s_mov_b32 s{SH2 + 3}, 0x20000")
        a.wait(lg=0)
        self.stamp("it_prebar")
        a("s_barrier")
        self.stamp("it_bar")
        for s in range(2):
            for q in range(2):
                a(f"ds_read_b128 v[{32 + 8 * s + 4 * q}:{35 + 8 * s + 4 * q}], v94 offset:{128 + s * 64 + q * 16}", ("g", s))
                a(f"ds_read_b128 v[{48 + 8 * s + 4 * q}:{51 + 8 * s + 4 * q}], v94 offset:{s * 64 + q * 16}", ("g", s))
        self.flag_store(sT + 3, "sc1")
        for t in norm:
            a(t)
        for s in range(2):
            a.wait(lg=[("g", s)])
            for i in range(8):
                r = XF[8 * s + i]
                a(f"v_fma_f32 v{r}, v{r}, v{32 + 8 * s + i}, v{48 + 8 * s + i}")
            for i in range(4):
                a(f"v_cvt_pk_bf16_f32 v{64 + 4 * s + i}, v{XF[8 * s + 2 * i]}, v{XF[8 * s + 2 * i + 1]}")

        self.stamp("it_h1")

        def emit(mods):
            self.st(64, 4, vL16, SOUT, sH1O, mods=mods)
            self.st(68, 4, vL16, SOUT, sH1O, imm=1024, mods=mods)
            a.wait(vm=0)
            self.flag_store(sT + 6, mods)
        self.local_stores(emit)
        for f in self.touches("h1", 103):
            f()
        self.stamp("h1pub")

    def wtile_dmas(self, us, which, tag):
        a, out = self.a, []
        tiles = {"kv": ((L_WK, 1024), (L_WV, 2048)), "q": ((L_WQ, 0),), "all": ((L_WK, 1024), (L_WV, 2048), (L_WQ, 0))}[which]
        for u in us:
            for base, col in tiles:
                def f(u=u, base=base, col=col):
                    a(f"s_add_u32 s3, s{sWQO}, {u * 64 * 3072 + col}")
                    a(f"s_add_u32 m0, s{sWQL}, {base + u * 4096}")
                    self.dma(self.vWR, SWQ, 3, tag=tag)
                out.append(f)
        return out

    def xloads(self, X, sreg, srd):
        out = []
        self.a.seen -= {("x", s) for s in range(32)}
        for s in range(32):
            def f(s=s):
                if s and s % 4 == 0:
                    self.a(f"s_add_u32 s{sreg}, s{sreg}, 4096")
                self.ld(X + 4 * s, 4, vL16, srd, sreg, imm=(s % 4) * 1024, mods="sc1", tag=("x", s))
            out.append(f)
        return out

    def take(self, n):
        for _ in range(n):
            if self.bg:
                self.bg.pop(0)[1]()

    def take_until(self, name):
        while any(k == name for k, _ in self.bg):
            self.bg.pop(0)[1]()

    def touch_addr_ops(self, dst):
        o = []
        o.append(f"s_mul_i32 s{sT}, s{sGW}, s{sOS}")
        o.append(f"s_lshl_b32 s{sT + 6}, s{sM}, 11")
        o.append(f"s_add_u32 s{sT + 6}, s{sT + 6}, s{sOB}")
        o.append(f"s_add_u32 s{sOA}, s{sT}, s{sT + 6}")
        o.append(f"s_mov_b32 s{sT}, s{sOA}")
        o.append(f"s_lshl_b32 s{sT + 1}, s{sG}, 2")
        o.append(f"s_add_u32 s{sT + 1}, s{sT + 1}, 3")
        o.append(f"s_sub_u32 s{sT + 1}, s{sT + 1}, s{sW}")
        o.append(f"s_mul_i32 s{sT + 1}, s{sT + 1}, s{sOS}")
        o.append(f"s_add_u32 s{sT + 1}, s{sT + 1}, s{sT + 6}")
        o.append(f"s_add_u32 s{sOA + 1}, s{sT + 1}, 1024")
        o.append(f"s_lshl_b32 s{sT + 2}, s{sG}, 2")
        o.append(f"s_add_u32 s{sT + 2}, s{sT + 2}, s{sRT}")
        o.append(f"s_lshl_b32 s{sT + 2}, s{sT + 2}, 11")
        o.append(f"s_bfe_u32 s{sT + 6}, s{sM}, 0x10001")
        o.append(f"s_lshl_b32 s{sT + 6}, s{sT + 6}, 10")
        o.append(f"s_add_u32 s{sT + 2}, s{sT + 2}, s{sT + 6}")
        o.append(f"s_add_u32 s{sT + 2}, s{sT + 2}, {ST2 - 16 * 128}")
        o.append(f"s_lshl_b32 s{sT + 3}, s{sG}, 9")
        o.append(f"s_add_u32 s{sT + 3}, s{sT + 3}, {F_O - 24 * 128}")
        o.append(f"s_lshl_b32 s{sT + 4}, s{sG}, 8")
        o.append(f"s_add_u32 s{sT + 5}, s{sT + 4}, {F_HID - 30 * 128}")
        o.append(f"s_add_u32 s{sT + 4}, s{sT + 4}, {F_H2 - 28 * 128}")
        o.append(f"v_mov_b32 v{dst}, s{sT + 5}")
        o.append(f"v_and_b32 v{vA0}, 31, v{vL}")
        for lim, sreg in ((30, sT + 4), (28, sT + 3), (24, sT + 2), (16, sT + 1), (8, sT)):
            o.append(f"v_cmp_gt_u32 vcc, {lim}, v{vA0}")
            o.append(f"v_mov_b32 v{vA2}, s{sreg}")
            o.append("s_nop 0")
            o.append(f"v_cndmask_b32 v{dst}, v{dst}, v{vA2}, vcc")
        o.append(f"v_lshl_add_u32 v{dst}, v{vA0}, 7, v{dst}")
        return o

    def setup_background(self):
        o = []
        o.append(f"s_lshl_b32 s{sWO}, s{sF0}, 10")
        o.append(f"s_add_u32 s{sWO}, s{sWO}, {WOF}")
        o.append(f"s_lshr_b32 s{sW2}, s{sF0}, 5")
        o.append(f"s_mul_i32 s{sW2}, s{sW2}, {86 * 1024}")
        o.append(f"s_add_u32 s{sW2}, s{sW2}, {W2F}")
        o.append(f"s_mul_i32 s{sFT0}, s{sM}, 3")
        o.append(f"s_lshl_b32 s{sW1}, s{sM}, 1")
        o.append(f"s_add_u32 s{sW1}, s{sW1}, 11")
        o.append(f"s_min_u32 s{sFT0}, s{sFT0}, s{sW1}")
        o.append(f"s_mul_i32 s{sW1}, s{sW}, {16 * 2752}")
        o.append(f"s_lshl_b32 s{sW1C}, s{sFT0}, 6")
        o.append(f"s_add_u32 s{sW1}, s{sW1}, s{sW1C}")
        o.append(f"s_mul_i32 s{sW1C}, s{sW}, 3072")
        o.append(f"s_mul_i32 s{sHID}, s{sGW}, {86 * 1024}")
        o.append(f"s_lshl_b32 s{sBG}, s{sFT0}, 11")
        o.append(f"s_add_u32 s{sHID}, s{sHID}, s{sBG}")
        o.append(f"s_add_u32 s{sHID}, s{sHID}, {HID}")
        return o

    def w1_addr_ops(self, dst):
        o = [f"s_cmp_ge_u32 s{sM}, 11\ns_cselect_b32 s3, 8, 12"]
        for j in range(3):
            d = dst + j
            o.append(f"v_add_u32 v{d}, {64 * j}, v{vL}")
            o.append(f"v_mul_u32_u24 v{dst + 3}, 0x1556, v{d}")
            o.append(f"v_lshrrev_b32 v{dst + 3}, 16, v{dst + 3}")
            o.append(f"v_mul_u32_u24 v{dst + 4}, 12, v{dst + 3}")
            o.append(f"v_sub_u32 v{d}, v{d}, v{dst + 4}")
            o.append(f"v_cmp_gt_u32 vcc, s3, v{d}")
            o.append(f"v_lshlrev_b32 v{d}, 4, v{d}")
            o.append(f"v_mul_u32_u24 v{dst + 3}, 2752, v{dst + 3}")
            o.append(f"v_add_u32 v{d}, v{d}, v{dst + 3}")
            o.append(f"v_cndmask_b32 v{d}, v{dst + 5}, v{d}, vcc")
        return [f"v_mov_b32 v{dst + 5}, 0x7f000000"] + o

    def w1_dmas(self, vaddr):
        a, out = self.a, []
        for u in range(8):
            for j in range(3):
                def g(u=u, j=j):
                    if j == 0:
                        a(f"s_add_u32 s{sBG}, s{sW1}, {u * 64 * 2752}")
                    a(f"s_add_u32 m0, s{sW1C}, {L_W1 + u * 12288 + j * 1024}")
                    self.dma(vaddr + j, SW1, sBG, tag="w1")
                out.append(g)
        return out

    def late_setup(self):
        o = []
        o.append(f"s_and_b32 s{sT + 9}, s{sP}, 7")
        o.append(f"s_lshl_b32 s{sT + 10}, s{sT + 9}, 2")
        o.append(f"s_add_u32 s{sT + 10}, s{sT + 10}, s{sW}")
        o.append(f"s_mul_i32 s{sT + 10}, s{sT + 10}, {16 * 6144}")
        o.append(f"s_lshr_b32 s{sLATE}, s{sP}, 3")
        o.append(f"s_lshl_b32 s{sLATE}, s{sLATE}, 7")
        o.append(f"s_add_u32 s{sT + 10}, s{sT + 10}, s{sLATE}")
        o.append(f"s_add_u32 s{sT + 10}, s{sT + 10}, 2048")
        o.append(f"s_lshl_b32 s{sLATE}, s{sLATE}, 1")
        o.append(f"s_lshl_b32 s{sBG}, s{sW}, 6")
        o.append(f"s_add_u32 s{sLATE}, s{sLATE}, s{sBG}")
        o.append(f"s_lshl_b32 s{sBG}, s{sT + 9}, 13")
        o.append(f"s_add_u32 s{sLATE}, s{sLATE}, s{sBG}")
        o.append(f"s_add_u32 s{sLATE}, s{sLATE}, {MODL}")
        o.append(f"s_lshl_b32 s{sT + 9}, s{sT + 9}, 7")
        o.append(f"v_lshrrev_b32 v{vA2}, 3, v{vL}")
        o.append(f"v_mul_u32_u24 v{vA2}, 6144, v{vA2}")
        o.append(f"v_and_b32 v{vA1}, 0x70, v{vL16}")
        o.append(f"v_add_u32 v{vA2}, v{vA2}, v{vA1}")
        o.append(f"v_and_b32 v{vA1}, 62, v{vL}")
        return o

    def late_partials(self):
        a = self.a
        o = []
        T, C, R = 64, 90, 80
        o.append(f"v_lshrrev_b32 v{C}, 1, v{vL}")
        o.append(f"v_lshlrev_b32 v{C}, 7, v{C}")
        o.append(f"v_and_b32 v{C + 1}, 16, v{vL16}")
        o.append(f"s_lshl_b32 s3, s{sW}, 5\ns_add_u32 s3, s3, {L_LATE}")
        o.append(f"v_add3_u32 v{C}, v{C}, v{C + 1}, s3")
        o.append(lambda: a(f"ds_read_b128 v[{R}:{R + 3}], v{C}", "ltr"))
        o.append(lambda: a(f"ds_read_b128 v[{R + 4}:{R + 7}], v{C} offset:4096", "ltr"))
        for d, src in ((C + 2, self.MLR + 4), (C + 3, self.MLR + 5)):
            t = C + 4
            o += [f"v_lshlrev_b32 v{d}, 16, v{src}", f"v_mul_f32 v{t}, {fbits(-LOG2E)}, v{d}", f"v_exp_f32 v{t}, v{t}",
                  "s_nop 0", f"v_add_f32 v{t}, 1.0, v{t}", f"v_rcp_f32 v{t}, v{t}", "s_nop 0", f"v_mul_f32 v{d}, v{d}, v{t}",
                  f"v_cvt_pk_bf16_f32 v{d}, v{d}, v{d}", f"v_and_b32 v{d}, s{sHI}, v{d}"]
        o.append(lambda: a.wait(lg="ltr"))
        for i in range(8):
            o.append(f"v_lshlrev_b32 v{T + 2 * i}, 16, v{R + i}")
            o.append(f"v_and_b32 v{T + 2 * i + 1}, s{sHI}, v{R + i}")
        o += [f"v_mul_f32 v{T + i}, v{C + 2}, v{T + i}" for i in range(8)]
        o += [f"v_fmac_f32 v{T + i}, v{C + 3}, v{T + 8 + i}" for i in range(8)]
        o.append(f"v_and_b32 v{C}, 1, v{vL}")
        o.append(f"v_lshlrev_b32 v{C + 1}, 5, v{C}")
        o += [f"v_permlane32_swap_b32 v{T + i}, v{T + 4 + i}" for i in range(4)]
        o += [f"v_add_f32 v{T + i}, v{T + i}, v{T + 4 + i}" for i in range(4)]
        o.append(f"v_lshrrev_b32 v{C}, 5, v{vL}")
        o.append(f"v_lshl_add_u32 v{C + 1}, v{C}, 4, v{C + 1}")
        o += [f"v_permlane16_swap_b32 v{T + i}, v{T + 2 + i}" for i in range(2)]
        o += [f"v_add_f32 v{T + i}, v{T + i}, v{T + 2 + i}" for i in range(2)]
        o.append(f"v_bfe_u32 v{C}, v{vL}, 4, 1")
        o.append(f"v_lshl_add_u32 v{C + 1}, v{C}, 3, v{C + 1}")
        for n in (8, 4, 2):
            o += [f"v_add_f32_dpp v{T + i}, v{T + i}, v{T + i} row_ror:{n} row_mask:0xf bank_mask:0xf" for i in range(2)]

        def put():
            a(f"s_mov_b32 exec_lo, 0x00030003")
            a(f"s_mov_b32 exec_hi, 0x00030003")
            self.st(T, 2, C + 1, SWS, sLATE, mods="sc1", tag="lateout")
            a("s_mov_b64 exec, -1")
        o.append(put)
        return o

    def check4(self, reg, t, dst):
        a = self.a
        a(f"v_xor_b32 v{t}, s{sTAG}, v{reg}")
        for r in range(1, 4):
            a(f"v_bitop3_b32 v{t}, v{t}, v{reg + r}, s{sTAG} bitop3:0xf6")
        a(f"v_cmp_ne_u32 {dst}, 0, v{t}")

    def all_flags_seen(self, reg, t, soff):
        a = self.a
        ok = a.newlabel("seen")
        self.check4(reg, t, "vcc")
        a(f"s_cbranch_vccz {ok}")
        snap = a.snapshot()
        self.poll(lambda: self.ld(reg, 4, vL16, SWS, soff, mods="sc1"), lambda: self.check4(reg, t, "vcc"), 4)
        a.restore(snap)
        a.L(ok)

    def g1(self):
        a = self.a
        X, WR, ACK, ACV, ACQ = 128, 32, 96, 112, 80
        a(f"v_and_b32 v{vA0}, 15, v{vL}")
        a(f"v_lshlrev_b32 v{vA0}, 2, v{vA0}")
        a(f"s_lshl_b32 s{sT + 8}, s{sGW}, 15")
        tiles = ((L_WK, ACK), (L_WV, ACV), (L_WQ, ACQ))
        wr = lambda t, s: WR + 12 * (s % 4) + 4 * t

        def rd(t, s):
            base, dst = tiles[t][0], wr(t, s)
            v, off = (vTR, base) if base < 65536 else (vTR2, base - 65536)
            a(f"ds_read_b64_tr_b16 v[{dst}:{dst + 1}], v{v} offset:{off + s * 1024}", ("w", t, s))
            a(f"ds_read_b64_tr_b16 v[{dst + 2}:{dst + 3}], v{v} offset:{off + s * 1024 + 256}", ("w", t, s))

        for s in range(2):
            for t in range(3):
                rd(t, s)
        self.poll_flags(vA0, sT + 5)
        self.stamp("h1ok")
        xl = self.xloads(X, sT + 8, SOUT)
        for _ in range(self.o.get("xahead1", 12)):
            xl.pop(0)()
        grp = []
        for k in range(2):
            def f(k=k):
                a(f"s_lshl_b32 s3, s{sW}, 11")
                a(f"s_add_u32 m0, s3, {L_LATE + k * 1024}")
                if k:
                    a(f"s_add_u32 s{sT + 10}, s{sT + 10}, {8 * 6144}")
                self.dma(vA2, SWM, sT + 10, tag="grp", mods="nt")
            grp.append(f)
        self.p2T = self.o.get("p2pos", "T") == "T"
        if self.p2T:
            for k in range(2):
                def f(k=k):
                    a(f"s_add_u32 m0, s{sW4K}, {L_PREP + k * 1024}")
                    if k:
                        a(f"s_add_u32 s93, s93, 8192")
                    self.dma(6, SPR, 93, tag="grp", mods="nt")
                grp.append(f)
        grp.append(lambda: a(f"buffer_load_ushort a250, v{vA1}, {sr(SC, 4)}, s{sT + 9} offen", "grp"))
        grp.append(lambda: a(f"buffer_load_ushort a251, v{vA1}, {sr(SC, 4)}, s{sT + 9} offen offset:64", "grp"))
        grp.append(lambda: self.ld(244, 4, vL16, SWS, sT + 2, mods="sc1", tag="grp", kind="a"))
        tailt = grp + self.touches("p1tail", vQB + 2)
        npre = self.o.get("npre", 6)
        wrest = self.wtile_dmas(range(npre, 8), "all", "wkv1")
        nrest = len(wrest)
        assert 2 * nrest <= 4 * npre - 2
        fill = [f"s_mov_b32 s{sT + 2}, {F_PREP}"] + self.late_setup() + self.setup_background()
        fill += [f"s_lshl_b32 s{sT}, s{sP}, 2", f"s_add_u32 s{sT}, s{sT}, s{sW}", f"s_lshl_b32 s{sT + 7}, s{sT}, 7",
                 f"s_add_u32 s{sT + 7}, s{sT + 7}, {F_KV}",
                 f"s_sub_u32 s{sT + 1}, s{sT}, 64", f"s_sub_u32 s{sT + 6}, s{sT}, 128",
                 f"s_cmp_ge_u32 s{sG}, 1\ns_cselect_b32 s{sT + 3}, s{sT + 1}, s{sT}",
                 f"s_cmp_ge_u32 s{sG}, 2\ns_cselect_b32 s{sT + 4}, s{sT + 6}, s{sT}",
                 f"s_lshl_b32 s{sT + 3}, s{sT + 3}, 7", f"s_lshl_b32 s{sT + 4}, s{sT + 4}, 7",
                 f"s_lshl_b32 s{sT}, s{sT}, 12", f"s_add_u32 s{sT}, s{sT}, {KV}",
                 f"s_sub_u32 s{sKV1}, s{sT}, {64 * 4096}", f"s_sub_u32 s{sKV1 + 1}, s{sT}, {128 * 4096}",
                 f"s_cmp_ge_u32 s{sG}, 1\ns_cselect_b32 s{sKV1}, s{sKV1}, 0x7f000000",
                 f"s_cmp_ge_u32 s{sG}, 2\ns_cselect_b32 s{sKV1 + 1}, s{sKV1 + 1}, 0x7f000000",
                 f"v_mov_b32 v7, s{sT + 3}", f"v_writelane_b32 v7, s{sT + 4}, 1", "v_accvgpr_write_b32 a253, v7",
                 f"s_add_u32 s3, s{sW4K}, {L_KV + 8 * 4096}\nv_add_u32 v{vA0}, s3, v{vL16}",
                 f"s_sub_u32 s3, 3, s{sW}\ns_lshl_b32 s3, s3, 10\ns_add_u32 s3, s3, {L_QX}\nv_add_u32 v7, s3, v{vL16}",
                 f"s_add_u32 s3, s{sWQL}, {L_QX}\nv_add_u32 v4, s3, v{vL16}"]
        fill += self.attn_setup()
        for s in range(32):
            for t in range(3):
                acc = tiles[t][1]
                a.wait(vm=[("x", s)] if t == 0 else None, lg=[("w", t, s)])
                c = "0" if s == 0 else vr(acc, 16)
                A, B = vr(wr(t, s), 4), vr(X + 4 * s, 4)
                if t == 1:
                    A, B = B, A
                a(f"v_mfma_f32_32x32x16_bf16 {vr(acc, 16)}, {A}, {B}, {c}")
                if t == 0:
                    if s + 2 == 4 * npre and nrest:
                        a.wait(vm="wkv1")
                        a("s_barrier")
                    if xl:
                        xl.pop(0)()
                    elif tailt:
                        tailt.pop(0)()
                elif t == 1 and wrest and s % 2 == 0:
                    wrest.pop(0)()
                else:
                    for _ in range(2):
                        if fill:
                            a(fill.pop(0))
                if s + 2 < 32:
                    rd(t, s + 2)
        assert not fill and not wrest
        while tailt:
            tailt.pop(0)()
        self.stamp("pass1")
        PK = 32
        side = [f"v_sub_f32 v{self.MD + r}, v{self.vNEG}, v{self.MF + r}" for r in range(16)]
        sc = fbits(0.25 * LOG2E)
        side += [f"v_mul_f32 v{ACQ + i}, {sc}, v{ACQ + i}" for i in range(8, 16)]
        side += [f"v_cvt_pk_bf16_f32 v{68 + i}, v{ACQ + 8 + 2 * i}, v{ACQ + 9 + 2 * i}" for i in range(4)]
        side += [f"ds_write_b128 v7, {vr(68, 4)}"]
        side += [f"v_mul_f32 v{ACQ + i}, {sc}, v{ACQ + i}" for i in range(8)]
        side += [f"v_cvt_pk_bf16_f32 v{64 + i}, v{ACQ + 2 * i}, v{ACQ + 1 + 2 * i}" for i in range(4)]
        side += self.attn_addresses(range(8, 12), head=True)
        for f in range(4):
            src = ACK + 8 * f
            for i in range(4):
                a(f"v_cvt_pk_bf16_f32 v{PK + 4 * f + i}, v{src + 2 * i}, v{src + 2 * i + 1}")
            self.st(PK + 4 * f, 4, vL16, SWS, sT, imm=f * 1024, mods="sc1", tag="kv")
            a(f"ds_write_b128 v{vA0}, {vr(PK + 4 * f, 4)} offset:{f * 1024}")
            for _ in range(14):
                if side:
                    a(side.pop(0))
        M = self.MLR

        def kvflag():
            a.wait(vm="kv")
            a("s_mov_b64 exec, 1")
            self.st(M + 7, 1, M + 8, SWS, sT + 7, mods="sc1")
            a("s_mov_b64 exec, -1")
        while side:
            a(side.pop(0))
        a(f"v_mov_b32 v{M + 7}, s{sTAG}")
        a(f"v_mov_b32 v{M + 8}, 0")
        a(f"v_mov_b32 v{M + 9}, v4")
        for i in range(4):
            a(f"v_mov_b32 v{vQA + i}, v{64 + i}")
        a.wait(vm="grp")
        for i in range(4):
            a(f"v_accvgpr_read_b32 v{M + i}, a{244 + i}")
        a(f"v_accvgpr_read_b32 v{M + 4}, a250")
        a(f"v_accvgpr_read_b32 v{M + 5}, a251")
        self.all_flags_seen(M, M + 6, sT + 2)
        nf = self.o.get("nflag", 4)
        wo = [("wo", f) for f in self.wfrag_loads(sWO, 0, 32, "a", "wo")]
        self.bg = wo[:nf] + [("grp", kvflag)] + wo[nf:]
        a.wait(lg=0)
        a("s_barrier")
        a(f"ds_read_b128 {vr(vQB, 4)}, v{M + 9}", "qb")
        self.stamp("T")

    MD, MF = 48, 16
    S0, OA, OB = 64, 96, 112
    KR, VR, PR = 128, 136, 160
    vKVB, vONE, vVA, vVB = 176, 177, 180, 192
    XR = 204
    MLR = 212

    vNEG = vQB + 3

    def attn_setup(self):
        out = []
        t0, t1 = vQB, self.vNEG
        out.append(f"v_and_b32 v{t0}, 31, v{vL}")
        out.append(f"v_lshrrev_b32 v{t1}, 5, v{vL}")
        out.append(f"v_lshlrev_b32 v{t1}, 2, v{t1}")
        out.append(f"v_sub_u32 v{t0}, v{t0}, v{t1}")
        out.append(f"v_mov_b32 v{t1}, {fbits(-1e30)}")
        for r in range(0, 16, 2):
            k0, k1 = 8 * (r >> 2) + (r & 3), 8 * (r >> 2) + (r & 3) + 1
            out.append(f"v_cmp_le_i32 vcc, {k0}, v{t0}")
            out.append(f"v_cmp_le_i32 s[{sT + 4}:{sT + 5}], {k1}, v{t0}")
            out.append(f"v_cndmask_b32_e64 v{self.MF + r}, 0, v{t1}, vcc")
            out.append(f"v_cndmask_b32_e64 v{self.MF + r + 1}, 0, v{t1}, s[{sT + 4}:{sT + 5}]")
        return out

    def attn_addresses(self, blocks, head=False):
        o = []
        t = self.vONE + 1
        if head:
            o.append(f"v_add_u32 v{self.vKVB}, {L_KV}, v{vL16}")
            o.append(f"v_mov_b32 v{self.vONE}, {L_GS - 2048}")
            o += [f"v_mov_b32 v{self.PR + i}, 0x3f803f80" for i in range(4)]
            o.append(f"ds_write_b128 v{self.vONE}, {vr(self.PR, 4)} offset:2048")
            o.append(f"ds_write_b128 v{self.vONE}, {vr(self.PR, 4)} offset:3072")
        o.append(f"s_mov_b32 vcc_lo, 0xffff\ns_mov_b32 vcc_hi, 0xffff")
        for b in blocks:
            o.append(f"v_add_u32 v{t + b % 2}, {b * 4096}, v{self.vKVB}")
            o.append(f"v_cndmask_b32 v{self.vVA + b}, v{self.vONE}, v{t + b % 2}, vcc")
            o.append(f"v_cndmask_b32 v{self.vVB + b}, v{t + b % 2}, v{self.vONE}, vcc")
        return o

    def attn_items(self, items, first, quota=0, gate=None):
        a = self.a
        first = set(first)
        n = len(items)
        S = lambda i: self.S0 + 16 * (i % 2)
        P = lambda i: self.PR + 8 * (i % 2)
        K = lambda i: self.KR + 4 * (i % 2)
        V = lambda i: self.VR + 8 * (i % 3)

        def ldk(i):
            u, b, _ = items[i]
            if i == gate:
                self.gate()
            a(f"ds_read_b128 {vr(K(i), 4)}, v{self.vKVB} offset:{b * 4096 + u * 1024}", ("K", i))

        def ldv(i):
            u, b, _ = items[i]
            va = (self.vVB if u else self.vVA) + b
            a(f"ds_read_b128 {vr(V(i), 4)}, v{va} offset:2048", ("V", i))
            a(f"ds_read_b128 {vr(V(i) + 4, 4)}, v{va} offset:3072", ("V", i))

        def qk(i):
            u, _, mask = items[i]
            c = {None: "0", "d": vr(self.MD, 16), "f": vr(self.MF, 16)}[mask]
            a.wait(lg=[("K", i)])
            a(f"v_mfma_f32_32x32x16_bf16 {vr(S(i), 16)}, {vr(K(i), 4)}, {vr(vQB if u else vQA, 4)}, {c}")

        def pv(i, half):
            u = items[i][0]
            o = vr(self.OB if u else self.OA, 16)
            c = o
            if half == 0:
                a.wait(lg=[("V", i)])
                if u in first:
                    first.discard(u)
                    c = "0"
            a(f"v_mfma_f32_32x32x16_bf16 {o}, {vr(V(i) + 4 * half, 4)}, {vr(P(i) + 4 * half, 4)}, {c}")

        ex = lambda i, r: a(f"v_exp_f32 v{S(i) + r}, v{S(i) + r}")
        cv = lambda i, k: a(f"v_cvt_pk_bf16_f32 v{P(i) + k}, v{S(i) + 2 * k}, v{S(i) + 2 * k + 1}")

        ldk(0)
        if n > 1:
            ldk(1)
        ldv(0)
        a.wait(lg="qb")
        qk(0)
        for i in range(n):
            if i + 1 < n:
                qk(i + 1)
            ex(i, 0)
            if i + 2 < n:
                ldk(i + 2)
            ex(i, 1)
            if i + 1 < n:
                ldv(i + 1)
            ex(i, 2)
            ex(i, 3)
            if i:
                pv(i - 1, 0)
            for r in range(4, 16):
                ex(i, r)
                slots = (5, 13, 9, 7, 11)
                if r == 4:
                    per = min(-(-quota // (n - i)), len(slots))
                if r in slots[:per]:
                    self.take(1)
                    quota -= 1
                if r % 2 == 1:
                    cv(i, (r - 5) // 2)
                if r == 8 and i:
                    pv(i - 1, 1)
            cv(i, 6)
            cv(i, 7)
            if gate is not None:
                self.stamp(f"it{i}")
        pv(n - 1, 0)
        pv(n - 1, 1)
        self.take(quota)

    def gate(self):
        self.a.wait(vm=[("rkv", 0), "lateout"])
        self.a("s_barrier")
        self.flag_store(sT, "sc1", lanes=2)

    def fallback(self, u):
        a = self.a
        S, P, K, V = self.S0, self.PR, self.KR, self.VR
        O = self.OB if u else self.OA
        Q = vQB if u else vQA
        vM, vKA, vVAd = self.S0 + 16, self.S0 + 17, self.S0 + 18
        sB, sE, sQB = sT, sT + 1, sT + 2
        if u:
            a(f"s_sub_u32 s{sQB}, 3, s{sW}")
        else:
            a(f"s_mov_b32 s{sQB}, s{sW}")
        a(f"s_add_u32 s{sE}, s{sQB}, 8")
        a(f"v_mov_b32 v{vM}, {fbits(-3e38)}")
        for r in range(16):
            a(f"v_mov_b32 v{O + r}, 0")
        a(f"v_and_b32 v{vA0}, 16, v{vL}")
        a(f"v_cmp_{'ne' if u else 'eq'}_u32 s[{sT + 4}:{sT + 5}], 0, v{vA0}")
        for ps in range(2):
            top, nd, nf = a.newlabel("fb"), a.newlabel("fbd"), a.newlabel("fbf")
            a(f"s_lshl_b32 s3, s{sG}, 2")
            a(f"s_sub_i32 s3, 8, s3")
            a(f"s_max_i32 s{sB}, s3, s{sQB}")
            a.L(top)
            a(f"s_lshl_b32 s3, s{sB}, 12")
            a(f"v_add_u32 v{vKA}, s3, v{self.vKVB}")
            a(f"v_cndmask_b32_e64 v{vVAd}, v{self.vONE}, v{vKA}, s[{sT + 4}:{sT + 5}]")
            a(f"ds_read_b128 {vr(K, 4)}, v{vKA} offset:{u * 1024}")
            a(f"ds_read_b128 {vr(V, 4)}, v{vVAd} offset:2048")
            a(f"ds_read_b128 {vr(V + 4, 4)}, v{vVAd} offset:3072")
            a.wait(lg=0)
            a(f"v_mfma_f32_32x32x16_bf16 {vr(S, 16)}, {vr(K, 4)}, {vr(Q, 4)}, 0")
            a("s_nop 11")
            a(f"s_cmp_eq_u32 s{sB}, s{sE}")
            a(f"s_cbranch_scc0 {nd}")
            for r in range(16):
                a(f"v_add_f32 v{S + r}, v{S + r}, v{self.MD + r}")
            a.L(nd)
            a(f"s_cmp_eq_u32 s{sB}, s{sQB}")
            a(f"s_cbranch_scc0 {nf}")
            for r in range(16):
                a(f"v_add_f32 v{S + r}, v{S + r}, v{self.MF + r}")
            a.L(nf)
            if ps == 0:
                for r in range(0, 16, 2):
                    a(f"v_max3_f32 v{vM}, v{S + r}, v{S + r + 1}, v{vM}")
            else:
                for r in range(16):
                    a(f"v_sub_f32 v{S + r}, v{S + r}, v{vM}")
                for r in range(16):
                    a(f"v_exp_f32 v{S + r}, v{S + r}")
                for k in range(8):
                    a(f"v_cvt_pk_bf16_f32 v{P + k}, v{S + 2 * k}, v{S + 2 * k + 1}")
                for half in range(2):
                    a(f"v_mfma_f32_32x32x16_bf16 {vr(O, 16)}, {vr(V + 4 * half, 4)}, {vr(P + 4 * half, 4)}, {vr(O, 16)}")
            a(f"s_add_u32 s{sB}, s{sB}, 1")
            a(f"s_cmp_le_u32 s{sB}, s{sE}")
            a(f"s_cbranch_scc1 {top}")
            if ps == 0:
                a(f"v_mov_b32 v{vKA}, v{vM}")
                a(f"v_permlane32_swap_b32 v{vM}, v{vKA}")
                a(f"v_max_f32 v{vM}, v{vM}, v{vKA}")
        a("s_nop 11")

    def wfrag_loads(self, sreg, dst, n, kind, tag, first=0):
        out = []
        for i in range(n):
            def f(i=i):
                if first + i and i % 4 == 0:
                    self.a(f"s_add_u32 s{sreg}, s{sreg}, 4096")
                self.ld(dst + 4 * i, 4, vL16, SWS, sreg, imm=(i % 4) * 1024, mods="sc1", tag=(tag, first + i), kind=kind)
            out.append(f)
        return out

    def variants(self, labels_emit):
        a = self.a
        snap, bg = a.snapshot(), list(self.bg)
        n0, most = self.nstamp, (self.nstamp, list(self.stamp_names))
        for label, emit, tail in labels_emit:
            if self.nstamp > most[0]:
                most = (self.nstamp, list(self.stamp_names))
            self.nstamp, self.stamp_names = n0, self.stamp_names[:n0]
            a.restore(snap)
            self.bg = list(bg)
            if label:
                a.L(label)
            emit()
            if tail:
                a(f"s_branch {tail}")
        if self.nstamp < most[0]:
            self.nstamp, self.stamp_names = most

    def attention(self):
        a = self.a
        for w in range(1, 4):
            a(f"s_cmp_eq_u32 s{sW}, {w}")
            a(f"s_cbranch_scc1 L_own{w}")

        def own(w):
            ua = [(0, 8 + i, "d" if i == w else None) for i in range(w + 1)]
            ub = [(1, 8 + i, "d" if i == 3 - w else None) for i in range(4 - w)]
            self.attn_items(ua + ub, first=(0, 1), quota=self.o.get("q_own", 8))
        self.variants([(f"L_own{w}" if w else None, lambda w=w: own(w), "L_own_done" if w < 3 else None) for w in range(4)])
        a.L("L_own_done")
        self.take_until("grp")
        self.stamp("own")
        M = self.MLR
        run = lambda f: a(f) if isinstance(f, str) else f()
        a(f"v_accvgpr_read_b32 v{M}, a253")
        a(f"s_mov_b32 s{sT + 5}, {F_KV}")
        self.poll_flags(M, sT + 5, self.o.get("nap", 2))
        self.stamp("kvok")
        side = self.attn_addresses(range(8))
        for k in (1, 0):
            a(f"s_add_u32 m0, s{sW4K}, {L_KV + k * 4 * 4096}" if k or not self.p2T else "s_nop 0")
            for f in range(4):
                if k or not self.p2T:
                    self.dma(vL16, SWS, sKV1 + 1 - k, imm=f * 1024, mods="sc1", tag=("rkv", k))
                for _ in range(4):
                    if side:
                        a(side.pop(0))
        work = self.late_partials()
        if self.p2T:
            rds, sts = [f"v_accvgpr_read_b32 v{M + 9}, a254"], []
            for i in range(2):
                r = self.KR + 4 * i
                rds.append(lambda i=i, r=r: (a(f"ds_read_b64_tr_b16 v[{r}:{r + 1}], v{M + 9} offset:{i * 64}", ("p2", i)),
                                             a(f"ds_read_b64_tr_b16 v[{r + 2}:{r + 3}], v{M + 9} offset:{i * 64 + 1024}", ("p2", i))))
                sts.append(lambda i=i, r=r: (a.wait(lg=[("p2", i)]), a(f"s_add_u32 s93, s94, {i * 86 * 1024}"),
                                             self.st(r, 4, vL16, SWS, 93, mods="sc1")))
            far = [lambda: a.wait(lg=[("p2", 1)]), f"s_add_u32 m0, s{sW4K}, {L_KV}"]
            far += [lambda f=f: self.dma(vL16, SWS, sKV1 + 1, imm=f * 1024, mods="sc1", tag=("rkv", 0)) for f in range(4)]
            work = rds + work[:8] + far + work[8:16] + sts[:1] + work[16:50] + sts[1:] + work[50:]
        for f in work:
            run(f)
        self.take(self.o.get("q_rkv", 0))
        self.stamp("late")
        self.vW1 = 255
        a(f"v_accvgpr_read_b32 v{self.vW1}, a255")
        for t in self.touch_addr_ops(M + 16):
            a(t)
        a(f"v_lshrrev_b32 v{M + 17}, 2, v{vL}")
        a(f"v_and_b32 v{M + 18}, 48, v{vL16}")
        a(f"v_lshl_add_u32 v{M + 17}, v{M + 17}, 10, v{M + 18}")
        a(f"s_lshl_b32 s{sT + 6}, s{sG}, 2")
        a(f"s_add_u32 s{sT + 6}, s{sT + 6}, s{sRT}")
        a(f"s_lshl_b32 s{sT + 6}, s{sT + 6}, 15")
        a(f"s_lshl_b32 s3, s{sF0}, 1")
        a(f"s_add_u32 s{sOUTO}, s{sT + 6}, s3")
        a(f"v_and_b32 v{M + 18}, 0x70, v{vL16}")
        a(f"v_bfe_u32 v{M + 19}, v{vL}, 3, 2")
        a(f"v_lshl_add_u32 v{M + 18}, v{M + 19}, 11, v{M + 18}")
        a(f"v_lshrrev_b32 v{M + 19}, 5, v{vL}")
        a(f"v_lshl_add_u32 v{M + 18}, v{M + 19}, 15, v{M + 18}")
        a(f"s_lshl_b32 s{sT + 7}, s{sF0}, 2")
        a(f"s_add_u32 s{sT + 7}, s{sT + 7}, {MODL}")
        a(f"s_mov_b32 s{sT + 10}, {F_LATE}")

        def opt():
            a("s_mov_b32 exec_hi, 0")
            self.ld(vA2, 1, M + 16, SWS, "0", mods="sc1")
            a("s_mov_b32 exec_hi, -1")

        def xr(k):
            a(f"s_lshl_b32 s3, s{sW}, 11")
            a(f"s_add_u32 m0, s3, {L_LATE + k * 1024}")
            a(f"s_add_u32 s3, s{sOUTO}, {k * 16384}")
            self.dma(M + 17, SX, 3)

        def seen():
            a.wait(vm="lf")
            self.all_flags_seen(M, M + 19, sT + 10)

        def ml(k):
            a(f"s_add_u32 s3, s{sT + 7}, {k * 8192}")
            self.ld(M + 4 * k, 4, M + 18, SWS, 3, mods="sc1", tag="ml")
        def hidpt():
            self.ld(vA2, 1, M + 26, SWS, sHID, mods="sc1")
        for t in self.w1_addr_ops(M + 20):
            a(t)
        a(f"s_cmp_ge_u32 s{sM}, 11")
        a(f"s_cselect_b32 s3, 32, 48")
        a(f"v_lshlrev_b32 v{M + 26}, 7, v{vL}")
        a(f"v_cmp_gt_u32 vcc, s3, v{vL}")
        a(f"v_cndmask_b32 v{M + 26}, v{M + 25}, v{M + 26}, vcc")
        w1 = [("w1", f) for f in self.w1_dmas(M + 20)]
        tr = [("wo", f) for f in self.touches("rem", M + 27)]
        self.bg = [("wo", opt)] + tr + [("wo", lambda: xr(0)), ("wo", lambda: xr(1))] + self.bg + w1
        self.late_tail = [seen] + [lambda k=k: ml(k) for k in range(4)]
        self.hidpt = hidpt
        if self.o.get("hidpt", "g2") == "rem":
            self.bg.insert(1, ("wo", hidpt))
        self.w2 = self.wfrag_loads(sW2, 128, 32, "a", "w2") + self.wfrag_loads(sW2, 0, 32, "a", "w2", first=32) \
            + self.wfrag_loads(sW2, 128, 22, "v", "w2", first=64)
        self.bg += [("w2a", f) for f in self.w2[:32]]
        a(f"s_lshl_b32 s{sT}, s{sP}, 2")
        a(f"s_add_u32 s{sT}, s{sT}, {F_LATE}")
        a(f"s_cmp_eq_u32 s{sP}, 0")
        a(f"s_cselect_b32 s3, {WS_E}, 0x7f000000")
        a(f"v_mov_b32 v{vA0}, s{sT}")
        a(f"v_writelane_b32 v{vA0}, s3, 1")
        a(f"s_cmp_eq_u32 s{sW}, 0")
        a(f"s_cselect_b32 s{sT}, 0, 0x7f000000")
        a(f"v_mov_b32 v{vA1}, s{sTAG}")
        a.wait(vm=[("rkv", 1)])
        a("s_barrier")
        self.stamp("kvin")
        a(f"s_cmp_eq_u32 s{sG}, 0")
        a("s_cbranch_scc1 L_rem_g0")
        a(f"s_cmp_eq_u32 s{sG}, 1")
        a("s_cbranch_scc1 L_rem_g1")
        for w in range(1, 4):
            a(f"s_cmp_eq_u32 s{sW}, {w}")
            a(f"s_cbranch_scc1 L_rem{w}")
        q = self.o.get("q_rem", 39)
        near = [(u, b, None) for u in range(2) for b in range(4, 8)]

        def rem(w):
            ua = [(0, b, "f" if b == w else None) for b in range(w, 4)]
            ub = [(1, b, "f" if b == 3 - w else None) for b in range(3 - w, 4)]
            self.attn_items(near + ua + ub, first=(), quota=q, gate=8)
        self.variants([(f"L_rem{w}" if w else None, lambda w=w: rem(w), "L_rem_done") for w in range(4)]
                      + [("L_rem_g1", lambda: (self.gate(), self.attn_items(near, first=(), quota=q)), "L_rem_done"),
                         ("L_rem_g0", lambda: (self.gate(), self.take(q)), None)])
        a.L("L_rem_done")
        self.take_until("wo")
        self.ld(M, 4, vL16, SWS, sT + 10, mods="sc1", tag="lf")
        self.stamp("attn")
        lo, hi = fbits(2.0 ** -60), fbits(2.0 ** 60)
        for u, (O, lreg) in enumerate(((self.OA, self.OA + 8), (self.OB, self.OB))):
            ok = a.newlabel("ok")
            a(f"v_cmp_lt_f32 vcc, {lo}, v{lreg}")
            a(f"s_mov_b64 s[{sT}:{sT + 1}], vcc")
            a(f"v_cmp_gt_f32 vcc, {hi}, v{lreg}")
            a(f"s_and_b64 s[{sT}:{sT + 1}], s[{sT}:{sT + 1}], vcc")
            if self.o.get("force_fallback"):
                a(f"s_mov_b64 s[{sT}:{sT + 1}], 0")
            a(f"s_cmp_eq_u64 s[{sT}:{sT + 1}], -1")
            a(f"s_cbranch_scc1 {ok}")
            self.fallback(u)
            a.L(ok)
        a(f"v_rcp_f32 v{self.OA + 9}, v{self.OA + 8}")
        a(f"v_rcp_f32 v{self.OB + 1}, v{self.OB}")
        for i in range(8):
            a(f"v_mul_f32 v{self.OA + i}, v{self.OA + i}, v{self.OA + 9}")
        for i in range(4):
            a(f"v_cvt_pk_bf16_f32 v{64 + i}, v{self.OA + 2 * i}, v{self.OA + 2 * i + 1}")
        for i in range(8):
            a(f"v_mul_f32 v{self.OB + 8 + i}, v{self.OB + 8 + i}, v{self.OB + 1}")
        for i in range(4):
            a(f"v_cvt_pk_bf16_f32 v{68 + i}, v{self.OB + 8 + 2 * i}, v{self.OB + 9 + 2 * i}")
        a(f"s_lshl_b32 s{sT}, s{sGW}, 5")
        a(f"s_lshl_b32 s3, s{sM}, 1")
        a(f"s_add_u32 s{sT}, s{sT}, s3")
        a(f"s_lshl_b32 s{sT + 1}, s{sG}, 2")
        a(f"s_add_u32 s{sT + 1}, s{sT + 1}, 3")
        a(f"s_sub_u32 s{sT + 1}, s{sT + 1}, s{sW}")
        a(f"s_lshl_b32 s{sT + 1}, s{sT + 1}, 5")
        a(f"s_add_u32 s{sT + 1}, s{sT + 1}, s3")
        a(f"s_add_u32 s{sT + 1}, s{sT + 1}, 1")
        a(f"s_sub_u32 s3, s{sT + 1}, s{sT}")
        a(f"v_mul_lo_u32 v{vA0}, s3, v{vL}")
        a(f"v_add_lshl_u32 v{vA0}, v{vA0}, s{sT}, 2")
        a(f"v_mov_b32 v{vA1}, s{sTAG}")
        a(f"s_mov_b32 s{sT + 2}, {F_O}")

        def emit(mods):
            self.st(64, 4, vL16, SWS, sOA, mods=mods)
            self.st(68, 4, vL16, SWS, sOA + 1, mods=mods)
            a.wait(vm=0)
            self.flag_store(sT + 2, mods, lanes=2)
        self.local_stores(emit)
        self.stamp("opub")

    def g2(self):
        a = self.a
        ACC, XR_, GA = 96, 128, 32
        M = self.MLR
        vML = self.vML = 3
        for f in self.late_tail:
            f()

        a(f"v_and_b32 v{vA0}, 31, v{vL}")
        a(f"v_lshlrev_b32 v{vA0}, 6, v{vA0}")
        a(f"v_lshrrev_b32 v{vA1}, 5, v{vL}")
        a(f"v_lshl_add_u32 v{vA0}, v{vA1}, 3, v{vA0}")
        a(f"s_lshl_b32 s3, s{sW}, 11")
        a(f"s_add_u32 s3, s3, {L_LATE}")
        a(f"v_add_u32 v{vXT}, s3, v{vA0}")
        for i in range(4):
            a(f"ds_read_b64 v[{self.XR + 2 * i}:{self.XR + 2 * i + 1}], v{vXT} offset:{16 * i}")
        a.wait(lg=0)
        self.unpack(vX1, self.XR, 8)
        a(f"s_lshl_b32 s3, s{sW}, 9")
        a(f"s_add_u32 s3, s3, {L_ML}")
        a(f"v_lshlrev_b32 v{vML}, 4, v{vA1}")
        a(f"v_add_u32 v{vML}, s3, v{vML}")
        vMW = M + 16
        a(f"v_and_b32 v{vMW}, 31, v{vL}")
        a(f"v_lshlrev_b32 v{vMW}, 4, v{vMW}")
        a(f"v_lshl_add_u32 v{vMW}, v{vA1}, 2, v{vMW}")
        a(f"v_add_u32 v{vMW}, s3, v{vMW}")
        a(f"v_bfe_u32 v{vA0}, v{vL}, 3, 2")
        a(f"v_cmp_eq_u32 vcc, 2, v{vA0}")
        a(f"v_cndmask_b32_e64 v{vMW + 1}, 0, 1.0, vcc")
        a(f"s_lshl_b32 s{sT}, s{sG}, 2")
        a(f"s_add_u32 s{sT}, s{sT}, s{sRT}")
        a(f"s_lshl_b32 s{sT + 1}, s{sT}, 7")
        a(f"s_lshl_b32 s3, s{sW}, 5")
        a(f"s_add_u32 s{sT + 1}, s{sT + 1}, s3")
        a(f"s_add_u32 s{sT + 1}, s{sT + 1}, {F_O}")
        a(f"s_mul_i32 s{sT}, s{sT}, s{sOS}")
        a(f"s_lshl_b32 s3, s{sW}, 13")
        a(f"s_add_u32 s{sT}, s{sT}, s3")
        a(f"s_add_u32 s{sT}, s{sT}, s{sOB}")
        a(f"v_and_b32 v{vA0}, 7, v{vL}")
        a(f"v_lshlrev_b32 v{vA0}, 2, v{vA0}")
        a(f"s_lshl_b32 s{sT + 2}, s{sW}, 13")
        for f in self.touches("ohop", M + 27):
            f()
        self.take(self.o.get("q_ohop", 4))
        a("s_barrier")
        self.poll_flags(vA0, sT + 1)
        self.stamp("ook")
        for k in range(2):
            a(f"s_add_u32 m0, s{sT + 2}, {L_OX + k * 4096}")
            for f in range(4):
                self.dma(vL16, SWS, sT, imm=f * 1024, mods="sc1", tag="ox")
            if k == 0:
                a(f"s_add_u32 s{sT}, s{sT}, 4096")
        a(f"v_add_u32 v{vA0}, {L_OX}, v{vL16}")
        for k in range(1, 4):
            for i in range(4):
                a(f"v_add_f32 v{M + i}, v{M + i}, v{M + 4 * k + i}")
        a(f"v_permlane32_swap_b32 v{M}, v{M + 1}")
        a(f"v_permlane32_swap_b32 v{M + 2}, v{M + 3}")
        a(f"v_add_f32 v{M}, v{M}, v{M + 1}")
        a(f"v_add_f32 v{M + 2}, v{M + 2}, v{M + 3}")
        for r in (M, M + 2):
            self.bf16r(r, r)
            a(f"v_add_f32 v{r}, v{r}, v{vMW + 1}")
            self.bf16r(r, r)
        a(f"ds_write_b32 v{vMW}, v{M}")
        a(f"ds_write_b32 v{vMW}, v{M + 2} offset:8")
        for i in range(4):
            a(f"ds_read_b128 {vr(GA + 4 * i, 4)}, v{vML} offset:{32 * i}")
        a.wait(vm="ox")
        a("s_barrier")
        xr = lambda s: XR_ + 4 * (s % 8)
        rd = lambda s: a(f"ds_read_b128 {vr(xr(s), 4)}, v{vA0} offset:{s * 1024}", ("o", s))
        for s in range(6):
            rd(s)
        if self.o.get("hidpt", "g2") == "g2":
            self.bg.insert(0, ("x", self.hidpt))
        self.bg = [("x", f) for f in self.touches("g2", M + 27)] + self.bg
        q = self.o.get("q_g2", 12)
        for s in range(32):
            a.wait(lg=[("o", s)])
            c = "0" if s == 0 else vr(ACC, 16)
            a(f"v_mfma_f32_32x32x16_bf16 {vr(ACC, 16)}, {ar(4 * s, 4)}, {vr(xr(s), 4)}, {c}")
            if s + 6 < 32:
                rd(s + 6)
            if s % 2 == 0 and q > 0:
                self.take(1)
                q -= 1
        self.bg += [("w2b", f) for f in self.w2[32:64]]
        self.stamp("g2")
        for i in range(4):
            a(f"ds_read_b128 {vr(48 + 4 * i, 4)}, v{vML} offset:{128 + 32 * i}")
            a(f"ds_read_b128 {vr(64 + 4 * i, 4)}, v{vML} offset:{256 + 32 * i}")
        a(f"s_lshl_b32 s{sT}, s{sG}, 2")
        a(f"s_add_u32 s{sT}, s{sT}, s{sRT}")
        a(f"s_lshl_b32 s{sT + 1}, s{sT}, 11")
        a(f"s_add_u32 s{sT + 1}, s{sT + 1}, {ST2}")
        a(f"s_bfe_u32 s3, s{sM}, 0x10001")
        a(f"s_lshl_b32 s3, s3, 10")
        a(f"s_add_u32 s{sT + 3}, s{sT + 1}, s3")
        a(f"s_and_b32 s3, s{sM}, 1")
        a(f"s_lshl_b32 s3, s3, 3")
        a(f"s_add_u32 s{sT + 3}, s{sT + 3}, s3")
        a(f"s_cmp_eq_u32 s{sW}, 0")
        a(f"s_cselect_b32 s{sT + 3}, s{sT + 3}, 0x7f000000")
        a(f"v_lshlrev_b32 v92, 2, v{vL}")
        a(f"v_add_u32 v92, {L_QX}, v92")
        a(f"s_lshl_b32 s3, s{sW}, 8")
        a(f"v_add_u32 v93, s3, v92")
        for r in range(16):
            a(f"v_fmac_f32 v{vX1 + r}, v{GA + r}, v{ACC + r}")
        for k in range(8):
            a(f"v_cvt_pk_bf16_f32 v{80 + k}, v{vX1 + 2 * k}, v{vX1 + 2 * k + 1}")
        a(f"s_mov_b32 s3, 0x3f803f80")
        a(f"v_dot2_f32_bf16 v88, v80, s3, 0")
        a(f"v_dot2_f32_bf16 v90, v80, v80, 0")
        for k in range(1, 8):
            a(f"v_dot2_f32_bf16 v88, v{80 + k}, s3, v88")
            a(f"v_dot2_f32_bf16 v90, v{80 + k}, v{80 + k}, v90")
        a(f"v_mov_b32 v89, s{sTAG}")
        a("v_permlane32_swap_b32 v88, v90")
        a("v_add_f32 v88, v88, v90")
        a("ds_write_b32 v93, v88")
        self.unpack(vX1, 80, 4)
        a.wait(lg=0)
        a("s_barrier")
        a("ds_read2st64_b32 v[90:91], v92 offset0:0 offset1:1")
        a("ds_read2st64_b32 v[94:95], v92 offset0:2 offset1:3")
        self.unpack(vX1 + 8, 84, 4)
        a.wait(lg=0)
        a("v_add_f32 v90, v90, v91")
        a("v_add_f32 v94, v94, v95")
        a("v_add_f32 v88, v90, v94")
        self.local_stores(lambda mods: self.st(88, 2, vL16, SWS, sT + 3, mods=mods))
        self.take(self.o.get("q_st", 4))

        def loads():
            for k in range(2):
                self.ld(128 + 4 * k, 4, vL16, SWS, sT + 1, imm=k * 1024, mods="sc1")

        def check():
            a(f"v_xor_b32 v{vA2}, s{sTAG}, v129")
            for r in (131, 133, 135):
                a(f"v_bitop3_b32 v{vA2}, v{vA2}, v{r}, s{sTAG} bitop3:0xf6")
            a(f"v_cmp_ne_u32 vcc, 0, v{vA2}")
        self.poll(loads, check)
        self.stamp("st2ok")
        a("v_add_f32 v128, v128, v130")
        a("v_add_f32 v132, v132, v134")
        a("v_add_f32 v128, v128, v132")
        a("v_mov_b32 v130, v128")
        a("v_permlane32_swap_b32 v128, v130")
        self.ln_finish(128, 130, 129)
        a("v_mul_f32 v128, v128, v130")
        a.wait(lg=0)
        for r in range(16):
            a(f"v_fma_f32 v{80 + r}, v{vX1 + r}, v130, -v128")
        for r in range(16):
            a(f"v_fma_f32 v{80 + r}, v{80 + r}, v{64 + r}, v{48 + r}")
        for k in range(8):
            a(f"v_cvt_pk_bf16_f32 v{64 + k}, v{80 + 2 * k}, v{81 + 2 * k}")
        a(f"s_lshl_b32 s{sT}, s{sT}, 15")
        a(f"s_lshl_b32 s3, s{sF0}, 6")
        a(f"s_add_u32 s{sT}, s{sT}, s3")
        a(f"s_lshl_b32 s{sT + 1}, s{sP}, 2")
        a(f"s_add_u32 s{sT + 1}, s{sT + 1}, s{sW}")
        a(f"s_lshl_b32 s{sT + 1}, s{sT + 1}, 2")
        a(f"s_add_u32 s{sT + 1}, s{sT + 1}, {F_H2}")
        a(f"v_mov_b32 v{vA1}, s{sTAG}")
        a(f"v_mov_b32 v{vA0}, 0")

        def emit(mods):
            self.st(64, 4, vL16, SH2, sT, mods=mods)
            self.st(68, 4, vL16, SH2, sT, imm=1024, mods=mods)
            a.wait(vm=0)
            self.flag_store(sT + 1, mods)
        self.local_stores(emit)
        self.stamp("h2pub")

    def silu_ops(self, acc, dst, t):
        out = []
        c = fbits(-LOG2E)
        for k in range(0, 16, 4):
            rr = range(k, k + 4)
            out += [f"v_mul_f32 v{t + r % 4}, {c}, v{acc + r}" for r in rr]
            out += [f"v_exp_f32 v{t + r % 4}, v{t + r % 4}" for r in rr]
            out += [f"v_add_f32 v{t + r % 4}, 1.0, v{t + r % 4}" for r in rr]
            out += [f"v_rcp_f32 v{t + r % 4}, v{t + r % 4}" for r in rr]
            out += [f"v_mul_f32 v{acc + r}, v{acc + r}, v{t + r % 4}" for r in rr]
            out += [f"v_cvt_pk_bf16_f32 v{dst + r // 2}, v{acc + r}, v{acc + r + 1}" for r in (k, k + 2)]
        return out

    def g3(self):
        a = self.a
        X, WR, ACC, T, HP = 128, 32, 64, 112, 116
        vB1, vB2 = 5, 6
        self.take(self.o.get("q_h2", 0))
        self.take_until("w1")
        a(f"s_lshl_b32 s{sT}, s{sGW}, 6")
        a(f"s_add_u32 s{sT}, s{sT}, {F_H2}")
        a(f"v_and_b32 v{vA0}, 15, v{vL}")
        a(f"v_lshlrev_b32 v{vA0}, 2, v{vA0}")
        a(f"v_add_u32 v{vTR}, 0x10000, v{vL16}")
        a(f"v_mov_b32 v{vB1}, v{self.vW1}")
        a(f"v_add_u32 v{vB2}, 0xc000, v{vB1}")
        a(f"s_lshl_b32 s{sT + 1}, s{sGW}, 15")

        def rd(t, s, dst):
            off = L_W1 + s * 3072 + t * 64
            v, off = (vB1, off) if s < 16 else (vB2, off - 0xc000)
            a(f"ds_read_b64_tr_b16 v[{dst}:{dst + 1}], v{v} offset:{off}", ("w", t, s))
            a(f"ds_read_b64_tr_b16 v[{dst + 2}:{dst + 3}], v{v} offset:{off + 1536}", ("w", t, s))

        wr = lambda t, s: WR + 8 * (s % 4) + 4 * t
        self.poll_flags(vA0, sT)
        a("s_barrier")
        for s in range(3):
            rd(0, s, wr(0, s))
            rd(1, s, wr(1, s))
        self.stamp("h2ok")
        self.bg = [("x", f) for f in self.touches("pAtail", T)] + self.bg
        xl = self.xloads(X, sT + 1, SH2)
        for _ in range(self.o.get("xahead", 12)):
            xl.pop(0)()
        for s in range(32):
            for t in range(2):
                a.wait(vm=[("x", s)] if t == 0 else None, lg=[("w", t, s)])
                c = "0" if s == 0 else vr(ACC + 16 * t, 16)
                a(f"v_mfma_f32_32x32x16_bf16 {vr(ACC + 16 * t, 16)}, {vr(wr(t, s), 4)}, {vr(X + 4 * s, 4)}, {c}")
                if t == 0:
                    if xl:
                        xl.pop(0)()
                    else:
                        self.take(1)
                if s + 3 < 32:
                    rd(t, s + 3, wr(t, s + 3))
        self.stamp("passA")

        def stores(t):
            def emit(mods):
                so = sHID if t < 2 else sT + 3
                self.st(HP, 4, vL16, SWS, so, imm=(2 * t % 4) * 1024, mods=mods)
                self.st(HP + 4, 4, vL16, SWS, so, imm=(2 * t % 4 + 1) * 1024, mods=mods)
            return lambda: self.local_stores(emit)

        self.bg = [("x", f) for f in self.touches("pB", 124)] + self.bg
        a(f"s_add_u32 s{sT + 3}, s{sHID}, 4096")
        a(f"s_cmp_ge_u32 s{sM}, 11")
        a("s_cbranch_scc1 L_g3_two")
        snap, bg = a.snapshot(), list(self.bg)
        fill = self.silu_ops(ACC, HP, T) + [stores(0)] + self.silu_ops(ACC + 16, HP, T) + [stores(1)]
        w3 = lambda s: WR + 4 * (s % 8)
        for s in range(5):
            rd(2, s, w3(s))
        for s in range(32):
            a.wait(lg=[("w", 2, s)])
            c = "0" if s == 0 else vr(ACC + 32, 16)
            a(f"v_mfma_f32_32x32x16_bf16 {vr(ACC + 32, 16)}, {vr(w3(s), 4)}, {vr(X + 4 * s, 4)}, {c}")
            if s + 5 < 32:
                rd(2, s + 5, w3(s + 5))
            if s % 2 == 0 or len(self.bg) > 32 - s:
                self.take(1)
            if s >= 1:
                per = -(-len(fill) // (32 - s))
                for _ in range(per):
                    f = fill.pop(0)
                    a(f) if isinstance(f, str) else f()
        assert not fill
        for i, f in enumerate(self.silu_ops(ACC + 32, HP, T)):
            a(f)
            if i % 10 == 0:
                self.take(1)
        self.take(99)
        stores(2)()
        a("s_branch L_g3_done")
        a.L("L_g3_two")
        a.restore(snap)
        self.bg = bg
        for t in range(2):
            for i, f in enumerate(self.silu_ops(ACC + 16 * t, HP, T)):
                a(f)
                if i % 6 == 0:
                    self.take(1)
            if t:
                self.take(99)
            stores(t)()
        a.L("L_g3_done")
        self.stamp("g3")
        a(f"s_lshl_b32 s{sT}, s{sGW}, 4")
        a(f"s_add_u32 s{sT}, s{sT}, s{sM}")
        a(f"s_lshl_b32 s{sT}, s{sT}, 2")
        a(f"s_add_u32 s{sT}, s{sT}, {F_HID}")
        a(f"v_mov_b32 v{vA1}, s{sTAG}")
        a(f"v_mov_b32 v{vA0}, 0")
        a.wait(vm=0)
        self.local_stores(lambda mods: self.flag_store(sT, mods))
        self.bg = [("w2c", f) for f in self.w2[64:]]
        self.take(self.o.get("q_hid", 4))
        a("s_barrier")
        self.stamp("hidpub")

    def g4(self):
        a = self.a
        ACC, XR_, GB = 96, 32, 64
        vB2 = vTR
        a(f"s_lshl_b32 s{sT}, s{sG}, 2")
        a(f"s_add_u32 s{sT}, s{sT}, s{sRT}")
        a(f"s_lshl_b32 s{sT + 1}, s{sT}, 6")
        a(f"s_add_u32 s{sT + 1}, s{sT + 1}, {F_HID}")
        a(f"s_mul_i32 s{sT + 2}, s{sT}, {86 * 1024}")
        a(f"s_add_u32 s{sT + 2}, s{sT + 2}, {HID}")
        a(f"s_lshl_b32 s{sT + 3}, s{sW}, 12")
        a(f"v_and_b32 v{vA0}, 15, v{vL}")
        a(f"v_lshlrev_b32 v{vA0}, 2, v{vA0}")
        for i in range(4):
            a(f"ds_read_b128 {vr(GB + 4 * i, 4)}, v{self.vML} offset:{384 + 32 * i}")
        self.poll_flags(vA0, sT + 1)
        self.stamp("hidok")
        a(f"s_add_u32 s{sT + 4}, s{sT + 2}, s{sT + 3}")
        hx = []
        for u in range(5):
            for f in range(4):
                def g(u=u, f=f):
                    if f == 0:
                        a(f"s_add_u32 m0, s{sT + 3}, {L_HX + u * 16384}")
                    self.dma(vL16, SWS, sT + 4, imm=f * 1024, mods="sc1", tag=("hx", u))
                    if f == 3:
                        a(f"s_add_u32 s{sT + 4}, s{sT + 4}, 16384")
                hx.append(g)
        for f in range(2):
            def g(f=f):
                if f == 0:
                    a(f"s_lshl_b32 s3, s{sW}, 11")
                    a(f"s_add_u32 s3, s3, {80 * 1024}")
                    a(f"s_add_u32 m0, s3, {L_HX}")
                    a(f"s_add_u32 s{sT + 4}, s{sT + 2}, s3")
                self.dma(vL16, SWS, sT + 4, imm=f * 1024, mods="sc1", tag=("hx", 5))
            hx.append(g)
        self.bg = [("hx", f) for f in hx] + self.bg
        self.take(self.o.get("hxahead", 4))
        a(f"v_lshrrev_b32 v{vA0}, 2, v{vL}")
        a(f"v_and_b32 v{vA1}, 48, v{vL16}")
        a(f"v_lshl_add_u32 v{vA0}, v{vA0}, 10, v{vA1}")
        a(f"s_lshl_b32 s3, s{sW}, 11")
        a(f"s_add_u32 s3, s3, {L_LATE}")
        a(f"v_add_u32 v{vA1}, s3, v{vL16}")
        a(f"s_add_u32 s{sT}, s{sOUTO}, 16384")

        xr = lambda s: XR_ + 4 * (s % 8)

        def rd(s):
            if s % 16 == 0:
                a.wait(vm=[("hx", s // 16)])
                a("s_barrier")
            off = L_HX + s * 1024
            v, off = (vL16, off) if off < 65536 else (vB2, off - 65536)
            a(f"ds_read_b128 {vr(xr(s), 4)}, v{v} offset:{off}", ("h", s))

        def w2(s):
            if s < 32:
                return ar(128 + 4 * s, 4)
            if s < 64:
                return ar(4 * (s - 32), 4)
            return vr(128 + 4 * (s - 64), 4)
        for s in range(6):
            rd(s)
        for s in range(86):
            a.wait(vm=[("w2", s)], lg=[("h", s)])
            c = "0" if s == 0 else vr(ACC, 16)
            a(f"v_mfma_f32_32x32x16_bf16 {vr(ACC, 16)}, {w2(s)}, {vr(xr(s), 4)}, {c}")
            if s % 2 == 0 or s < self.o.get("hxfast", 8):
                self.take(1)
            if s + 6 < 86:
                rd(s + 6)
        assert not self.bg
        self.stamp("g4")
        for r in range(16):
            a(f"v_fmac_f32 v{vX1 + r}, v{GB + r}, v{ACC + r}")
        for k in range(8):
            a(f"v_cvt_pk_bf16_f32 v{80 + k}, v{vX1 + 2 * k}, v{vX1 + 2 * k + 1}")
            if k % 2:
                a(f"ds_write_b64 v{vXT}, v[{79 + k}:{80 + k}] offset:{8 * (k - 1)}")
        a(f"ds_read_b128 v[88:91], v{vA1}", "o0")
        a(f"ds_read_b128 v[92:95], v{vA1} offset:1024", "o1")
        om = self.o.get("out_mods", "")
        a.wait(lg="o0")
        self.st(88, 4, vA0, SOUT, sOUTO, mods=om)
        a.wait(lg="o1")
        self.st(92, 4, vA0, SOUT, sT, mods=om)
        if self.stamps:
            a.wait(vm=0)
            self.stamp("end")
            a("s_memtime s[100:101]")
            a.wait(lg=0)
            a("s_sub_u32 s100, s100, s98")
            a("v_writelane_b32 v0, s100, 63")
            a(f"s_lshl_b32 s3, s2, 2")
            a(f"s_add_u32 s3, s3, s{sW}")
            a(f"s_lshl_b32 s3, s3, 8")
            a(f"s_add_u32 s3, s3, {STAMP}")
            a(f"v_lshlrev_b32 v{vA0}, 2, v{vL}")
            self.st(0, 1, vA0, SWS, 3)
            if self.o.get("dbg"):
                self.srd(SPR, 22, 256)
                a(f"v_readlane_b32 s3, v0, 0")
                a(f"v_subrev_u32 v0, s3, v0")
                a(f"v_lshlrev_b32 v{vA0}, 1, v{vL}")
                a(f"s_lshl_b32 s3, s2, 2")
                a(f"s_add_u32 s3, s3, s{sW}")
                a(f"s_cmp_eq_u32 s3, {self.o['dbg']}")
                a(f"s_cselect_b32 s3, 0, 0x7f000000")
                a(f"s_mov_b32 exec_lo, 0x55555555")
                a(f"s_mov_b32 exec_hi, 0")
                self.st(0, 1, vA0, SPR, 3)

    def build(self):
        a = self.a
        self.startup()
        self.g1()
        self.attention()
        self.g2()
        self.g3()
        self.g4()
        a.L("L_end")
        a("s_endpgm")
        a.L("L_code_end")
        nops = a.pad()
        head = open(os.path.join(os.path.dirname(os.path.abspath(__file__)), "..", "cdna_kernels", NAME + ".s.ref")).read()
        head = [l for l in head.split("\n") if l.startswith(";") and "@launch" not in l and "Override" not in l
                and "grid=ceil" not in l]
        out = "\n".join(head) + "\n"
        out += f"; @launch grid=(256,1,1) block=(256,1,1) lds={LDS_SIZE}\n"
        out += "; One persistent workgroup per CU; 16 workgroups share a block of 128 tokens and hand their\n"
        out += "; tiles to each other through tagged words in the workspace.\n"
        out += '.amdgcn_target "amdgcn-amd-amdhsa--gfx950"\n.text\n'
        out += f".globl {KERNEL}\n.p2align 8\n.type {KERNEL},@function\n{KERNEL}:\n"
        out += a.text()
        out += f""".section .rodata,"a"
.p2align 6
.amdhsa_kernel {KERNEL}
  .amdhsa_next_free_vgpr 512
  .amdhsa_next_free_sgpr 102
  .amdhsa_accum_offset 256
  .amdhsa_group_segment_fixed_size 0
  .amdhsa_kernarg_size 88
  .amdhsa_user_sgpr_count 2
  .amdhsa_user_sgpr_kernarg_segment_ptr 1
  .amdhsa_system_sgpr_workgroup_id_x 1
  .amdhsa_float_denorm_mode_32 3
.end_amdhsa_kernel
"""
        return out, nops


def main():
    import argparse
    ap = argparse.ArgumentParser()
    ap.add_argument("-o", default=None)
    ap.add_argument("--stamps", action="store_true")
    ap.add_argument("--opt", action="append", default=[])
    args = ap.parse_args()
    opts = {}
    for kv in args.opt:
        k, _, v = kv.partition("=")
        try:
            opts[k] = int(v) if v else 1
        except ValueError:
            opts[k] = v
    g = Gen(stamps=args.stamps, opts=opts)
    text, nops = g.build()
    path = args.o or os.path.join(os.path.dirname(os.path.abspath(__file__)), "..", "cdna_kernels", NAME + ".s")
    open(path, "w").write(text)
    if args.stamps:
        open(path + ".stamps", "w").write("\n".join(g.stamp_names))
    n = sum(1 for x in g.a.ins if x.kind not in ("label", "comment"))
    print(f"wrote {path}: {n} instructions, {nops} pad states, {len(text)} bytes of text")


if __name__ == "__main__":
    main()
```
